```python
import torch

def _softmax(x, axis=-1):
    return torch.softmax(x, dim=axis)
def _gelu(x):
    return torch.nn.functional.gelu(x, approximate="tanh")
def _silu(x):
    return torch.nn.functional.silu(x)
def _sigmoid(x):
    return torch.sigmoid(x)
def _layernorm(x, axis=-1, eps=1e-5):
    m = x.mean(dim=axis, keepdim=True)
    v = x.var(dim=axis, keepdim=True, unbiased=False)
    return (x - m) / torch.sqrt(v + eps)
def _scatter_add(tgt, idx, src, axis=0):
    return tgt.clone().index_add_(axis, idx, src)
def _segment_sum(src, seg, n):
    out = torch.zeros((n,) + src.shape[1:], dtype=src.dtype)
    return out.index_add_(0, seg, src)
def _pad(x, pw):
    flat = tuple(v for pair in reversed(pw) for v in pair)
    return torch.nn.functional.pad(x, flat)

kernel_name = 'parallel_sum__sliding_local_dilated__glu_gated_glu__prompt'

def setup_inputs():

    _w = (lambda a: (lambda t: t.to(torch.bfloat16) if t.is_floating_point() else t)(torch.as_tensor(a)))
    def _A_setup():
        B, S, D = 1, 2048, 640
        return {
            "x": _w((lambda *s: torch.randn(*s, dtype=torch.bfloat16) * 0.05)(B, S, D)),
            "wqkv": _w((lambda *s: torch.randn(*s, dtype=torch.bfloat16) * 0.05)(D, 3 * D)),
            "wo": _w((lambda *s: torch.randn(*s, dtype=torch.bfloat16) * 0.05)(D, D)),
        }
    _A_in = _A_setup()

    def _B_setup():
        B, S, D, F = 1, 2048, 640, 1536
        return {
            "x": _w((lambda *s: torch.randn(*s, dtype=torch.bfloat16) * 0.05)(B, S, D)),
            "w_gate": _w((lambda *s: torch.randn(*s, dtype=torch.bfloat16) * 0.05)(D, F)),
            "w_up": _w((lambda *s: torch.randn(*s, dtype=torch.bfloat16) * 0.05)(D, F)),
            "w_down": _w((lambda *s: torch.randn(*s, dtype=torch.bfloat16) * 0.05)(F, D)),
        }
    _B_in = _B_setup()

    return {
        "A_x": _A_in["x"],
        "A_wqkv": _A_in["wqkv"],
        "A_wo": _A_in["wo"],
        "B_x": _B_in["x"],
        "B_w_gate": _B_in["w_gate"],
        "B_w_up": _B_in["w_up"],
        "B_w_down": _B_in["w_down"],
    }

def reference(A_x, A_wqkv, A_wo, B_x, B_w_gate, B_w_up, B_w_down):
    def _A_ref(x, wqkv, wo):
        B, S, D = x.shape
        H = 32; Dh = D // H
        W, dil = 8, 2
        qkv = (lambda x, *d: x.permute(*d))((x @ wqkv).reshape(B, S, 3, H, Dh), 2, 0, 3, 1, 4)
        q, k, v = qkv[0], qkv[1], qkv[2]
        scale = Dh ** -0.5
        pos = torch.arange(S)
        off = torch.arange(W) * dil
        idx = pos[:, None] - off[None, :]
        mask = idx >= 0
        idx_c = torch.where(mask, idx, 0).reshape(-1)
        kg = k[:, :, idx_c, :].reshape(B, H, S, W, Dh)
        vg = v[:, :, idx_c, :].reshape(B, H, S, W, Dh)
        logits = torch.einsum("bhsd,bhswd->bhsw", q, kg) * scale
        logits = torch.where(mask[None, None, :, :], logits, -1e9)
        attn = _softmax(logits, axis=-1)
        o = torch.einsum("bhsw,bhswd->bhsd", attn, vg)
        return (lambda x, *d: x.permute(*d))(o, 0, 2, 1, 3).reshape(B, S, D) @ wo

    def _B_ref(x, w_gate, w_up, w_down):
        g = torch.einsum("bsd,df->bsf", x, w_gate)
        u = torch.einsum("bsd,df->bsf", x, w_up)
        h = _sigmoid(g) * u
        return torch.einsum("bsf,fd->bsd", h, w_down)

    x = A_x
    xn = _layernorm(x, axis=-1)
    return x + _A_ref(xn, A_wqkv, A_wo) + _B_ref(xn, B_w_gate, B_w_up, B_w_down)
```

```python
import sys

NAME = "parallel_sum__sliding_local_dilated__glu_gated_glu__prompt"

S = 2048
D = 640
F = 1536
KA2 = D + F
XN_BYTES = S * D * 2
A2_OFF = XN_BYTES
A2_ROW = KA2 * 2
A2_BYTES = S * A2_ROW

OPT = dict(prefetch=1, round_gu=1)
for a in sys.argv[1:]:
    if "=" in a:
        k, v = a.split("=")
        OPT[k] = int(v)

out = []


def e(s=""):
    out.append(s)


def I(s):
    out.append("    " + s)


def L(s):
    out.append(s + ":")


def srd(dst, lo, hi, nbytes, add=0):
    if add:
        I(f"s_add_u32 s{dst}, s{lo}, {add}")
        I(f"s_addc_u32 s{dst+1}, s{hi}, 0")
        I(f"s_and_b32 s{dst+1}, s{dst+1}, 0xffff")
    else:
        I(f"s_mov_b32 s{dst}, s{lo}")
        I(f"s_and_b32 s{dst+1}, s{hi}, 0xffff")
    I(f"s_mov_b32 s{dst+2}, {nbytes}")
    I(f"s_mov_b32 s{dst+3}, 0x20000")


def kd(name, vgpr, sgpr):
    acc = (vgpr + 3) // 4 * 4
    e('.section .rodata,"a"')
    e(".p2align 6")
    e(f".amdhsa_kernel {name}")
    e(f"  .amdhsa_next_free_vgpr {vgpr}")
    e(f"  .amdhsa_next_free_sgpr {sgpr}")
    e(f"  .amdhsa_accum_offset {acc}")
    e("  .amdhsa_group_segment_fixed_size 0")
    e("  .amdhsa_kernarg_size 80")
    e("  .amdhsa_user_sgpr_count 2")
    e("  .amdhsa_user_sgpr_kernarg_segment_ptr 1")
    e("  .amdhsa_system_sgpr_workgroup_id_x 1")
    e(".end_amdhsa_kernel")
    e(".text")


def kstart(name):
    e(f".globl {name}")
    e(".p2align 8")
    e(f".type {name},@function")
    L(name)


P_X, P_WQKV, P_WO, P_BX, P_WG, P_WU, P_WD, P_OUT, P_DBG, P_WS = 16, 18, 20, 22, 24, 26, 28, 30, 32, 34


def load_kernargs():
    I("s_load_dwordx16 s[16:31], s[0:1], 0")
    I("s_load_dwordx4 s[32:35], s[0:1], 64")


def wave_allreduce(v, t, sbase):
    for ctrl in ("quad_perm:[1,0,3,2]", "quad_perm:[2,3,0,1]", "row_half_mirror", "row_mirror"):
        I("s_nop 1")
        I(f"v_add_f32_dpp v{v}, v{v}, v{v} {ctrl} row_mask:0xf bank_mask:0xf")
    I("s_nop 1")
    for i in range(4):
        I(f"v_readlane_b32 s{sbase+i}, v{v}, {16*i}")
    I("s_nop 1")
    I(f"v_mov_b32 v{v}, s{sbase}")
    I(f"v_add_f32 v{v}, s{sbase+1}, v{v}")
    I(f"v_add_f32 v{v}, s{sbase+2}, v{v}")
    I(f"v_add_f32 v{v}, s{sbase+3}, v{v}")


def gen_k0():
    name = "ln_kernel"
    kstart(name)
    I("s_cmp_ge_u32 s2, 256")
    I("s_cbranch_scc1 ln_done")
    load_kernargs()
    I("v_lshrrev_b32 v1, 6, v0")
    I("v_and_b32 v2, 63, v0")
    I("s_lshl_b32 s3, s2, 3")
    I("v_add_u32 v1, s3, v1")
    I("v_mul_u32_u24 v3, 1280, v1")
    I("v_lshl_add_u32 v3, v2, 2, v3")
    I("v_lshlrev_b32 v9, 10, v1")
    I("v_lshl_add_u32 v9, v2, 4, v9")
    I("s_waitcnt lgkmcnt(0)")
    srd(36, P_X, P_X + 1, XN_BYTES)
    srd(40, P_WS, P_WS + 1, XN_BYTES)
    for i in range(5):
        I(f"buffer_load_dword v{4+i}, v3, s[36:39], 0 offen offset:{256*i}")
    npre = 0
    if OPT["prefetch"]:
        srd(44, P_WQKV, P_WQKV + 1, D * 3 * D * 2)
        srd(48, P_WG, P_WG + 1, D * F * 2)
        srd(52, P_WU, P_WU + 1, D * F * 2)
        srd(56, P_WD, P_WD + 1, D * F * 2)
        srd(60, P_WO, P_WO + 1, D * D * 2)
        I("s_mov_b32 s64, 0x200000")
        I("buffer_load_dwordx4 v[40:43], v9, s[44:47], 0 offen")
        I("buffer_load_dwordx4 v[44:47], v9, s[44:47], s64 offen")
        I("buffer_load_dwordx4 v[48:51], v9, s[48:51], 0 offen")
        I("buffer_load_dwordx4 v[52:55], v9, s[52:55], 0 offen")
        I("buffer_load_dwordx4 v[56:59], v9, s[56:59], 0 offen")
        I("buffer_load_dwordx4 v[60:63], v9, s[60:63], 0 offen")
        npre = 6
    I(f"s_waitcnt vmcnt({npre})")
    for i in range(5):
        I(f"v_lshlrev_b32 v{10+2*i}, 16, v{4+i}")
        I(f"v_and_b32 v{11+2*i}, 0xffff0000, v{4+i}")
    I("v_add_f32 v20, v10, v11")
    for i in range(2, 10):
        I(f"v_add_f32 v20, v20, v{10+i}")
    wave_allreduce(20, 21, 4)
    I("v_mul_f32 v20, 0x3acccccd, v20")
    I("v_sub_f32 v22, v10, v20")
    I("v_mul_f32 v21, v22, v22")
    for i in range(1, 10):
        I(f"v_sub_f32 v22, v{10+i}, v20")
        I("v_fmac_f32 v21, v22, v22")
    wave_allreduce(21, 22, 4)
    I("v_mul_f32 v21, 0x3acccccd, v21")
    I("v_cvt_pk_bf16_f32 v22, v20, v21")
    I("v_lshlrev_b32 v20, 16, v22")
    I("v_and_b32 v21, 0xffff0000, v22")
    I("v_add_f32 v21, 0x3727c5ac, v21")
    I("v_cvt_pk_bf16_f32 v21, v21, v21")
    I("v_lshlrev_b32 v21, 16, v21")
    I("v_sqrt_f32 v21, v21")
    I("s_nop 0")
    I("v_cvt_pk_bf16_f32 v21, v21, v21")
    I("v_lshlrev_b32 v21, 16, v21")
    I("v_rcp_f32 v21, v21")
    I("s_nop 0")
    for i in range(5):
        a, b = 10 + 2 * i, 11 + 2 * i
        I(f"v_sub_f32 v{a}, v{a}, v20")
        I(f"v_sub_f32 v{b}, v{b}, v20")
        I(f"v_cvt_pk_bf16_f32 v22, v{a}, v{b}")
        I(f"v_lshlrev_b32 v{a}, 16, v22")
        I(f"v_and_b32 v{b}, 0xffff0000, v22")
        I(f"v_mul_f32 v{a}, v{a}, v21")
        I(f"v_mul_f32 v{b}, v{b}, v21")
        I(f"v_cvt_pk_bf16_f32 v{4+i}, v{a}, v{b}")
        I(f"buffer_store_dword v{4+i}, v3, s[40:43], 0 offen offset:{256*i}")
    L("ln_done")
    I("s_endpgm")
    kd(name, 64, 72)


S_CB, S_RB, S_TYPE, S_M0, S_W = 4, 5, 6, 7, 8
S_AR, S_ARN, S_BR, S_BW = 9, 10, 11, 12
S_AG, S_BG = 13, 14
S_IT = 15
SRD_XN, SRD_A2, SRD_W = 40, 44, 48
S_T0, S_T1, S_T2, S_T3 = 52, 53, 54, 55
S_MA, S_MB, S_MH = 56, 57, 58
S_TILES = 59
S_SLOT = 60
S_SEL_LO, S_SEL_HI, S_SCALE, S_L2E = 70, 71, 72, 73


class K1Cfg:
    pass


def k1_mainloop(c, tag):
    a = len(c.a_dma)
    b = len(c.b_dma)

    def dma_a():
        last = None
        for (v, sm, off) in c.a_dma:
            if sm != last:
                I(f"s_add_u32 m0, s{S_T3}, s{sm}")
                I("s_nop 0")
                last = sm
            I(f"buffer_load_dwordx4 v{v}, s[{SRD_XN}:{SRD_XN+3}], s{S_AG} offen offset:{off} lds")

    def adv_a():
        I(f"s_add_u32 s{S_AG}, s{S_AG}, 128")
        I(f"s_cmp_ge_u32 s{S_AG}, 1280")
        I(f"s_cselect_b32 s{S_AG}, 0x40000000, s{S_AG}")

    def dma_b():
        last = None
        for (v, sm, off) in c.b_dma:
            if sm != last:
                I(f"s_add_u32 m0, s{S_T3}, s{sm}")
                I("s_nop 0")
                last = sm
            I(f"buffer_load_dwordx4 v{v}, s[{SRD_W}:{SRD_W+3}], s{S_BG} offen offset:{off} lds")

    def adv_b():
        I(f"s_add_u32 s{S_BG}, s{S_BG}, {c.bstage_g}")

    def ring_next(sreg, size, n, base):
        I(f"s_add_u32 s{sreg}, s{sreg}, {size}")
        I(f"s_cmp_ge_u32 s{sreg}, {base + size * n}")
        I(f"s_cselect_b32 s{sreg}, {base}, s{sreg}")

    def frag_reads(fs, khalf, s_a, s_b):
        pre = []
        for (dyn, st0, st1) in c.xaddr:
            pre.append(f"v_add_u32 v{dyn}, s{s_a}, v{st1 if khalf else st0}")
        for (dyn, st) in c.waddr:
            pre.append(f"v_add_u32 v{dyn}, s{s_b}, v{st}")
        rd = []
        for i, (ai, off) in enumerate(c.xfrag):
            r = c.XF[fs] + 4 * i
            rd.append(f"ds_read_b128 v[{r}:{r+3}], v{c.xaddr[ai][0]} offset:{off}")
        for i, (ai, off) in enumerate(c.wfrag):
            r = c.WF[fs] + 4 * i
            rd.append(f"ds_read_b64_tr_b16 v[{r}:{r+1}], v{c.waddr[ai][0]} offset:{off}")
            rd.append(f"ds_read_b64_tr_b16 v[{r+2}:{r+3}], v{c.waddr[ai][0]} offset:{off + c.wrow4}")
        return pre, rd

    def mfmas(fs):
        res = []
        for (acc, xi, wi) in c.tiles:
            x = c.XF[fs] + 4 * xi
            w = c.WF[fs] + 4 * wi
            res.append(f"v_mfma_f32_16x16x32_bf16 v[{acc}:{acc+3}], v[{w}:{w+3}], v[{x}:{x+3}], v[{acc}:{acc+3}]")
        return res

    I(f"s_mov_b32 s{S_AG}, 0")
    I(f"s_mov_b32 s{S_BG}, 0")
    seq = ["A0", "B0", "A1", "B1", "B2", "A2", "B3"]
    for it in seq:
        n = int(it[1])
        if it[0] == "A":
            I(f"s_mov_b32 s{S_T3}, {c.abase + n * c.asz}")
            dma_a()
            adv_a()
        else:
            I(f"s_mov_b32 s{S_T3}, {c.bbase + n * c.bsz}")
            dma_b()
            adv_b()
    for r in range(c.acc0, c.acc0 + c.nacc):
        I(f"v_mov_b32 v{r}, 0")
    I(f"s_mov_b32 s{S_AR}, {c.abase}")
    I(f"s_mov_b32 s{S_ARN}, {c.abase + c.asz}")
    I(f"s_mov_b32 s{S_BW}, {c.bbase}")
    I(f"s_mov_b32 s{S_BR}, {c.bbase + c.bsz}")
    I(f"s_waitcnt vmcnt({3*b + 2*a})")
    I("s_barrier")
    pre, rd = frag_reads(0, 0, S_AR, S_BW)
    for x in pre + rd:
        I(x)
    I(f"s_mov_b32 s{S_IT}, 0")
    I("s_waitcnt lgkmcnt(0)")
    L(f"{tag}_loop")
    for half in range(2):
        I(f"s_waitcnt vmcnt({2*b + a})")
        I("s_barrier")
        if half == 1:
            I(f"s_mov_b32 s{S_T3}, s{S_AR}")
            dma_a()
            adv_a()
        I(f"s_mov_b32 s{S_T3}, s{S_BW}")
        dma_b()
        adv_b()
        if half == 0:
            pre, rd = frag_reads(1, 1, S_AR, S_BR)
        else:
            pre, rd = frag_reads(0, 0, S_ARN, S_BR)
        for x in pre:
            I(x)
        mf = mfmas(half)
        for i, m in enumerate(mf):
            I(m)
            if i < len(rd):
                I(rd[i])
        for x in rd[len(mf):]:
            I(x)
        I(f"s_mov_b32 s{S_BW}, s{S_BR}")
        ring_next(S_BR, c.bsz, 4, c.bbase)
        if half == 1:
            I(f"s_mov_b32 s{S_AR}, s{S_ARN}")
            ring_next(S_ARN, c.asz, 3, c.abase)
        I("s_waitcnt lgkmcnt(0)")
    I(f"s_add_u32 s{S_IT}, s{S_IT}, 1")
    I(f"s_cmp_lt_u32 s{S_IT}, 10")
    I(f"s_cbranch_scc1 {tag}_loop")
    I("s_waitcnt vmcnt(0)")
    I("s_barrier")


def bf16_round_pair(a, b, t):
    I(f"v_cvt_pk_bf16_f32 v{t}, v{a}, v{b}")
    I(f"v_lshlrev_b32 v{a}, 16, v{t}")
    I(f"v_and_b32 v{b}, 0xffff0000, v{t}")


def gen_k1():
    name = "gemm1_kernel"
    kstart(name)
    I("s_cmp_ge_u32 s2, 256")
    I("s_cbranch_scc1 k1_done")
    load_kernargs()
    I(f"s_and_b32 s{S_CB}, s2, 7")
    I(f"s_lshr_b32 s{S_RB}, s2, 3")
    I(f"s_and_b32 s{S_TYPE}, s{S_RB}, 1")
    I(f"s_lshr_b32 s{S_RB}, s{S_RB}, 1")
    I(f"s_lshl_b32 s{S_M0}, s{S_RB}, 7")
    I("v_lshrrev_b32 v1, 6, v0")
    I("v_and_b32 v2, 63, v0")
    I(f"v_readfirstlane_b32 s{S_W}, v1")
    I("v_and_b32 v3, 15, v2")
    I("v_lshrrev_b32 v4, 4, v2")
    I("s_waitcnt lgkmcnt(0)")
    srd(SRD_XN, P_WS, P_WS + 1, XN_BYTES)
    srd(SRD_A2, P_WS, P_WS + 1, A2_BYTES, add=A2_OFF)
    I(f"s_cmp_eq_u32 s{S_TYPE}, 0")
    I("s_cbranch_scc1 k1_qkv")

    c = K1Cfg()
    c.asz, c.bsz, c.abase, c.bbase = 16384, 24576, 0, 49152
    c.bstage_g = 32 * F * 2
    c.wrow4 = 4 * 24 * 16
    c.acc0, c.nacc = 128, 96
    c.XF = [8, 48]
    c.WF = [24, 64]
    vX0, vX1, vW, vXa, vWa, vAd, vBd = 88, 89, 90, 93, 94, 97, 99
    I(f"s_cmp_lt_u32 s{S_W}, 4")
    I(f"s_cselect_b32 s{SRD_W}, s{P_WG}, s{P_WU}")
    I(f"s_cselect_b32 s{SRD_W+1}, s{P_WG+1}, s{P_WU+1}")
    I(f"s_and_b32 s{SRD_W+1}, s{SRD_W+1}, 0xffff")
    I(f"s_mov_b32 s{SRD_W+2}, {D*F*2}")
    I(f"s_mov_b32 s{SRD_W+3}, 0x20000")
    I(f"s_lshl_b32 s{S_T0}, s{S_W}, 4")
    I(f"s_add_u32 s{S_T0}, s{S_T0}, s{S_M0}")
    I("v_lshrrev_b32 v5, 3, v2")
    I(f"v_add_u32 v5, s{S_T0}, v5")
    I("v_mul_u32_u24 v5, 1280, v5")
    I("v_and_b32 v6, 7, v2")
    I("v_xor_b32 v7, v6, v4")
    I(f"v_lshl_add_u32 v{vAd}, v7, 4, v5")
    I("v_or_b32 v7, 4, v4")
    I("v_xor_b32 v7, v6, v7")
    I(f"v_lshl_add_u32 v{vAd+1}, v7, 4, v5")
    I(f"v_add_u32 v{vAd+1}, {8*1280 - 1024}, v{vAd+1}")
    I(f"s_lshl_b32 s{S_MA}, s{S_W}, 11")
    c.a_dma = [(vAd, S_MA, 0), (vAd + 1, S_MA, 1024)]
    I(f"s_and_b32 s{S_T0}, s{S_W}, 3")
    I(f"s_mul_i32 s{S_T1}, s{S_T0}, 192")
    I(f"s_mul_i32 s{S_T2}, s{S_CB}, 384")
    for ii in range(3):
        I(f"v_add_u32 v5, s{S_T1}, v2")
        if ii:
            I(f"v_add_u32 v5, {64*ii}, v5")
        I("v_mul_u32_u24 v6, 2731, v5")
        I("v_lshrrev_b32 v6, 16, v6")
        I("v_mul_u32_u24 v7, 24, v6")
        I("v_sub_u32 v7, v5, v7")
        I("v_and_b32 v1, 2, v6")
        I("v_lshrrev_b32 v5, 1, v6")
        I("v_and_b32 v5, 4, v5")
        I("v_or_b32 v1, v1, v5")
        I("v_xor_b32 v7, v7, v1")
        I("v_mul_u32_u24 v6, 3072, v6")
        I("v_lshl_add_u32 v6, v7, 4, v6")
        I(f"v_add_u32 v{vBd+ii}, s{S_T2}, v6")
        if ii:
            I(f"v_subrev_u32 v{vBd+ii}, {1024*ii}, v{vBd+ii}")
    I(f"s_lshr_b32 s{S_T1}, s{S_W}, 2")
    I(f"s_mul_i32 s{S_MB}, s{S_T1}, 12288")
    I(f"s_mul_i32 s{S_T1}, s{S_T0}, 3072")
    I(f"s_add_u32 s{S_MB}, s{S_MB}, s{S_T1}")
    c.b_dma = [(vBd + ii, S_MB, 1024 * ii) for ii in range(3)]
    I(f"s_lshr_b32 s{S_T1}, s{S_W}, 2")
    I(f"s_lshl_b32 s{S_T1}, s{S_T1}, 13")
    I("v_lshrrev_b32 v5, 1, v3")
    I("v_xor_b32 v5, v5, v4")
    I("v_lshlrev_b32 v5, 4, v5")
    I("v_lshl_add_u32 v5, v3, 7, v5")
    I(f"v_add_u32 v{vX0}, s{S_T1}, v5")
    I(f"v_xor_b32 v{vX1}, 64, v{vX0}")
    c.xaddr = [(vXa, vX0, vX1)]
    c.xfrag = [(0, rt * 2048) for rt in range(4)]
    I("v_lshrrev_b32 v5, 2, v3")
    I("v_and_b32 v6, 3, v2")
    I("v_lshl_add_u32 v7, v4, 3, v5")
    I("v_mul_u32_u24 v7, 384, v7")
    I("v_and_b32 v1, 1, v6")
    I("v_lshl_add_u32 v7, v1, 3, v7")
    I("v_and_b32 v5, 2, v5")
    I("v_and_b32 v1, 1, v4")
    I("v_lshl_or_b32 v5, v1, 2, v5")
    I("v_lshrrev_b32 v6, 1, v6")
    I(f"s_mul_i32 s{S_T1}, s{S_T0}, 6")
    I(f"v_add_u32 v6, s{S_T1}, v6")
    for ct in range(3):
        I(f"v_add_u32 v1, {2*ct}, v6")
        I("v_xor_b32 v1, v1, v5")
        I(f"v_lshl_add_u32 v{vW+ct}, v1, 4, v7")
    c.waddr = [(vWa + ct, vW + ct) for ct in range(3)]
    c.wfrag = [(ct, 0) for ct in range(3)] + [(ct, 12288) for ct in range(3)]
    c.tiles = [(c.acc0 + (rt * 6 + ct) * 4, rt, ct) for rt in range(4) for ct in range(6)]
    k1_mainloop(c, "glu")
    I("s_nop 7")
    I(f"s_mov_b32 s{S_L2E}, 0xbfb8aa3b")
    I(f"s_lshr_b32 s{S_T1}, s{S_W}, 2")
    I(f"s_lshl_b32 s{S_T1}, s{S_T1}, 6")
    I(f"s_add_u32 s{S_T1}, s{S_T1}, s{S_M0}")
    I(f"v_add_u32 v5, s{S_T1}, v3")
    I(f"v_mul_u32_u24 v5, {A2_ROW}, v5")
    I(f"s_mul_i32 s{S_T2}, s{S_CB}, 384")
    I(f"s_mul_i32 s{S_T1}, s{S_T0}, 96")
    I(f"s_add_u32 s{S_T2}, s{S_T2}, s{S_T1}")
    I(f"s_add_u32 s{S_T2}, s{S_T2}, 1280")
    I(f"v_lshl_add_u32 v5, v4, 3, v5")
    I(f"v_add_u32 v5, s{S_T2}, v5")
    for rt in range(4):
        for ct in range(3):
            g = c.acc0 + (rt * 6 + ct) * 4
            u = c.acc0 + (rt * 6 + 3 + ct) * 4
            if OPT["round_gu"]:
                bf16_round_pair(g, g + 1, 8)
                bf16_round_pair(g + 2, g + 3, 9)
                bf16_round_pair(u, u + 1, 10)
                bf16_round_pair(u + 2, u + 3, 11)
            for r in range(4):
                I(f"v_mul_f32 v{g+r}, s{S_L2E}, v{g+r}")
            for r in range(4):
                I(f"v_exp_f32 v{g+r}, v{g+r}")
            I("s_nop 0")
            for r in range(4):
                I(f"v_add_f32 v{g+r}, 1.0, v{g+r}")
            for r in range(4):
                I(f"v_rcp_f32 v{g+r}, v{g+r}")
            I("s_nop 0")
            if OPT["round_gu"]:
                bf16_round_pair(g, g + 1, 8)
                bf16_round_pair(g + 2, g + 3, 9)
            for r in range(4):
                I(f"v_mul_f32 v{g+r}, v{g+r}, v{u+r}")
            I(f"v_cvt_pk_bf16_f32 v{u}, v{g}, v{g+1}")
            I(f"v_cvt_pk_bf16_f32 v{u+1}, v{g+2}, v{g+3}")
            I(f"buffer_store_dwordx2 v[{u}:{u+1}], v5, s[{SRD_A2}:{SRD_A2+3}], 0 offen offset:{ct*32}")
        if rt < 3:
            I(f"v_add_u32 v5, {16*A2_ROW}, v5")
    I("s_endpgm")

    L("k1_qkv")
    c = K1Cfg()
    c.asz, c.bsz, c.abase, c.bbase = 18432, 16384, 0, 55296
    c.bstage_g = 32 * 3 * D * 2
    c.wrow4 = 4 * 32 * 16
    c.acc0, c.nacc = 128, 72
    c.XF = [8, 52]
    c.WF = [20, 64]
    vXb0, vXb1, vXm0, vXm1, vW, vXma, vXha, vWa, vAd, vBd = 96, 97, 98, 99, 100, 108, 109, 110, 118, 121
    srd(SRD_W, P_WQKV, P_WQKV + 1, D * 3 * D * 2)
    tl = []
    for w in range(8):
        wr, wc = w >> 1, w & 1
        if wc == 0:
            base = [0, 1, 2, 3, 4, 5, 6, 7]
            first = [5 + min(wr, 2)]
        else:
            base = [8, 9, 10, 11, 12, 13, 14, 14]
            first = [8 + 2 * wr, 9 + 2 * wr] if wr < 3 else [14, 14]
        rest = list(base)
        for f_ in first:
            rest.remove(f_)
        lst = first + rest
        assert len(lst) == 8
        tl.append(lst)
    halo = set()
    for w in range(8):
        for q in range(2):
            if tl[w][q] >= 5:
                halo.add(tl[w][q])
    assert halo == set(range(5, 15)), halo
    I(f"s_mov_b32 s{S_TILES}, 0")
    for w in range(8):
        val = sum(t << (4 * i) for i, t in enumerate(tl[w]))
        I(f"s_cmp_eq_u32 s{S_W}, {w}")
        I(f"s_cselect_b32 s{S_TILES}, {val:#x}, s{S_TILES}")
    I(f"s_lshl_b32 s{S_T0}, s{S_W}, 4")
    I(f"s_add_u32 s{S_T0}, s{S_T0}, s{S_M0}")
    I("v_lshrrev_b32 v1, 3, v2")
    I(f"v_add_u32 v5, s{S_T0}, v1")
    I("v_mul_u32_u24 v5, 1280, v5")
    I("v_and_b32 v6, 7, v2")
    I("v_xor_b32 v7, v6, v4")
    I(f"v_lshl_add_u32 v{vAd}, v7, 4, v5")
    I("v_or_b32 v7, 4, v4")
    I("v_xor_b32 v7, v6, v7")
    I(f"v_lshl_add_u32 v{vAd+1}, v7, 4, v5")
    I(f"v_add_u32 v{vAd+1}, {8*1280 - 1024}, v{vAd+1}")
    I(f"s_and_b32 s{S_T1}, s{S_W}, 1")
    I(f"s_lshl_b32 s{S_T2}, s{S_T1}, 3")
    I(f"s_add_u32 s{S_T2}, s{S_T2}, s{S_M0}")
    I(f"s_sub_u32 s{S_T2}, s{S_T2}, 16")
    I(f"v_add_u32 v5, s{S_T2}, v1")
    I(f"s_mov_b32 s{S_T2}, 1280")
    I(f"v_mul_lo_u32 v5, v5, s{S_T2}")
    I(f"s_lshl_b32 s{S_T2}, s{S_T1}, 2")
    I(f"v_or_b32 v7, s{S_T2}, v4")
    I("v_xor_b32 v7, v6, v7")
    I(f"v_lshl_add_u32 v{vAd+2}, v7, 4, v5")
    I(f"s_lshl_b32 s{S_MA}, s{S_W}, 11")
    I(f"s_add_u32 s{S_MA}, s{S_MA}, 2048")
    I(f"s_lshl_b32 s{S_MH}, s{S_T1}, 10")
    c.a_dma = [(vAd, S_MA, 0), (vAd + 1, S_MA, 1024), (vAd + 2, S_MH, 0)]
    I(f"s_mul_i32 s{S_T2}, s{S_CB}, 160")
    I("v_lshrrev_b32 v1, 5, v2")
    I(f"s_lshl_b32 s{S_T0}, s{S_W}, 2")
    for ii in range(2):
        I(f"v_add_u32 v5, s{S_T0}, v1")
        if ii:
            I("v_add_u32 v5, 2, v5")
        I("v_and_b32 v6, 3, v5")
        I("v_lshrrev_b32 v7, 1, v5")
        I("v_and_b32 v7, 4, v7")
        I("v_or_b32 v6, v6, v7")
        I("v_lshlrev_b32 v6, 1, v6")
        I("v_and_b32 v7, 31, v2")
        I("v_xor_b32 v6, v6, v7")
        I("v_mul_u32_u24 v7, 26, v6")
        I("v_lshrrev_b32 v7, 8, v7")
        I("v_mul_u32_u24 v7, 1120, v7")
        I("v_lshl_add_u32 v7, v6, 4, v7")
        I("v_mul_u32_u24 v5, 3840, v5")
        I("v_add_u32 v5, v5, v7")
        I(f"v_add_u32 v5, s{S_T2}, v5")
        if ii:
            I("v_subrev_u32 v5, 1024, v5")
        I("v_cmp_gt_u32 vcc, 30, v6")
        I("v_mov_b32 v7, 0x7f000000")
        I("s_nop 1")
        I(f"v_cndmask_b32 v{vBd+ii}, v7, v5, vcc")
    I(f"s_lshl_b32 s{S_MB}, s{S_W}, 11")
    c.b_dma = [(vBd + ii, S_MB, 1024 * ii) for ii in range(2)]
    I("v_lshrrev_b32 v5, 1, v3")
    I("v_xor_b32 v5, v5, v4")
    I("v_lshlrev_b32 v5, 4, v5")
    I(f"v_lshl_add_u32 v{vXb0}, v3, 7, v5")
    I(f"v_xor_b32 v{vXb1}, 64, v{vXb0}")
    I(f"s_lshr_b32 s{S_T1}, s{S_W}, 1")
    I(f"s_lshl_b32 s{S_T1}, s{S_T1}, 12")
    I(f"s_add_u32 s{S_T1}, s{S_T1}, 2048")
    I(f"v_add_u32 v{vXm0}, s{S_T1}, v{vXb0}")
    I(f"v_add_u32 v{vXm1}, s{S_T1}, v{vXb1}")
    c.xaddr = [(vXma, vXm0, vXm1), (vXha, vXb0, vXb1)]
    c.xfrag = [(0, 0), (0, 2048), (1, 0)]
    I("v_lshrrev_b32 v5, 2, v3")
    I("v_and_b32 v6, 3, v2")
    I("v_lshl_add_u32 v7, v4, 3, v5")
    I("v_lshlrev_b32 v7, 9, v7")
    I("v_and_b32 v1, 1, v6")
    I("v_lshl_add_u32 v7, v1, 3, v7")
    I("v_and_b32 v1, 1, v4")
    I("v_lshl_or_b32 v5, v1, 2, v5")
    I("v_lshlrev_b32 v5, 1, v5")
    I("v_lshrrev_b32 v6, 1, v6")
    for q in range(8):
        I(f"s_lshr_b32 s{S_T1}, s{S_TILES}, {4*q}")
        I(f"s_and_b32 s{S_T1}, s{S_T1}, 15")
        I(f"s_lshl_b32 s{S_T2}, s{S_T1}, 1")
        I(f"v_add_u32 v1, s{S_T2}, v6")
        I("v_xor_b32 v1, v1, v5")
        I(f"v_lshl_add_u32 v{vW+q}, v1, 4, v7")
        I(f"s_mul_i32 s{S_T2}, s{S_T1}, 52")
        I(f"s_lshr_b32 s{S_T2}, s{S_T2}, 8")
        I(f"s_mul_i32 s{S_T0}, s{S_T2}, 5")
        I(f"s_sub_u32 s{S_T0}, s{S_T1}, s{S_T0}")
        I(f"s_lshl_b32 s{S_T0}, s{S_T0}, 5")
        I(f"s_mul_i32 s{S_T2}, s{S_T2}, 24192")
        I(f"s_add_u32 s{S_T0}, s{S_T0}, s{S_T2}")
        I(f"s_sub_u32 s{S_SLOT+q}, s{S_T0}, 2688")
        if q < 2:
            I(f"s_cmp_ge_u32 s{S_T1}, 5")
            I(f"s_cselect_b32 s{S_SLOT+8+q}, s{S_SLOT+q}, 70656")
    c.waddr = [(vWa + q, vW + q) for q in range(8)]
    c.wfrag = [(q, 0) for q in range(8)]
    c.tiles = [(c.acc0 + (q * 2 + rt) * 4, rt, q) for q in range(8) for rt in range(2)]
    c.tiles += [(c.acc0 + (16 + q) * 4, 2, q) for q in range(2)]
    k1_mainloop(c, "qkv")
    I("s_nop 7")
    I(f"s_lshr_b32 s{S_T1}, s{S_W}, 1")
    I(f"s_mul_i32 s{S_T1}, s{S_T1}, {32*168}")
    I(f"s_add_u32 s{S_T1}, s{S_T1}, {16*168}")
    I("v_mul_u32_u24 v5, 168, v3")
    I("v_lshl_add_u32 v5, v4, 3, v5")
    I(f"v_add_u32 v6, s{S_T1}, v5")
    for q in range(8):
        for rt in range(2):
            a = c.acc0 + (q * 2 + rt) * 4
            I(f"v_cvt_pk_bf16_f32 v{a}, v{a}, v{a+1}")
            I(f"v_cvt_pk_bf16_f32 v{a+1}, v{a+2}, v{a+3}")
            I(f"v_add_u32 v7, s{S_SLOT+q}, v6")
            I(f"ds_write_b64 v7, v[{a}:{a+1}] offset:{rt*16*168}")
    for q in range(2):
        a = c.acc0 + (16 + q) * 4
        I(f"v_cvt_pk_bf16_f32 v{a}, v{a}, v{a+1}")
        I(f"v_cvt_pk_bf16_f32 v{a+1}, v{a+2}, v{a+3}")
        I(f"v_add_u32 v7, s{S_SLOT+8+q}, v5")
        I(f"ds_write_b64 v7, v[{a}:{a+1}]")
    I("s_waitcnt lgkmcnt(0)")
    I("s_barrier")
    KOFF, VOFF = 21504, 45696
    I(f"s_and_b32 s{S_T0}, s{S_W}, 1")
    I(f"s_lshl_b32 s{S_T0}, s{S_T0}, 6")
    I(f"v_add_u32 v5, s{S_T0}, v2")
    I(f"v_add_u32 v6, s{S_M0}, v5")
    I("v_mul_u32_u24 v5, 168, v5")
    I(f"s_lshr_b32 s{S_T1}, s{S_W}, 1")
    I(f"s_mul_i32 s{S_T2}, s{S_T1}, 40")
    I(f"v_add_u32 v5, s{S_T2}, v5")
    Q = 8
    KV = 20
    LG = 100
    O = 110
    for i in range(5):
        I(f"ds_read_b64 v[{Q+2*i}:{Q+2*i+1}], v5 offset:{8*i}")
    for wi in range(8):
        for i in range(5):
            off = KOFF + (16 - 2 * wi) * 168 + 8 * i
            I(f"ds_read_b64 v[{KV+10*wi+2*i}:{KV+10*wi+2*i+1}], v5 offset:{off}")
    I(f"s_mov_b32 s{S_SCALE}, 0x3e64f92e")
    I(f"s_mov_b32 s{S_L2E}, 0x3fb8aa3b")
    I(f"s_mov_b32 s{S_SEL_LO}, 0x05040100")
    I(f"s_mov_b32 s{S_SEL_HI}, 0x07060302")
    I("s_waitcnt lgkmcnt(0)")
    for i in range(10):
        for wi in range(8):
            src = "0" if i == 0 else f"v{LG+wi}"
            I(f"v_dot2_f32_bf16 v{LG+wi}, v{Q+i}, v{KV+10*wi+i}, {src}")
    I("s_nop 3")
    for wi in range(8):
        for i in range(5):
            off = VOFF + (16 - 2 * wi) * 168 + 8 * i
            I(f"ds_read_b64 v[{KV+10*wi+2*i}:{KV+10*wi+2*i+1}], v5 offset:{off}")
    for p in range(4):
        a, b = LG + 2 * p, LG + 2 * p + 1
        bf16_round_pair(a, b, 7)
        I(f"v_mul_f32 v{a}, s{S_SCALE}, v{a}")
        I(f"v_mul_f32 v{b}, s{S_SCALE}, v{b}")
        bf16_round_pair(a, b, 7)
    I("v_mov_b32 v7, 0xce6e6b28")
    for wi in range(1, 8):
        I(f"v_cmp_le_u32 vcc, {2*wi}, v6")
        I("s_nop 1")
        I(f"v_cndmask_b32 v{LG+wi}, v7, v{LG+wi}, vcc")
    I(f"v_max3_f32 v7, v{LG}, v{LG+1}, v{LG+2}")
    I(f"v_max3_f32 v7, v7, v{LG+3}, v{LG+4}")
    I(f"v_max3_f32 v7, v7, v{LG+5}, v{LG+6}")
    I(f"v_max_f32 v7, v7, v{LG+7}")
    for wi in range(8):
        I(f"v_sub_f32 v{LG+wi}, v{LG+wi}, v7")
        I(f"v_mul_f32 v{LG+wi}, s{S_L2E}, v{LG+wi}")
    for wi in range(8):
        I(f"v_exp_f32 v{LG+wi}, v{LG+wi}")
    I("s_nop 0")
    I(f"v_add_f32 v7, v{LG}, v{LG+1}")
    for wi in range(2, 8):
        I(f"v_add_f32 v7, v7, v{LG+wi}")
    I("v_rcp_f32 v7, v7")
    I("s_nop 0")
    for wi in range(8):
        I(f"v_mul_f32 v{LG+wi}, v{LG+wi}, v7")
    for p in range(4):
        I(f"v_cvt_pk_bf16_f32 v{LG+p}, v{LG+2*p}, v{LG+2*p+1}")
    I("s_waitcnt lgkmcnt(0)")
    T = 130
    for p in range(4):
        for i in range(10):
            A_ = KV + 10 * (2 * p) + i
            B_ = KV + 10 * (2 * p + 1) + i
            t0 = T + 2 * (i % 4)
            I(f"v_perm_b32 v{t0}, v{B_}, v{A_}, s{S_SEL_LO}")
            I(f"v_perm_b32 v{t0+1}, v{B_}, v{A_}, s{S_SEL_HI}")
            s0 = "0" if p == 0 else f"v{O+2*i}"
            s1 = "0" if p == 0 else f"v{O+2*i+1}"
            I(f"v_dot2_f32_bf16 v{O+2*i}, v{t0}, v{LG+p}, {s0}")
            I(f"v_dot2_f32_bf16 v{O+2*i+1}, v{t0+1}, v{LG+p}, {s1}")
    I("s_nop 3")
    for i in range(10):
        I(f"v_cvt_pk_bf16_f32 v{Q+i}, v{O+2*i}, v{O+2*i+1}")
    I(f"v_mul_u32_u24 v5, {A2_ROW}, v6")
    I(f"s_mul_i32 s{S_T0}, s{S_CB}, 160")
    I(f"s_add_u32 s{S_T0}, s{S_T0}, s{S_T2}")
    I(f"v_add_u32 v5, s{S_T0}, v5")
    for i in range(5):
        I(f"buffer_store_dwordx2 v[{Q+2*i}:{Q+2*i+1}], v5, s[{SRD_A2}:{SRD_A2+3}], 0 offen offset:{8*i}")
    L("k1_done")
    I("s_endpgm")
    kd(name, 256, 80)


def gen_k2():
    name = "gemm2_kernel"
    kstart(name)
    I("s_cmp_ge_u32 s2, 256")
    I("s_cbranch_scc1 k2_done")
    load_kernargs()
    S_RB_, S_CB_, S_M0_, S_N0B, S_W_ = 4, 5, 6, 7, 8
    S_C, S_AG_, S_BG_, S_LB = 9, 10, 11, 12
    SRD_A, SRD_B, SRD_X, SRD_O = 40, 44, 48, 52
    T0, T1, T2 = 56, 57, 58
    I(f"s_and_b32 s{T0}, s2, 7")
    I(f"s_lshr_b32 s{T1}, s2, 3")
    I(f"s_lshr_b32 s{S_RB_}, s{T0}, 1")
    I(f"s_lshl_b32 s{S_RB_}, s{S_RB_}, 3")
    I(f"s_lshr_b32 s{T2}, s{T1}, 2")
    I(f"s_add_u32 s{S_RB_}, s{S_RB_}, s{T2}")
    I(f"s_and_b32 s{S_CB_}, s{T0}, 1")
    I(f"s_lshl_b32 s{S_CB_}, s{S_CB_}, 2")
    I(f"s_and_b32 s{T2}, s{T1}, 3")
    I(f"s_add_u32 s{S_CB_}, s{S_CB_}, s{T2}")
    I(f"s_lshl_b32 s{S_M0_}, s{S_RB_}, 6")
    I(f"s_mul_i32 s{S_N0B}, s{S_CB_}, 160")
    I("v_lshrrev_b32 v1, 6, v0")
    I("v_and_b32 v2, 63, v0")
    I(f"v_readfirstlane_b32 s{S_W_}, v1")
    I("v_and_b32 v3, 15, v2")
    I("v_lshrrev_b32 v4, 4, v2")
    I("s_waitcnt lgkmcnt(0)")
    srd(SRD_A, P_WS, P_WS + 1, A2_BYTES, add=A2_OFF)
    srd(SRD_X, P_X, P_X + 1, XN_BYTES)
    srd(SRD_O, P_OUT, P_OUT + 1, XN_BYTES)
    I(f"s_mov_b32 s{SRD_B+3}, 0x20000")
    I(f"s_mov_b32 s59, {F*D*2}")
    BUF = 11264
    ACC = 128
    AF = [8, 40, 72]
    WFR = 104
    vA = 208
    vB = 212
    vR = 223
    XR = 224
    I(f"v_add_u32 v5, s{S_M0_}, v3")
    I(f"v_mul_u32_u24 v5, {A2_ROW}, v5")
    I(f"v_lshl_add_u32 v{vA}, v4, 4, v5")
    for rt in range(1, 4):
        I(f"v_add_u32 v{vA+rt}, {16*A2_ROW*rt}, v{vA}")
    for i in range(11):
        I(f"v_add_u32 v5, {64*i}, v2")
        I("v_mul_u32_u24 v6, 745, v5")
        I("v_lshrrev_b32 v6, 16, v6")
        I("v_mul_u32_u24 v7, 88, v6")
        I("v_sub_u32 v5, v5, v7")
        I("v_mul_u32_u24 v7, 205, v5")
        I("v_lshrrev_b32 v7, 11, v7")
        I("v_lshl_add_u32 v6, v6, 3, v7")
        I("v_mul_u32_u24 v7, 10, v7")
        I("v_sub_u32 v7, v5, v7")
        I("v_mul_u32_u24 v6, 1280, v6")
        I("v_lshl_add_u32 v6, v7, 4, v6")
        I(f"v_add_u32 v6, s{S_N0B}, v6")
        if i % 4:
            I(f"v_subrev_u32 v6, {1024*(i%4)}, v6")
        I("v_cmp_gt_u32 vcc, 80, v5")
        I("v_mov_b32 v7, 0x7f000000")
        I("s_nop 1")
        I(f"v_cndmask_b32 v{vB+i}, v7, v6, vcc")
    I("v_lshrrev_b32 v5, 2, v3")
    I("v_mul_u32_u24 v5, 10, v5")
    I("v_mul_u32_u24 v6, 88, v4")
    I("v_add_u32 v5, v5, v6")
    I("v_and_b32 v6, 3, v2")
    I("v_lshrrev_b32 v7, 1, v6")
    I("v_add_u32 v5, v5, v7")
    I("v_lshlrev_b32 v5, 4, v5")
    I("v_and_b32 v6, 1, v6")
    I("v_lshl_add_u32 v5, v6, 3, v5")
    I(f"s_mul_i32 s{S_LB}, s{S_W_}, {3*BUF}")
    I(f"v_add_u32 v{vR}, s{S_LB}, v5")
    I(f"s_lshl_b32 s{T0}, s{S_W_}, 4")
    I(f"s_add_u32 s{T0}, s{T0}, s{S_M0_}")
    I("v_lshrrev_b32 v5, 2, v2")
    I(f"v_add_u32 v5, s{T0}, v5")
    I("v_mul_u32_u24 v5, 1280, v5")
    I("v_and_b32 v6, 3, v2")
    I("v_mul_u32_u24 v6, 40, v6")
    I("v_add_u32 v5, v5, v6")
    I(f"v_add_u32 v{XR+10}, s{S_N0B}, v5")
    for i in range(5):
        I(f"buffer_load_dwordx2 v[{XR+2*i}:{XR+2*i+1}], v{XR+10}, s[{SRD_X}:{SRD_X+3}], 0 offen offset:{8*i}")
    I(f"s_mov_b32 s{S_C}, s{S_W_}")

    def issue_chunk(slot):
        I(f"s_cmp_lt_u32 s{S_C}, 10")
        I(f"s_cselect_b32 s{SRD_B}, s{P_WO}, s{P_WD}")
        I(f"s_cselect_b32 s{SRD_B+1}, s{P_WO+1}, s{P_WD+1}")
        I(f"s_cselect_b32 s{SRD_B+2}, {D*D*2}, s59")
        I(f"s_cselect_b32 s{T0}, 0, 10")
        I(f"s_and_b32 s{SRD_B+1}, s{SRD_B+1}, 0xffff")
        I(f"s_sub_u32 s{T0}, s{S_C}, s{T0}")
        I(f"s_mul_i32 s{S_BG_}, s{T0}, {64*1280}")
        I(f"s_lshl_b32 s{S_AG_}, s{S_C}, 7")
        I(f"s_cmp_lt_u32 s{S_C}, 34")
        I(f"s_cselect_b32 s{S_AG_}, s{S_AG_}, 0x40000000")
        for i in range(11):
            if i % 4 == 0:
                I(f"s_add_u32 m0, s{S_LB}, {slot*BUF + i*1024}")
                I("s_nop 0")
            I(f"buffer_load_dwordx4 v{vB+i}, s[{SRD_B}:{SRD_B+3}], s{S_BG_} offen offset:{(i%4)*1024} lds")
        for ks in range(2):
            for rt in range(4):
                r = AF[slot] + (ks * 4 + rt) * 4
                I(f"buffer_load_dwordx4 v[{r}:{r+3}], v{vA+rt}, s[{SRD_A}:{SRD_A+3}], s{S_AG_} offen offset:{ks*64}")
        I(f"s_add_u32 s{S_C}, s{S_C}, 4")

    issue_chunk(0)
    issue_chunk(1)
    for r in range(ACC, ACC + 80):
        I(f"v_mov_b32 v{r}, 0")
    I(f"s_mov_b32 s{T2}, 0")
    L("k2_loop")
    for slot in range(3):
        issue_chunk((slot + 2) % 3)
        I("s_waitcnt vmcnt(38)")
        for ks in range(2):
            for ct in range(5):
                off = slot * BUF + ks * 352 * 16 + ct * 32
                r = WFR + 4 * ct
                I(f"ds_read_b64_tr_b16 v[{r}:{r+1}], v{vR} offset:{off}")
                I(f"ds_read_b64_tr_b16 v[{r+2}:{r+3}], v{vR} offset:{off + 640}")
            for ct in range(5):
                I(f"s_waitcnt lgkmcnt({2*(4-ct)})")
                for rt in range(4):
                    a = ACC + (rt * 5 + ct) * 4
                    w = WFR + 4 * ct
                    x = AF[slot] + (ks * 4 + rt) * 4
                    I(f"v_mfma_f32_16x16x32_bf16 v[{a}:{a+3}], v[{w}:{w+3}], v[{x}:{x+3}], v[{a}:{a+3}]")
    I(f"s_add_u32 s{T2}, s{T2}, 1")
    I(f"s_cmp_lt_u32 s{T2}, 3")
    I("s_cbranch_scc1 k2_loop")
    I("s_waitcnt vmcnt(0)")
    I("s_barrier")
    RS = 336
    I(f"s_mul_i32 s{T0}, s{S_W_}, {64*RS}")
    I(f"v_mul_u32_u24 v5, {RS}, v3")
    I("v_lshl_add_u32 v5, v4, 4, v5")
    I(f"v_add_u32 v5, s{T0}, v5")
    I("s_nop 4")
    for rt in range(4):
        for ct in range(5):
            a = ACC + (rt * 5 + ct) * 4
            I(f"ds_write_b128 v5, v[{a}:{a+3}] offset:{rt*16*RS + ct*64}")
    I("s_waitcnt lgkmcnt(0)")
    I("s_barrier")
    I(f"s_mul_i32 s{T0}, s{S_W_}, {16*RS}")
    I("v_lshrrev_b32 v5, 2, v2")
    I(f"v_mul_u32_u24 v5, {RS}, v5")
    I("v_and_b32 v6, 3, v2")
    I("v_mul_u32_u24 v6, 80, v6")
    I("v_add_u32 v5, v5, v6")
    I(f"v_add_u32 v5, s{T0}, v5")
    for p in range(4):
        for i in range(5):
            r = 8 + p * 20 + i * 4
            I(f"ds_read_b128 v[{r}:{r+3}], v5 offset:{p*64*RS + i*16}")
    I("s_waitcnt lgkmcnt(0)")
    for i in range(20):
        I(f"v_add_f32 v{8+i}, v{8+i}, v{28+i}")
        I(f"v_add_f32 v{48+i}, v{48+i}, v{68+i}")
    for i in range(20):
        I(f"v_add_f32 v{8+i}, v{8+i}, v{48+i}")
    for i in range(10):
        I(f"v_lshlrev_b32 v6, 16, v{XR+i}")
        I(f"v_and_b32 v7, 0xffff0000, v{XR+i}")
        I(f"v_add_f32 v{8+2*i}, v{8+2*i}, v6")
        I(f"v_add_f32 v{9+2*i}, v{9+2*i}, v7")
        I(f"v_cvt_pk_bf16_f32 v{XR+i}, v{8+2*i}, v{9+2*i}")
    for i in range(5):
        I(f"buffer_store_dwordx2 v[{XR+2*i}:{XR+2*i+1}], v{XR+10}, s[{SRD_O}:{SRD_O+3}], 0 offen offset:{8*i}")
    L("k2_done")
    I("s_endpgm")
    kd(name, 240, 64)


def header():
    ref = open(f"cdna_kernels/{NAME}.s.ref").read().splitlines()
    for line in ref:
        if line.startswith("; @launch"):
            break
        e(line)
    e("; @launch kernel=ln_kernel grid=(256,1,1) block=(512,1,1) lds=0")
    e("; @launch kernel=gemm1_kernel grid=(256,1,1) block=(512,1,1) lds=147456")
    e("; @launch kernel=gemm2_kernel grid=(256,1,1) block=(256,1,1) lds=135168")
    e('.amdgcn_target "amdgcn-amd-amdhsa--gfx950"')
    e(".text")


def selfcheck():
    for pos in range(768):
        assert (pos * 2731) >> 16 == pos // 24
    for pos in range(704):
        assert (pos * 745) >> 16 == pos // 88
    for rem in range(88):
        assert (rem * 205) >> 11 == rem // 10
    for j in range(32):
        assert (j * 26) >> 8 == j // 10
    for t in range(15):
        assert (t * 52) >> 8 == t // 5


selfcheck()
header()
gen_k0()
gen_k1()
gen_k2()
path = f"cdna_kernels/{NAME}.s"
for a in sys.argv[1:]:
    if a.startswith("-o"):
        path = a[2:]
open(path, "w").write("\n".join(out) + "\n")
print("wrote", path, len(out), "lines")
```

```python
import sys

NAME = "parallel_sum__sliding_local_dilated__glu_gated_glu__prompt"

S = 2048
D = 640
F = 1536
KA2 = D + F
XN_BYTES = S * D * 2
A2_OFF = XN_BYTES
A2_ROW = KA2 * 2
A2_BYTES = S * A2_ROW

OPT = dict(prefetch=1, round_gu=1, stamp=0)
for a in sys.argv[1:]:
    if "=" in a:
        k, v = a.split("=")
        OPT[k] = int(v)

out = []


def e(s=""):
    out.append(s)


def I(s):
    out.append("    " + s)


def L(s):
    out.append(s + ":")


def srd(dst, lo, hi, nbytes, add=0):
    if add:
        I(f"s_add_u32 s{dst}, s{lo}, {add}")
        I(f"s_addc_u32 s{dst+1}, s{hi}, 0")
        I(f"s_and_b32 s{dst+1}, s{dst+1}, 0xffff")
    else:
        I(f"s_mov_b32 s{dst}, s{lo}")
        I(f"s_and_b32 s{dst+1}, s{hi}, 0xffff")
    I(f"s_mov_b32 s{dst+2}, {nbytes}")
    I(f"s_mov_b32 s{dst+3}, 0x20000")


STAMPS = 0
def stamp_init():
    global STAMPS
    STAMPS = 0
    if OPT["stamp"]:
        I("s_memrealtime s[96:97]")

def stamp():
    global STAMPS
    if OPT["stamp"]:
        I(f"s_memtime s[{80+2*STAMPS}:{81+2*STAMPS}]")
        STAMPS += 1

def stamp_flush(wgsel, base=0):
    if not OPT["stamp"]:
        return
    I("s_memrealtime s[98:99]")
    I("s_waitcnt lgkmcnt(0)")
    lab = f"st_skip_{len(out)}"
    I(f"s_cmp_lg_u32 s2, {wgsel}")
    I(f"s_cbranch_scc1 {lab}")
    I("v_cmp_eq_u32 vcc, 0, v0")
    I("s_and_saveexec_b64 s[100:101], vcc")
    I(f"s_cbranch_execz {lab}")
    srd(76, P_DBG, P_DBG + 1, 256)
    I("v_mov_b32 v1, 0")
    regs = [96, 98] + [80 + 2 * i for i in range(STAMPS)]
    for i, r in enumerate(regs):
        I(f"v_mov_b32 v2, s{r}")
        I(f"buffer_store_dword v2, v1, s[76:79], 0 offen offset:{base+4*i}")
    L(lab)


def kd(name, vgpr, sgpr):
    if OPT["stamp"]:
        sgpr = 102
    acc = (vgpr + 3) // 4 * 4
    e('.section .rodata,"a"')
    e(".p2align 6")
    e(f".amdhsa_kernel {name}")
    e(f"  .amdhsa_next_free_vgpr {vgpr}")
    e(f"  .amdhsa_next_free_sgpr {sgpr}")
    e(f"  .amdhsa_accum_offset {acc}")
    e("  .amdhsa_group_segment_fixed_size 0")
    e("  .amdhsa_kernarg_size 80")
    e("  .amdhsa_user_sgpr_count 2")
    e("  .amdhsa_user_sgpr_kernarg_segment_ptr 1")
    e("  .amdhsa_system_sgpr_workgroup_id_x 1")
    e(".end_amdhsa_kernel")
    e(".text")


def kstart(name):
    e(f".globl {name}")
    e(".p2align 8")
    e(f".type {name},@function")
    L(name)


P_X, P_WQKV, P_WO, P_BX, P_WG, P_WU, P_WD, P_OUT, P_DBG, P_WS = 16, 18, 20, 22, 24, 26, 28, 30, 32, 34


def load_kernargs():
    I("s_load_dwordx16 s[16:31], s[0:1], 0")
    I("s_load_dwordx4 s[32:35], s[0:1], 64")


def wave_allreduce(v, t, sbase):
    for ctrl in ("quad_perm:[1,0,3,2]", "quad_perm:[2,3,0,1]", "row_half_mirror", "row_mirror"):
        I("s_nop 1")
        I(f"v_add_f32_dpp v{v}, v{v}, v{v} {ctrl} row_mask:0xf bank_mask:0xf")
    I("s_nop 1")
    for i in range(4):
        I(f"v_readlane_b32 s{sbase+i}, v{v}, {16*i}")
    I("s_nop 1")
    I(f"v_mov_b32 v{v}, s{sbase}")
    I(f"v_add_f32 v{v}, s{sbase+1}, v{v}")
    I(f"v_add_f32 v{v}, s{sbase+2}, v{v}")
    I(f"v_add_f32 v{v}, s{sbase+3}, v{v}")


def gen_k0():
    name = "ln_kernel"
    kstart(name)
    I("s_cmp_ge_u32 s2, 256")
    I("s_cbranch_scc1 ln_done")
    load_kernargs()
    I("v_lshrrev_b32 v1, 6, v0")
    I("v_and_b32 v2, 63, v0")
    I("s_lshl_b32 s3, s2, 3")
    I("v_add_u32 v1, s3, v1")
    I("v_mul_u32_u24 v3, 1280, v1")
    I("v_lshl_add_u32 v3, v2, 2, v3")
    I("v_lshlrev_b32 v9, 10, v1")
    I("v_lshl_add_u32 v9, v2, 4, v9")
    I("s_waitcnt lgkmcnt(0)")
    srd(36, P_X, P_X + 1, XN_BYTES)
    srd(40, P_WS, P_WS + 1, XN_BYTES)
    for i in range(5):
        I(f"buffer_load_dword v{4+i}, v3, s[36:39], 0 offen offset:{256*i}")
    npre = 0
    if OPT["prefetch"]:
        srd(44, P_WQKV, P_WQKV + 1, D * 3 * D * 2)
        srd(48, P_WG, P_WG + 1, D * F * 2)
        srd(52, P_WU, P_WU + 1, D * F * 2)
        srd(56, P_WD, P_WD + 1, D * F * 2)
        srd(60, P_WO, P_WO + 1, D * D * 2)
        I("s_mov_b32 s64, 0x200000")
        I("buffer_load_dwordx4 v[40:43], v9, s[44:47], 0 offen")
        I("buffer_load_dwordx4 v[44:47], v9, s[44:47], s64 offen")
        I("buffer_load_dwordx4 v[48:51], v9, s[48:51], 0 offen")
        I("buffer_load_dwordx4 v[52:55], v9, s[52:55], 0 offen")
        I("buffer_load_dwordx4 v[56:59], v9, s[56:59], 0 offen")
        I("buffer_load_dwordx4 v[60:63], v9, s[60:63], 0 offen")
        npre = 6
    I(f"s_waitcnt vmcnt({npre})")
    for i in range(5):
        I(f"v_lshlrev_b32 v{10+2*i}, 16, v{4+i}")
        I(f"v_and_b32 v{11+2*i}, 0xffff0000, v{4+i}")
    I("v_add_f32 v20, v10, v11")
    for i in range(2, 10):
        I(f"v_add_f32 v20, v20, v{10+i}")
    wave_allreduce(20, 21, 4)
    I("v_mul_f32 v20, 0x3acccccd, v20")
    I("v_sub_f32 v22, v10, v20")
    I("v_mul_f32 v21, v22, v22")
    for i in range(1, 10):
        I(f"v_sub_f32 v22, v{10+i}, v20")
        I("v_fmac_f32 v21, v22, v22")
    wave_allreduce(21, 22, 4)
    I("v_mul_f32 v21, 0x3acccccd, v21")
    I("v_cvt_pk_bf16_f32 v22, v20, v21")
    I("v_lshlrev_b32 v20, 16, v22")
    I("v_and_b32 v21, 0xffff0000, v22")
    I("v_add_f32 v21, 0x3727c5ac, v21")
    I("v_cvt_pk_bf16_f32 v21, v21, v21")
    I("v_lshlrev_b32 v21, 16, v21")
    I("v_sqrt_f32 v21, v21")
    I("s_nop 0")
    I("v_cvt_pk_bf16_f32 v21, v21, v21")
    I("v_lshlrev_b32 v21, 16, v21")
    I("v_rcp_f32 v21, v21")
    I("s_nop 0")
    for i in range(5):
        a, b = 10 + 2 * i, 11 + 2 * i
        I(f"v_sub_f32 v{a}, v{a}, v20")
        I(f"v_sub_f32 v{b}, v{b}, v20")
        I(f"v_cvt_pk_bf16_f32 v22, v{a}, v{b}")
        I(f"v_lshlrev_b32 v{a}, 16, v22")
        I(f"v_and_b32 v{b}, 0xffff0000, v22")
        I(f"v_mul_f32 v{a}, v{a}, v21")
        I(f"v_mul_f32 v{b}, v{b}, v21")
        I(f"v_cvt_pk_bf16_f32 v{4+i}, v{a}, v{b}")
        I(f"buffer_store_dword v{4+i}, v3, s[40:43], 0 offen offset:{256*i}")
    L("ln_done")
    I("s_endpgm")
    kd(name, 64, 72)


S_CB, S_RB, S_TYPE, S_M0, S_W = 4, 5, 6, 7, 8
S_AR, S_ARN, S_BR, S_BW = 9, 10, 11, 12
S_AG, S_BG = 13, 14
S_IT = 15
SRD_XN, SRD_A2, SRD_W = 40, 44, 48
S_T0, S_T1, S_T2, S_T3 = 52, 53, 54, 55
S_MA, S_MB, S_MH = 56, 57, 58
S_TILES = 59
S_SLOT = 60
S_SEL_LO, S_SEL_HI, S_SCALE, S_L2E = 70, 71, 72, 73


class K1Cfg:
    pass


def k1_mainloop(c, tag):
    a = len(c.a_dma)
    b = len(c.b_dma)

    def dma_a():
        last = None
        for (v, sm, off) in c.a_dma:
            if sm != last:
                I(f"s_add_u32 m0, s{S_T3}, s{sm}")
                I("s_nop 0")
                last = sm
            I(f"buffer_load_dwordx4 v{v}, s[{SRD_XN}:{SRD_XN+3}], s{S_AG} offen offset:{off} lds")

    def adv_a():
        I(f"s_add_u32 s{S_AG}, s{S_AG}, 128")
        I(f"s_cmp_ge_u32 s{S_AG}, 1280")
        I(f"s_cselect_b32 s{S_AG}, 0x40000000, s{S_AG}")

    def dma_b():
        last = None
        for (v, sm, off) in c.b_dma:
            if sm != last:
                I(f"s_add_u32 m0, s{S_T3}, s{sm}")
                I("s_nop 0")
                last = sm
            I(f"buffer_load_dwordx4 v{v}, s[{SRD_W}:{SRD_W+3}], s{S_BG} offen offset:{off} lds")

    def adv_b():
        I(f"s_add_u32 s{S_BG}, s{S_BG}, {c.bstage_g}")

    def ring_next(sreg, size, n, base):
        I(f"s_add_u32 s{sreg}, s{sreg}, {size}")
        I(f"s_cmp_ge_u32 s{sreg}, {base + size * n}")
        I(f"s_cselect_b32 s{sreg}, {base}, s{sreg}")

    def frag_reads(fs, khalf, s_a, s_b):
        pre = []
        for (dyn, st0, st1) in c.xaddr:
            pre.append(f"v_add_u32 v{dyn}, s{s_a}, v{st1 if khalf else st0}")
        for (dyn, st) in c.waddr:
            pre.append(f"v_add_u32 v{dyn}, s{s_b}, v{st}")
        rd = []
        for i, (ai, off) in enumerate(c.xfrag):
            r = c.XF[fs] + 4 * i
            rd.append(f"ds_read_b128 v[{r}:{r+3}], v{c.xaddr[ai][0]} offset:{off}")
        for i, (ai, off) in enumerate(c.wfrag):
            r = c.WF[fs] + 4 * i
            rd.append(f"ds_read_b64_tr_b16 v[{r}:{r+1}], v{c.waddr[ai][0]} offset:{off}")
            rd.append(f"ds_read_b64_tr_b16 v[{r+2}:{r+3}], v{c.waddr[ai][0]} offset:{off + c.wrow4}")
        return pre, rd

    def mfmas(fs):
        res = []
        for (acc, xi, wi) in c.tiles:
            x = c.XF[fs] + 4 * xi
            w = c.WF[fs] + 4 * wi
            res.append(f"v_mfma_f32_16x16x32_bf16 v[{acc}:{acc+3}], v[{w}:{w+3}], v[{x}:{x+3}], v[{acc}:{acc+3}]")
        return res

    global STAMPS
    STAMPS = 1
    stamp()
    I(f"s_mov_b32 s{S_AG}, 0")
    I(f"s_mov_b32 s{S_BG}, 0")
    seq = ["A0", "B0", "A1", "B1", "B2", "A2", "B3"]
    for it in seq:
        n = int(it[1])
        if it[0] == "A":
            I(f"s_mov_b32 s{S_T3}, {c.abase + n * c.asz}")
            dma_a()
            adv_a()
        else:
            I(f"s_mov_b32 s{S_T3}, {c.bbase + n * c.bsz}")
            dma_b()
            adv_b()
    for r in range(c.acc0, c.acc0 + c.nacc):
        I(f"v_mov_b32 v{r}, 0")
    I(f"s_mov_b32 s{S_AR}, {c.abase}")
    I(f"s_mov_b32 s{S_ARN}, {c.abase + c.asz}")
    I(f"s_mov_b32 s{S_BW}, {c.bbase}")
    I(f"s_mov_b32 s{S_BR}, {c.bbase + c.bsz}")
    I(f"s_waitcnt vmcnt({3*b + 2*a})")
    I("s_barrier")
    stamp()
    pre, rd = frag_reads(0, 0, S_AR, S_BW)
    for x in pre + rd:
        I(x)
    I(f"s_mov_b32 s{S_IT}, 0")
    I("s_waitcnt lgkmcnt(0)")
    L(f"{tag}_loop")
    for half in range(2):
        I(f"s_waitcnt vmcnt({2*b + a})")
        I("s_barrier")
        if half == 1:
            I(f"s_mov_b32 s{S_T3}, s{S_AR}")
            dma_a()
            adv_a()
        I(f"s_mov_b32 s{S_T3}, s{S_BW}")
        dma_b()
        adv_b()
        if half == 0:
            pre, rd = frag_reads(1, 1, S_AR, S_BR)
        else:
            pre, rd = frag_reads(0, 0, S_ARN, S_BR)
        for x in pre:
            I(x)
        mf = mfmas(half)
        for i, m in enumerate(mf):
            I(m)
            if i < len(rd):
                I(rd[i])
        for x in rd[len(mf):]:
            I(x)
        I(f"s_mov_b32 s{S_BW}, s{S_BR}")
        ring_next(S_BR, c.bsz, 4, c.bbase)
        if half == 1:
            I(f"s_mov_b32 s{S_AR}, s{S_ARN}")
            ring_next(S_ARN, c.asz, 3, c.abase)
        I("s_waitcnt lgkmcnt(0)")
    I(f"s_add_u32 s{S_IT}, s{S_IT}, 1")
    I(f"s_cmp_lt_u32 s{S_IT}, 10")
    I(f"s_cbranch_scc1 {tag}_loop")
    stamp()
    I("s_waitcnt vmcnt(0)")
    I("s_barrier")
    stamp()


def bf16_round_pair(a, b, t):
    I(f"v_cvt_pk_bf16_f32 v{t}, v{a}, v{b}")
    I(f"v_lshlrev_b32 v{a}, 16, v{t}")
    I(f"v_and_b32 v{b}, 0xffff0000, v{t}")


def gen_k1():
    name = "gemm1_kernel"
    kstart(name)
    I("s_cmp_ge_u32 s2, 256")
    I("s_cbranch_scc1 k1_done")
    stamp_init()
    stamp()
    load_kernargs()
    I(f"s_and_b32 s{S_CB}, s2, 7")
    I(f"s_lshr_b32 s{S_RB}, s2, 3")
    I(f"s_and_b32 s{S_TYPE}, s{S_RB}, 1")
    I(f"s_lshr_b32 s{S_RB}, s{S_RB}, 1")
    I(f"s_lshl_b32 s{S_M0}, s{S_RB}, 7")
    I("v_lshrrev_b32 v1, 6, v0")
    I("v_and_b32 v2, 63, v0")
    I(f"v_readfirstlane_b32 s{S_W}, v1")
    I("v_and_b32 v3, 15, v2")
    I("v_lshrrev_b32 v4, 4, v2")
    I("s_waitcnt lgkmcnt(0)")
    srd(SRD_XN, P_WS, P_WS + 1, XN_BYTES)
    srd(SRD_A2, P_WS, P_WS + 1, A2_BYTES, add=A2_OFF)
    I(f"s_cmp_eq_u32 s{S_TYPE}, 0")
    I("s_cbranch_scc1 k1_qkv")

    c = K1Cfg()
    c.asz, c.bsz, c.abase, c.bbase = 16384, 24576, 0, 49152
    c.bstage_g = 32 * F * 2
    c.wrow4 = 4 * 24 * 16
    c.acc0, c.nacc = 128, 96
    c.XF = [8, 48]
    c.WF = [24, 64]
    vX0, vX1, vW, vXa, vWa, vAd, vBd = 88, 89, 90, 93, 94, 97, 99
    I(f"s_cmp_lt_u32 s{S_W}, 4")
    I(f"s_cselect_b32 s{SRD_W}, s{P_WG}, s{P_WU}")
    I(f"s_cselect_b32 s{SRD_W+1}, s{P_WG+1}, s{P_WU+1}")
    I(f"s_and_b32 s{SRD_W+1}, s{SRD_W+1}, 0xffff")
    I(f"s_mov_b32 s{SRD_W+2}, {D*F*2}")
    I(f"s_mov_b32 s{SRD_W+3}, 0x20000")
    I(f"s_lshl_b32 s{S_T0}, s{S_W}, 4")
    I(f"s_add_u32 s{S_T0}, s{S_T0}, s{S_M0}")
    I("v_lshrrev_b32 v5, 3, v2")
    I(f"v_add_u32 v5, s{S_T0}, v5")
    I("v_mul_u32_u24 v5, 1280, v5")
    I("v_and_b32 v6, 7, v2")
    I("v_xor_b32 v7, v6, v4")
    I(f"v_lshl_add_u32 v{vAd}, v7, 4, v5")
    I("v_or_b32 v7, 4, v4")
    I("v_xor_b32 v7, v6, v7")
    I(f"v_lshl_add_u32 v{vAd+1}, v7, 4, v5")
    I(f"v_add_u32 v{vAd+1}, {8*1280 - 1024}, v{vAd+1}")
    I(f"s_lshl_b32 s{S_MA}, s{S_W}, 11")
    c.a_dma = [(vAd, S_MA, 0), (vAd + 1, S_MA, 1024)]
    I(f"s_and_b32 s{S_T0}, s{S_W}, 3")
    I(f"s_mul_i32 s{S_T1}, s{S_T0}, 192")
    I(f"s_mul_i32 s{S_T2}, s{S_CB}, 384")
    for ii in range(3):
        I(f"v_add_u32 v5, s{S_T1}, v2")
        if ii:
            I(f"v_add_u32 v5, {64*ii}, v5")
        I("v_mul_u32_u24 v6, 2731, v5")
        I("v_lshrrev_b32 v6, 16, v6")
        I("v_mul_u32_u24 v7, 24, v6")
        I("v_sub_u32 v7, v5, v7")
        I("v_and_b32 v1, 2, v6")
        I("v_lshrrev_b32 v5, 1, v6")
        I("v_and_b32 v5, 4, v5")
        I("v_or_b32 v1, v1, v5")
        I("v_xor_b32 v7, v7, v1")
        I("v_mul_u32_u24 v6, 3072, v6")
        I("v_lshl_add_u32 v6, v7, 4, v6")
        I(f"v_add_u32 v{vBd+ii}, s{S_T2}, v6")
        if ii:
            I(f"v_subrev_u32 v{vBd+ii}, {1024*ii}, v{vBd+ii}")
    I(f"s_lshr_b32 s{S_T1}, s{S_W}, 2")
    I(f"s_mul_i32 s{S_MB}, s{S_T1}, 12288")
    I(f"s_mul_i32 s{S_T1}, s{S_T0}, 3072")
    I(f"s_add_u32 s{S_MB}, s{S_MB}, s{S_T1}")
    c.b_dma = [(vBd + ii, S_MB, 1024 * ii) for ii in range(3)]
    I(f"s_lshr_b32 s{S_T1}, s{S_W}, 2")
    I(f"s_lshl_b32 s{S_T1}, s{S_T1}, 13")
    I("v_lshrrev_b32 v5, 1, v3")
    I("v_xor_b32 v5, v5, v4")
    I("v_lshlrev_b32 v5, 4, v5")
    I("v_lshl_add_u32 v5, v3, 7, v5")
    I(f"v_add_u32 v{vX0}, s{S_T1}, v5")
    I(f"v_xor_b32 v{vX1}, 64, v{vX0}")
    c.xaddr = [(vXa, vX0, vX1)]
    c.xfrag = [(0, rt * 2048) for rt in range(4)]
    I("v_lshrrev_b32 v5, 2, v3")
    I("v_and_b32 v6, 3, v2")
    I("v_lshl_add_u32 v7, v4, 3, v5")
    I("v_mul_u32_u24 v7, 384, v7")
    I("v_and_b32 v1, 1, v6")
    I("v_lshl_add_u32 v7, v1, 3, v7")
    I("v_and_b32 v5, 2, v5")
    I("v_and_b32 v1, 1, v4")
    I("v_lshl_or_b32 v5, v1, 2, v5")
    I("v_lshrrev_b32 v6, 1, v6")
    I(f"s_mul_i32 s{S_T1}, s{S_T0}, 6")
    I(f"v_add_u32 v6, s{S_T1}, v6")
    for ct in range(3):
        I(f"v_add_u32 v1, {2*ct}, v6")
        I("v_xor_b32 v1, v1, v5")
        I(f"v_lshl_add_u32 v{vW+ct}, v1, 4, v7")
    c.waddr = [(vWa + ct, vW + ct) for ct in range(3)]
    c.wfrag = [(ct, 0) for ct in range(3)] + [(ct, 12288) for ct in range(3)]
    c.tiles = [(c.acc0 + (rt * 6 + ct) * 4, rt, ct) for rt in range(4) for ct in range(6)]
    k1_mainloop(c, "glu")
    I("s_nop 7")
    I(f"s_mov_b32 s{S_L2E}, 0xbfb8aa3b")
    I(f"s_lshr_b32 s{S_T1}, s{S_W}, 2")
    I(f"s_lshl_b32 s{S_T1}, s{S_T1}, 6")
    I(f"s_add_u32 s{S_T1}, s{S_T1}, s{S_M0}")
    I(f"v_add_u32 v5, s{S_T1}, v3")
    I(f"v_mul_u32_u24 v5, {A2_ROW}, v5")
    I(f"s_mul_i32 s{S_T2}, s{S_CB}, 384")
    I(f"s_mul_i32 s{S_T1}, s{S_T0}, 96")
    I(f"s_add_u32 s{S_T2}, s{S_T2}, s{S_T1}")
    I(f"s_add_u32 s{S_T2}, s{S_T2}, 1280")
    I(f"v_lshl_add_u32 v5, v4, 3, v5")
    I(f"v_add_u32 v5, s{S_T2}, v5")
    for rt in range(4):
        for ct in range(3):
            g = c.acc0 + (rt * 6 + ct) * 4
            u = c.acc0 + (rt * 6 + 3 + ct) * 4
            if OPT["round_gu"]:
                bf16_round_pair(g, g + 1, 8)
                bf16_round_pair(g + 2, g + 3, 9)
                bf16_round_pair(u, u + 1, 10)
                bf16_round_pair(u + 2, u + 3, 11)
            for r in range(4):
                I(f"v_mul_f32 v{g+r}, s{S_L2E}, v{g+r}")
            for r in range(4):
                I(f"v_exp_f32 v{g+r}, v{g+r}")
            I("s_nop 0")
            for r in range(4):
                I(f"v_add_f32 v{g+r}, 1.0, v{g+r}")
            for r in range(4):
                I(f"v_rcp_f32 v{g+r}, v{g+r}")
            I("s_nop 0")
            if OPT["round_gu"]:
                bf16_round_pair(g, g + 1, 8)
                bf16_round_pair(g + 2, g + 3, 9)
            for r in range(4):
                I(f"v_mul_f32 v{g+r}, v{g+r}, v{u+r}")
            I(f"v_cvt_pk_bf16_f32 v{u}, v{g}, v{g+1}")
            I(f"v_cvt_pk_bf16_f32 v{u+1}, v{g+2}, v{g+3}")
            I(f"buffer_store_dwordx2 v[{u}:{u+1}], v5, s[{SRD_A2}:{SRD_A2+3}], 0 offen offset:{ct*32}")
        if rt < 3:
            I(f"v_add_u32 v5, {16*A2_ROW}, v5")
    stamp()
    I("s_waitcnt vmcnt(0)")
    stamp()
    stamp_flush(8, 64)
    I("s_endpgm")

    L("k1_qkv")
    c = K1Cfg()
    c.asz, c.bsz, c.abase, c.bbase = 18432, 16384, 0, 55296
    c.bstage_g = 32 * 3 * D * 2
    c.wrow4 = 4 * 32 * 16
    c.acc0, c.nacc = 128, 72
    c.XF = [8, 52]
    c.WF = [20, 64]
    vXb0, vXb1, vXm0, vXm1, vW, vXma, vXha, vWa, vAd, vBd = 96, 97, 98, 99, 100, 108, 109, 110, 118, 121
    srd(SRD_W, P_WQKV, P_WQKV + 1, D * 3 * D * 2)
    tl = []
    for w in range(8):
        wr, wc = w >> 1, w & 1
        if wc == 0:
            base = [0, 1, 2, 3, 4, 5, 6, 7]
            first = [5 + min(wr, 2)]
        else:
            base = [8, 9, 10, 11, 12, 13, 14, 14]
            first = [8 + 2 * wr, 9 + 2 * wr] if wr < 3 else [14, 14]
        rest = list(base)
        for f_ in first:
            rest.remove(f_)
        lst = first + rest
        assert len(lst) == 8
        tl.append(lst)
    halo = set()
    for w in range(8):
        for q in range(2):
            if tl[w][q] >= 5:
                halo.add(tl[w][q])
    assert halo == set(range(5, 15)), halo
    I(f"s_mov_b32 s{S_TILES}, 0")
    for w in range(8):
        val = sum(t << (4 * i) for i, t in enumerate(tl[w]))
        I(f"s_cmp_eq_u32 s{S_W}, {w}")
        I(f"s_cselect_b32 s{S_TILES}, {val:#x}, s{S_TILES}")
    I(f"s_lshl_b32 s{S_T0}, s{S_W}, 4")
    I(f"s_add_u32 s{S_T0}, s{S_T0}, s{S_M0}")
    I("v_lshrrev_b32 v1, 3, v2")
    I(f"v_add_u32 v5, s{S_T0}, v1")
    I("v_mul_u32_u24 v5, 1280, v5")
    I("v_and_b32 v6, 7, v2")
    I("v_xor_b32 v7, v6, v4")
    I(f"v_lshl_add_u32 v{vAd}, v7, 4, v5")
    I("v_or_b32 v7, 4, v4")
    I("v_xor_b32 v7, v6, v7")
    I(f"v_lshl_add_u32 v{vAd+1}, v7, 4, v5")
    I(f"v_add_u32 v{vAd+1}, {8*1280 - 1024}, v{vAd+1}")
    I(f"s_and_b32 s{S_T1}, s{S_W}, 1")
    I(f"s_lshl_b32 s{S_T2}, s{S_T1}, 3")
    I(f"s_add_u32 s{S_T2}, s{S_T2}, s{S_M0}")
    I(f"s_sub_u32 s{S_T2}, s{S_T2}, 16")
    I(f"v_add_u32 v5, s{S_T2}, v1")
    I(f"s_mov_b32 s{S_T2}, 1280")
    I(f"v_mul_lo_u32 v5, v5, s{S_T2}")
    I(f"s_lshl_b32 s{S_T2}, s{S_T1}, 2")
    I(f"v_or_b32 v7, s{S_T2}, v4")
    I("v_xor_b32 v7, v6, v7")
    I(f"v_lshl_add_u32 v{vAd+2}, v7, 4, v5")
    I(f"s_lshl_b32 s{S_MA}, s{S_W}, 11")
    I(f"s_add_u32 s{S_MA}, s{S_MA}, 2048")
    I(f"s_lshl_b32 s{S_MH}, s{S_T1}, 10")
    c.a_dma = [(vAd, S_MA, 0), (vAd + 1, S_MA, 1024), (vAd + 2, S_MH, 0)]
    I(f"s_mul_i32 s{S_T2}, s{S_CB}, 160")
    I("v_lshrrev_b32 v1, 5, v2")
    I(f"s_lshl_b32 s{S_T0}, s{S_W}, 2")
    for ii in range(2):
        I(f"v_add_u32 v5, s{S_T0}, v1")
        if ii:
            I("v_add_u32 v5, 2, v5")
        I("v_and_b32 v6, 3, v5")
        I("v_lshrrev_b32 v7, 1, v5")
        I("v_and_b32 v7, 4, v7")
        I("v_or_b32 v6, v6, v7")
        I("v_lshlrev_b32 v6, 1, v6")
        I("v_and_b32 v7, 31, v2")
        I("v_xor_b32 v6, v6, v7")
        I("v_mul_u32_u24 v7, 26, v6")
        I("v_lshrrev_b32 v7, 8, v7")
        I("v_mul_u32_u24 v7, 1120, v7")
        I("v_lshl_add_u32 v7, v6, 4, v7")
        I("v_mul_u32_u24 v5, 3840, v5")
        I("v_add_u32 v5, v5, v7")
        I(f"v_add_u32 v5, s{S_T2}, v5")
        if ii:
            I("v_subrev_u32 v5, 1024, v5")
        I("v_cmp_gt_u32 vcc, 30, v6")
        I("v_mov_b32 v7, 0x7f000000")
        I("s_nop 1")
        I(f"v_cndmask_b32 v{vBd+ii}, v7, v5, vcc")
    I(f"s_lshl_b32 s{S_MB}, s{S_W}, 11")
    c.b_dma = [(vBd + ii, S_MB, 1024 * ii) for ii in range(2)]
    I("v_lshrrev_b32 v5, 1, v3")
    I("v_xor_b32 v5, v5, v4")
    I("v_lshlrev_b32 v5, 4, v5")
    I(f"v_lshl_add_u32 v{vXb0}, v3, 7, v5")
    I(f"v_xor_b32 v{vXb1}, 64, v{vXb0}")
    I(f"s_lshr_b32 s{S_T1}, s{S_W}, 1")
    I(f"s_lshl_b32 s{S_T1}, s{S_T1}, 12")
    I(f"s_add_u32 s{S_T1}, s{S_T1}, 2048")
    I(f"v_add_u32 v{vXm0}, s{S_T1}, v{vXb0}")
    I(f"v_add_u32 v{vXm1}, s{S_T1}, v{vXb1}")
    c.xaddr = [(vXma, vXm0, vXm1), (vXha, vXb0, vXb1)]
    c.xfrag = [(0, 0), (0, 2048), (1, 0)]
    I("v_lshrrev_b32 v5, 2, v3")
    I("v_and_b32 v6, 3, v2")
    I("v_lshl_add_u32 v7, v4, 3, v5")
    I("v_lshlrev_b32 v7, 9, v7")
    I("v_and_b32 v1, 1, v6")
    I("v_lshl_add_u32 v7, v1, 3, v7")
    I("v_and_b32 v1, 1, v4")
    I("v_lshl_or_b32 v5, v1, 2, v5")
    I("v_lshlrev_b32 v5, 1, v5")
    I("v_lshrrev_b32 v6, 1, v6")
    for q in range(8):
        I(f"s_lshr_b32 s{S_T1}, s{S_TILES}, {4*q}")
        I(f"s_and_b32 s{S_T1}, s{S_T1}, 15")
        I(f"s_lshl_b32 s{S_T2}, s{S_T1}, 1")
        I(f"v_add_u32 v1, s{S_T2}, v6")
        I("v_xor_b32 v1, v1, v5")
        I(f"v_lshl_add_u32 v{vW+q}, v1, 4, v7")
        I(f"s_mul_i32 s{S_T2}, s{S_T1}, 52")
        I(f"s_lshr_b32 s{S_T2}, s{S_T2}, 8")
        I(f"s_mul_i32 s{S_T0}, s{S_T2}, 5")
        I(f"s_sub_u32 s{S_T0}, s{S_T1}, s{S_T0}")
        I(f"s_lshl_b32 s{S_T0}, s{S_T0}, 5")
        I(f"s_mul_i32 s{S_T2}, s{S_T2}, 24192")
        I(f"s_add_u32 s{S_T0}, s{S_T0}, s{S_T2}")
        I(f"s_sub_u32 s{S_SLOT+q}, s{S_T0}, 2688")
        if q < 2:
            I(f"s_cmp_ge_u32 s{S_T1}, 5")
            I(f"s_cselect_b32 s{S_SLOT+8+q}, s{S_SLOT+q}, 70656")
    c.waddr = [(vWa + q, vW + q) for q in range(8)]
    c.wfrag = [(q, 0) for q in range(8)]
    c.tiles = [(c.acc0 + (q * 2 + rt) * 4, rt, q) for q in range(8) for rt in range(2)]
    c.tiles += [(c.acc0 + (16 + q) * 4, 2, q) for q in range(2)]
    k1_mainloop(c, "qkv")
    I("s_nop 7")
    I(f"s_lshr_b32 s{S_T1}, s{S_W}, 1")
    I(f"s_mul_i32 s{S_T1}, s{S_T1}, {32*168}")
    I(f"s_add_u32 s{S_T1}, s{S_T1}, {16*168}")
    I("v_mul_u32_u24 v5, 168, v3")
    I("v_lshl_add_u32 v5, v4, 3, v5")
    I(f"v_add_u32 v6, s{S_T1}, v5")
    for q in range(8):
        for rt in range(2):
            a = c.acc0 + (q * 2 + rt) * 4
            I(f"v_cvt_pk_bf16_f32 v{a}, v{a}, v{a+1}")
            I(f"v_cvt_pk_bf16_f32 v{a+1}, v{a+2}, v{a+3}")
            I(f"v_add_u32 v7, s{S_SLOT+q}, v6")
            I(f"ds_write_b64 v7, v[{a}:{a+1}] offset:{rt*16*168}")
    for q in range(2):
        a = c.acc0 + (16 + q) * 4
        I(f"v_cvt_pk_bf16_f32 v{a}, v{a}, v{a+1}")
        I(f"v_cvt_pk_bf16_f32 v{a+1}, v{a+2}, v{a+3}")
        I(f"v_add_u32 v7, s{S_SLOT+8+q}, v5")
        I(f"ds_write_b64 v7, v[{a}:{a+1}]")
    I("s_waitcnt lgkmcnt(0)")
    I("s_barrier")
    KOFF, VOFF = 21504, 45696
    I(f"s_and_b32 s{S_T0}, s{S_W}, 1")
    I(f"s_lshl_b32 s{S_T0}, s{S_T0}, 6")
    I(f"v_add_u32 v5, s{S_T0}, v2")
    I(f"v_add_u32 v6, s{S_M0}, v5")
    I("v_mul_u32_u24 v5, 168, v5")
    I(f"s_lshr_b32 s{S_T1}, s{S_W}, 1")
    I(f"s_mul_i32 s{S_T2}, s{S_T1}, 40")
    I(f"v_add_u32 v5, s{S_T2}, v5")
    Q = 8
    KV = 20
    LG = 100
    O = 110
    for i in range(5):
        I(f"ds_read_b64 v[{Q+2*i}:{Q+2*i+1}], v5 offset:{8*i}")
    for wi in range(8):
        for i in range(5):
            off = KOFF + (16 - 2 * wi) * 168 + 8 * i
            I(f"ds_read_b64 v[{KV+10*wi+2*i}:{KV+10*wi+2*i+1}], v5 offset:{off}")
    I(f"s_mov_b32 s{S_SCALE}, 0x3e64f92e")
    I(f"s_mov_b32 s{S_L2E}, 0x3fb8aa3b")
    I(f"s_mov_b32 s{S_SEL_LO}, 0x05040100")
    I(f"s_mov_b32 s{S_SEL_HI}, 0x07060302")
    I("s_waitcnt lgkmcnt(0)")
    for i in range(10):
        for wi in range(8):
            src = "0" if i == 0 else f"v{LG+wi}"
            I(f"v_dot2_f32_bf16 v{LG+wi}, v{Q+i}, v{KV+10*wi+i}, {src}")
    I("s_nop 3")
    for wi in range(8):
        for i in range(5):
            off = VOFF + (16 - 2 * wi) * 168 + 8 * i
            I(f"ds_read_b64 v[{KV+10*wi+2*i}:{KV+10*wi+2*i+1}], v5 offset:{off}")
    for p in range(4):
        a, b = LG + 2 * p, LG + 2 * p + 1
        bf16_round_pair(a, b, 7)
        I(f"v_mul_f32 v{a}, s{S_SCALE}, v{a}")
        I(f"v_mul_f32 v{b}, s{S_SCALE}, v{b}")
        bf16_round_pair(a, b, 7)
    I("v_mov_b32 v7, 0xce6e6b28")
    for wi in range(1, 8):
        I(f"v_cmp_le_u32 vcc, {2*wi}, v6")
        I("s_nop 1")
        I(f"v_cndmask_b32 v{LG+wi}, v7, v{LG+wi}, vcc")
    I(f"v_max3_f32 v7, v{LG}, v{LG+1}, v{LG+2}")
    I(f"v_max3_f32 v7, v7, v{LG+3}, v{LG+4}")
    I(f"v_max3_f32 v7, v7, v{LG+5}, v{LG+6}")
    I(f"v_max_f32 v7, v7, v{LG+7}")
    for wi in range(8):
        I(f"v_sub_f32 v{LG+wi}, v{LG+wi}, v7")
        I(f"v_mul_f32 v{LG+wi}, s{S_L2E}, v{LG+wi}")
    for wi in range(8):
        I(f"v_exp_f32 v{LG+wi}, v{LG+wi}")
    I("s_nop 0")
    I(f"v_add_f32 v7, v{LG}, v{LG+1}")
    for wi in range(2, 8):
        I(f"v_add_f32 v7, v7, v{LG+wi}")
    I("v_rcp_f32 v7, v7")
    I("s_nop 0")
    for wi in range(8):
        I(f"v_mul_f32 v{LG+wi}, v{LG+wi}, v7")
    for p in range(4):
        I(f"v_cvt_pk_bf16_f32 v{LG+p}, v{LG+2*p}, v{LG+2*p+1}")
    I("s_waitcnt lgkmcnt(0)")
    T = 130
    for p in range(4):
        for i in range(10):
            A_ = KV + 10 * (2 * p) + i
            B_ = KV + 10 * (2 * p + 1) + i
            t0 = T + 2 * (i % 4)
            I(f"v_perm_b32 v{t0}, v{B_}, v{A_}, s{S_SEL_LO}")
            I(f"v_perm_b32 v{t0+1}, v{B_}, v{A_}, s{S_SEL_HI}")
            s0 = "0" if p == 0 else f"v{O+2*i}"
            s1 = "0" if p == 0 else f"v{O+2*i+1}"
            I(f"v_dot2_f32_bf16 v{O+2*i}, v{t0}, v{LG+p}, {s0}")
            I(f"v_dot2_f32_bf16 v{O+2*i+1}, v{t0+1}, v{LG+p}, {s1}")
    I("s_nop 3")
    for i in range(10):
        I(f"v_cvt_pk_bf16_f32 v{Q+i}, v{O+2*i}, v{O+2*i+1}")
    I(f"v_mul_u32_u24 v5, {A2_ROW}, v6")
    I(f"s_mul_i32 s{S_T0}, s{S_CB}, 160")
    I(f"s_add_u32 s{S_T0}, s{S_T0}, s{S_T2}")
    I(f"v_add_u32 v5, s{S_T0}, v5")
    for i in range(5):
        I(f"buffer_store_dwordx2 v[{Q+2*i}:{Q+2*i+1}], v5, s[{SRD_A2}:{SRD_A2+3}], 0 offen offset:{8*i}")
    stamp()
    I("s_waitcnt vmcnt(0)")
    stamp()
    stamp_flush(0, 0)
    L("k1_done")
    I("s_endpgm")
    kd(name, 256, 80)


def gen_k2():
    name = "gemm2_kernel"
    kstart(name)
    I("s_cmp_ge_u32 s2, 256")
    I("s_cbranch_scc1 k2_done")
    stamp_init()
    stamp()
    load_kernargs()
    S_RB_, S_CB_, S_M0_, S_N0B, S_W_ = 4, 5, 6, 7, 8
    S_C, S_AG_, S_BG_, S_LB = 9, 10, 11, 12
    SRD_A, SRD_B, SRD_X, SRD_O = 40, 44, 48, 52
    T0, T1, T2 = 56, 57, 58
    I(f"s_and_b32 s{T0}, s2, 7")
    I(f"s_lshr_b32 s{T1}, s2, 3")
    I(f"s_lshr_b32 s{S_RB_}, s{T0}, 1")
    I(f"s_lshl_b32 s{S_RB_}, s{S_RB_}, 3")
    I(f"s_lshr_b32 s{T2}, s{T1}, 2")
    I(f"s_add_u32 s{S_RB_}, s{S_RB_}, s{T2}")
    I(f"s_and_b32 s{S_CB_}, s{T0}, 1")
    I(f"s_lshl_b32 s{S_CB_}, s{S_CB_}, 2")
    I(f"s_and_b32 s{T2}, s{T1}, 3")
    I(f"s_add_u32 s{S_CB_}, s{S_CB_}, s{T2}")
    I(f"s_lshl_b32 s{S_M0_}, s{S_RB_}, 6")
    I(f"s_mul_i32 s{S_N0B}, s{S_CB_}, 160")
    I("v_lshrrev_b32 v1, 6, v0")
    I("v_and_b32 v2, 63, v0")
    I(f"v_readfirstlane_b32 s{S_W_}, v1")
    I("v_and_b32 v3, 15, v2")
    I("v_lshrrev_b32 v4, 4, v2")
    I("s_waitcnt lgkmcnt(0)")
    srd(SRD_A, P_WS, P_WS + 1, A2_BYTES, add=A2_OFF)
    srd(SRD_X, P_X, P_X + 1, XN_BYTES)
    srd(SRD_O, P_OUT, P_OUT + 1, XN_BYTES)
    I(f"s_mov_b32 s{SRD_B+3}, 0x20000")
    I(f"s_mov_b32 s59, {F*D*2}")
    BUF = 11264
    ACC = 128
    AF = [8, 40, 72]
    WFR = 104
    vA = 208
    vB = 212
    vR = 223
    XR = 224
    I(f"v_add_u32 v5, s{S_M0_}, v3")
    I(f"v_mul_u32_u24 v5, {A2_ROW}, v5")
    I(f"v_lshl_add_u32 v{vA}, v4, 4, v5")
    for rt in range(1, 4):
        I(f"v_add_u32 v{vA+rt}, {16*A2_ROW*rt}, v{vA}")
    for i in range(11):
        I(f"v_add_u32 v5, {64*i}, v2")
        I("v_mul_u32_u24 v6, 745, v5")
        I("v_lshrrev_b32 v6, 16, v6")
        I("v_mul_u32_u24 v7, 88, v6")
        I("v_sub_u32 v5, v5, v7")
        I("v_mul_u32_u24 v7, 205, v5")
        I("v_lshrrev_b32 v7, 11, v7")
        I("v_lshl_add_u32 v6, v6, 3, v7")
        I("v_mul_u32_u24 v7, 10, v7")
        I("v_sub_u32 v7, v5, v7")
        I("v_mul_u32_u24 v6, 1280, v6")
        I("v_lshl_add_u32 v6, v7, 4, v6")
        I(f"v_add_u32 v6, s{S_N0B}, v6")
        if i % 4:
            I(f"v_subrev_u32 v6, {1024*(i%4)}, v6")
        I("v_cmp_gt_u32 vcc, 80, v5")
        I("v_mov_b32 v7, 0x7f000000")
        I("s_nop 1")
        I(f"v_cndmask_b32 v{vB+i}, v7, v6, vcc")
    I("v_lshrrev_b32 v5, 2, v3")
    I("v_mul_u32_u24 v5, 10, v5")
    I("v_mul_u32_u24 v6, 88, v4")
    I("v_add_u32 v5, v5, v6")
    I("v_and_b32 v6, 3, v2")
    I("v_lshrrev_b32 v7, 1, v6")
    I("v_add_u32 v5, v5, v7")
    I("v_lshlrev_b32 v5, 4, v5")
    I("v_and_b32 v6, 1, v6")
    I("v_lshl_add_u32 v5, v6, 3, v5")
    I(f"s_mul_i32 s{S_LB}, s{S_W_}, {3*BUF}")
    I(f"v_add_u32 v{vR}, s{S_LB}, v5")
    I(f"s_lshl_b32 s{T0}, s{S_W_}, 4")
    I(f"s_add_u32 s{T0}, s{T0}, s{S_M0_}")
    I("v_lshrrev_b32 v5, 2, v2")
    I(f"v_add_u32 v5, s{T0}, v5")
    I("v_mul_u32_u24 v5, 1280, v5")
    I("v_and_b32 v6, 3, v2")
    I("v_mul_u32_u24 v6, 40, v6")
    I("v_add_u32 v5, v5, v6")
    I(f"v_add_u32 v{XR+10}, s{S_N0B}, v5")
    for i in range(5):
        I(f"buffer_load_dwordx2 v[{XR+2*i}:{XR+2*i+1}], v{XR+10}, s[{SRD_X}:{SRD_X+3}], 0 offen offset:{8*i}")
    I(f"s_mov_b32 s{S_C}, s{S_W_}")

    def issue_chunk(slot):
        I(f"s_cmp_lt_u32 s{S_C}, 10")
        I(f"s_cselect_b32 s{SRD_B}, s{P_WO}, s{P_WD}")
        I(f"s_cselect_b32 s{SRD_B+1}, s{P_WO+1}, s{P_WD+1}")
        I(f"s_cselect_b32 s{SRD_B+2}, {D*D*2}, s59")
        I(f"s_cselect_b32 s{T0}, 0, 10")
        I(f"s_and_b32 s{SRD_B+1}, s{SRD_B+1}, 0xffff")
        I(f"s_sub_u32 s{T0}, s{S_C}, s{T0}")
        I(f"s_mul_i32 s{S_BG_}, s{T0}, {64*1280}")
        I(f"s_lshl_b32 s{S_AG_}, s{S_C}, 7")
        I(f"s_cmp_lt_u32 s{S_C}, 34")
        I(f"s_cselect_b32 s{S_AG_}, s{S_AG_}, 0x40000000")
        for i in range(11):
            if i % 4 == 0:
                I(f"s_add_u32 m0, s{S_LB}, {slot*BUF + i*1024}")
                I("s_nop 0")
            I(f"buffer_load_dwordx4 v{vB+i}, s[{SRD_B}:{SRD_B+3}], s{S_BG_} offen offset:{(i%4)*1024} lds")
        for ks in range(2):
            for rt in range(4):
                r = AF[slot] + (ks * 4 + rt) * 4
                I(f"buffer_load_dwordx4 v[{r}:{r+3}], v{vA+rt}, s[{SRD_A}:{SRD_A+3}], s{S_AG_} offen offset:{ks*64}")
        I(f"s_add_u32 s{S_C}, s{S_C}, 4")

    stamp()
    issue_chunk(0)
    issue_chunk(1)
    stamp()
    for r in range(ACC, ACC + 80):
        I(f"v_mov_b32 v{r}, 0")
    I(f"s_mov_b32 s{T2}, 0")
    L("k2_loop")
    for slot in range(3):
        issue_chunk((slot + 2) % 3)
        I("s_waitcnt vmcnt(38)")
        for ks in range(2):
            for ct in range(5):
                off = slot * BUF + ks * 352 * 16 + ct * 32
                r = WFR + 4 * ct
                I(f"ds_read_b64_tr_b16 v[{r}:{r+1}], v{vR} offset:{off}")
                I(f"ds_read_b64_tr_b16 v[{r+2}:{r+3}], v{vR} offset:{off + 640}")
            for ct in range(5):
                I(f"s_waitcnt lgkmcnt({2*(4-ct)})")
                for rt in range(4):
                    a = ACC + (rt * 5 + ct) * 4
                    w = WFR + 4 * ct
                    x = AF[slot] + (ks * 4 + rt) * 4
                    I(f"v_mfma_f32_16x16x32_bf16 v[{a}:{a+3}], v[{w}:{w+3}], v[{x}:{x+3}], v[{a}:{a+3}]")
    I(f"s_add_u32 s{T2}, s{T2}, 1")
    I(f"s_cmp_lt_u32 s{T2}, 3")
    I("s_cbranch_scc1 k2_loop")
    stamp()
    I("s_waitcnt vmcnt(0)")
    I("s_barrier")
    stamp()
    RS = 336
    I(f"s_mul_i32 s{T0}, s{S_W_}, {64*RS}")
    I(f"v_mul_u32_u24 v5, {RS}, v3")
    I("v_lshl_add_u32 v5, v4, 4, v5")
    I(f"v_add_u32 v5, s{T0}, v5")
    I("s_nop 4")
    for rt in range(4):
        for ct in range(5):
            a = ACC + (rt * 5 + ct) * 4
            I(f"ds_write_b128 v5, v[{a}:{a+3}] offset:{rt*16*RS + ct*64}")
    I("s_waitcnt lgkmcnt(0)")
    I("s_barrier")
    I(f"s_mul_i32 s{T0}, s{S_W_}, {16*RS}")
    I("v_lshrrev_b32 v5, 2, v2")
    I(f"v_mul_u32_u24 v5, {RS}, v5")
    I("v_and_b32 v6, 3, v2")
    I("v_mul_u32_u24 v6, 80, v6")
    I("v_add_u32 v5, v5, v6")
    I(f"v_add_u32 v5, s{T0}, v5")
    for p in range(4):
        for i in range(5):
            r = 8 + p * 20 + i * 4
            I(f"ds_read_b128 v[{r}:{r+3}], v5 offset:{p*64*RS + i*16}")
    I("s_waitcnt lgkmcnt(0)")
    for i in range(20):
        I(f"v_add_f32 v{8+i}, v{8+i}, v{28+i}")
        I(f"v_add_f32 v{48+i}, v{48+i}, v{68+i}")
    for i in range(20):
        I(f"v_add_f32 v{8+i}, v{8+i}, v{48+i}")
    for i in range(10):
        I(f"v_lshlrev_b32 v6, 16, v{XR+i}")
        I(f"v_and_b32 v7, 0xffff0000, v{XR+i}")
        I(f"v_add_f32 v{8+2*i}, v{8+2*i}, v6")
        I(f"v_add_f32 v{9+2*i}, v{9+2*i}, v7")
        I(f"v_cvt_pk_bf16_f32 v{XR+i}, v{8+2*i}, v{9+2*i}")
    for i in range(5):
        I(f"buffer_store_dwordx2 v[{XR+2*i}:{XR+2*i+1}], v{XR+10}, s[{SRD_O}:{SRD_O+3}], 0 offen offset:{8*i}")
    stamp()
    I("s_waitcnt vmcnt(0)")
    stamp()
    stamp_flush(0, 0)
    L("k2_done")
    I("s_endpgm")
    kd(name, 240, 64)


def header():
    ref = open(f"cdna_kernels/{NAME}.s.ref").read().splitlines()
    for line in ref:
        if line.startswith("; @launch"):
            break
        e(line)
    e("; @launch kernel=ln_kernel grid=(256,1,1) block=(512,1,1) lds=0")
    e("; @launch kernel=gemm1_kernel grid=(256,1,1) block=(512,1,1) lds=147456")
    e("; @launch kernel=gemm2_kernel grid=(256,1,1) block=(256,1,1) lds=135168")
    e('.amdgcn_target "amdgcn-amd-amdhsa--gfx950"')
    e(".text")


def selfcheck():
    for pos in range(768):
        assert (pos * 2731) >> 16 == pos // 24
    for pos in range(704):
        assert (pos * 745) >> 16 == pos // 88
    for rem in range(88):
        assert (rem * 205) >> 11 == rem // 10
    for j in range(32):
        assert (j * 26) >> 8 == j // 10
    for t in range(15):
        assert (t * 52) >> 8 == t // 5


selfcheck()
header()
gen_k0()
gen_k1()
gen_k2()
path = f"cdna_kernels/{NAME}.s"
for a in sys.argv[1:]:
    if a.startswith("-o"):
        path = a[2:]
open(path, "w").write("\n".join(out) + "\n")
print("wrote", path, len(out), "lines")
```

```python
import sys

NAME = "parallel_sum__sliding_local_dilated__glu_gated_glu__prompt"

S = 2048
D = 640
F = 1536
XN_BYTES = S * D * 2
XN_OFF = 0
A2_OFF = XN_BYTES
A2_BYTES = 128 * 68 * 1024
W2_OFF = A2_OFF + A2_BYTES
W2_BYTES = 8 * 68 * 5 * 1024
WS_USED = W2_OFF + W2_BYTES

OPT = dict(round_gu=1, stamp=0, k2_same=0, k2_nomfma=0, k2_map=0, k0_mode=0, stagger=1, rpm=2, x_noreads=0, x_nobar=0, x_nodma=0, pf_rows=256)
for a in sys.argv[1:]:
    if "=" in a:
        k, v = a.split("=")
        OPT[k] = int(v)

out = []


def e(s=""):
    out.append(s)


def I(s):
    out.append("    " + s)


def L(s):
    out.append(s + ":")


def srd(dst, lo, hi, nbytes, add=0):
    if add:
        I(f"s_add_u32 s{dst}, s{lo}, {add}")
        I(f"s_addc_u32 s{dst+1}, s{hi}, 0")
        I(f"s_and_b32 s{dst+1}, s{dst+1}, 0xffff")
    else:
        I(f"s_mov_b32 s{dst}, s{lo}")
        I(f"s_and_b32 s{dst+1}, s{hi}, 0xffff")
    I(f"s_mov_b32 s{dst+2}, {nbytes}")
    I(f"s_mov_b32 s{dst+3}, 0x20000")


P_X, P_WQKV, P_WO, P_BX, P_WG, P_WU, P_WD, P_OUT, P_DBG, P_WS = 16, 18, 20, 22, 24, 26, 28, 30, 32, 34

STAMPS = 0


def stamp_init():
    global STAMPS
    STAMPS = 0
    if OPT["stamp"] in (1, 2):
        I("s_memrealtime s[96:97]")


def stamp():
    global STAMPS
    if OPT["stamp"] in (1, 2):
        I(f"s_memtime s[{80+2*STAMPS}:{81+2*STAMPS}]")
        STAMPS += 1


def stamp_flush(wgsel, base=0):
    if OPT["stamp"] not in (1, 2):
        return
    I("s_memrealtime s[98:99]")
    I("s_waitcnt lgkmcnt(0)")
    lab = f"st_skip_{len(out)}"
    I(f"s_cmp_lg_u32 s2, {wgsel}")
    I(f"s_cbranch_scc1 {lab}")
    I("v_cmp_eq_u32 vcc, 0, v0")
    I("s_and_saveexec_b64 s[100:101], vcc")
    I(f"s_cbranch_execz {lab}")
    srd(76, P_DBG, P_DBG + 1, 256)
    I("v_mov_b32 v1, 0")
    regs = [96, 98] + [80 + 2 * i for i in range(STAMPS)]
    for i, r in enumerate(regs):
        I(f"v_mov_b32 v2, s{r}")
        I(f"buffer_store_dword v2, v1, s[76:79], 0 offen offset:{base+4*i}")
    L(lab)


def stamp_flush_waves(wgsel):
    if not OPT["stamp"]:
        return
    I("s_waitcnt lgkmcnt(0)")
    lab = f"st_skipw_{len(out)}"
    I(f"s_cmp_lg_u32 s2, {wgsel}")
    I(f"s_cbranch_scc1 {lab}")
    I("v_and_b32 v1, 63, v0")
    I("v_cmp_eq_u32 vcc, 0, v1")
    I("v_lshrrev_b32 v1, 1, v0")
    I("s_and_saveexec_b64 s[100:101], vcc")
    I(f"s_cbranch_execz {lab}")
    srd(76, P_DBG, P_DBG + 1, 256)
    regs = [80 + 2 * i for i in range(STAMPS)][:8]
    for i, r in enumerate(regs):
        I(f"v_mov_b32 v2, s{r}")
        I(f"buffer_store_dword v2, v1, s[76:79], 0 offen offset:{4*i}")
    L(lab)


def kd(name, vgpr, sgpr):
    if OPT["stamp"]:
        sgpr = 102
    acc = (vgpr + 3) // 4 * 4
    e('.section .rodata,"a"')
    e(".p2align 6")
    e(f".amdhsa_kernel {name}")
    e(f"  .amdhsa_next_free_vgpr {vgpr}")
    e(f"  .amdhsa_next_free_sgpr {sgpr}")
    e(f"  .amdhsa_accum_offset {acc}")
    e("  .amdhsa_group_segment_fixed_size 0")
    e("  .amdhsa_kernarg_size 80")
    e("  .amdhsa_user_sgpr_count 2")
    e("  .amdhsa_user_sgpr_kernarg_segment_ptr 1")
    e("  .amdhsa_system_sgpr_workgroup_id_x 1")
    e(".end_amdhsa_kernel")
    e(".text")


def kstart(name):
    e(f".globl {name}")
    e(".p2align 8")
    e(f".type {name},@function")
    L(name)


def load_kernargs():
    I("s_load_dwordx16 s[16:31], s[0:1], 0")
    I("s_load_dwordx4 s[32:35], s[0:1], 64")


def bf16_round_pair(a, b, t):
    I(f"v_cvt_pk_bf16_f32 v{t}, v{a}, v{b}")
    I(f"v_lshlrev_b32 v{a}, 16, v{t}")
    I(f"v_and_b32 v{b}, 0xffff0000, v{t}")


def wave_allreduce(v, sbase):
    for ctrl in ("quad_perm:[1,0,3,2]", "quad_perm:[2,3,0,1]", "row_half_mirror", "row_mirror"):
        I("s_nop 1")
        I(f"v_add_f32_dpp v{v}, v{v}, v{v} {ctrl} row_mask:0xf bank_mask:0xf")
    I("s_nop 1")
    for i in range(4):
        I(f"v_readlane_b32 s{sbase+i}, v{v}, {16*i}")
    I("s_nop 1")
    I(f"v_mov_b32 v{v}, s{sbase}")
    I(f"v_add_f32 v{v}, s{sbase+1}, v{v}")
    I(f"v_add_f32 v{v}, s{sbase+2}, v{v}")
    I(f"v_add_f32 v{v}, s{sbase+3}, v{v}")


K0_GRID = 256


def gen_k0():
    name = "prep_kernel"
    kstart(name)
    I(f"s_cmp_ge_u32 s2, {K0_GRID}")
    I("s_cbranch_scc1 k0_done")
    I("s_load_dwordx16 s[16:31], s[0:1], 0")
    I("s_load_dwordx2 s[34:35], s[0:1], 72")
    I("v_lshrrev_b32 v1, 6, v0")
    I("v_and_b32 v2, 63, v0")
    I("s_and_b32 s4, s2, 7")
    I("s_lshr_b32 s5, s2, 3")
    I("s_lshr_b32 s6, s4, 1")
    I("s_lshl_b32 s6, s6, 6")
    I("s_and_b32 s4, s4, 1")
    I("s_lshl_b32 s4, s4, 5")
    I("s_add_u32 s6, s6, s4")
    I("s_add_u32 s6, s6, s5")
    I("s_lshl_b32 s3, s6, 3")
    I("v_add_u32 v1, s3, v1")
    I("v_mul_u32_u24 v3, 1280, v1")
    I("v_lshl_add_u32 v3, v2, 2, v3")
    I("s_waitcnt lgkmcnt(0)")
    srd(36, P_X, P_X + 1, XN_BYTES)
    srd(40, P_WS, P_WS + 1, XN_BYTES)
    for i in range(5):
        I(f"buffer_load_dword v{4+i}, v3, s[36:39], 0 offen offset:{256*i}")
    npf = 0
    if OPT["pf_rows"]:
        R = OPT["pf_rows"]
        I("s_lshl_b32 s7, s2, 3")
        I("v_lshrrev_b32 v9, 6, v0")
        I("v_add_u32 v9, s7, v9")
        I("v_lshlrev_b32 v9, 10, v9")
        I("v_lshl_add_u32 v9, v2, 4, v9")
        srd(44, P_WQKV, P_WQKV + 1, R * 3840)
        srd(48, P_WG, P_WG + 1, R * 3072)
        srd(52, P_WU, P_WU + 1, R * 3072)
        I("buffer_load_dwordx4 v[24:27], v9, s[44:47], 0 offen")
        I("buffer_load_dwordx4 v[28:31], v9, s[48:51], 0 offen")
        I("buffer_load_dwordx4 v[32:35], v9, s[52:55], 0 offen")
        npf = 3
        if R * 3840 > 2048 * 1024:
            I("s_mov_b32 s56, 0x200000")
            I("buffer_load_dwordx4 v[36:39], v9, s[44:47], s56 offen")
            npf = 4
    I(f"s_waitcnt vmcnt({npf})")
    for i in range(5):
        I(f"v_lshlrev_b32 v{10+2*i}, 16, v{4+i}")
        I(f"v_and_b32 v{11+2*i}, 0xffff0000, v{4+i}")
    I("v_add_f32 v20, v10, v11")
    for i in range(2, 10):
        I(f"v_add_f32 v20, v20, v{10+i}")
    wave_allreduce(20, 4)
    I("v_mul_f32 v20, 0x3acccccd, v20")
    I("v_sub_f32 v22, v10, v20")
    I("v_mul_f32 v21, v22, v22")
    for i in range(1, 10):
        I(f"v_sub_f32 v22, v{10+i}, v20")
        I("v_fmac_f32 v21, v22, v22")
    wave_allreduce(21, 4)
    I("v_mul_f32 v21, 0x3acccccd, v21")
    I("v_cvt_pk_bf16_f32 v22, v20, v21")
    I("v_lshlrev_b32 v20, 16, v22")
    I("v_and_b32 v21, 0xffff0000, v22")
    I("v_add_f32 v21, 0x3727c5ac, v21")
    I("v_cvt_pk_bf16_f32 v21, v21, v21")
    I("v_lshlrev_b32 v21, 16, v21")
    I("v_sqrt_f32 v21, v21")
    I("s_nop 0")
    I("v_cvt_pk_bf16_f32 v21, v21, v21")
    I("v_lshlrev_b32 v21, 16, v21")
    I("v_rcp_f32 v21, v21")
    I("s_nop 0")
    for i in range(5):
        a, b = 10 + 2 * i, 11 + 2 * i
        I(f"v_sub_f32 v{a}, v{a}, v20")
        I(f"v_sub_f32 v{b}, v{b}, v20")
        I(f"v_cvt_pk_bf16_f32 v22, v{a}, v{b}")
        I(f"v_lshlrev_b32 v{a}, 16, v22")
        I(f"v_and_b32 v{b}, 0xffff0000, v22")
        I(f"v_mul_f32 v{a}, v{a}, v21")
        I(f"v_mul_f32 v{b}, v{b}, v21")
        I(f"v_cvt_pk_bf16_f32 v{4+i}, v{a}, v{b}")
        I(f"buffer_store_dword v{4+i}, v3, s[40:43], 0 offen offset:{256*i}")
    L("k0_done")
    I("s_endpgm")
    kd(name, 40, 64)


S_CB, S_RB, S_TYPE, S_M0, S_W = 4, 5, 6, 7, 8
S_AR, S_ARN, S_BR, S_BW = 9, 10, 11, 12
S_AG, S_BG = 13, 14
S_IT = 15
SRD_XN, SRD_A2, SRD_W = 40, 44, 48
S_T0, S_T1, S_T2, S_T3 = 52, 53, 54, 55
S_MA, S_MB, S_MH = 56, 57, 58
S_AW = 59
S_SLOT = 60
S_SEL_LO, S_SEL_HI, S_SCALE, S_L2E = 70, 71, 72, 73
S_BG0 = 74


class K1Cfg:
    pass


def k1_mainloop(c, tag):
    a = len(c.a_dma)
    b = len(c.b_dma)

    def dma_list(kind, slot_sreg):
        res = []
        last = None
        lst = c.a_dma if kind == "A" else c.b_dma
        for (v, sm, off) in lst:
            setup = None
            if sm != last:
                setup = f"s_add_u32 m0, s{slot_sreg}, s{sm}"
                last = sm
            if kind == "A":
                ins = f"buffer_load_dwordx4 v{v}, s[{SRD_XN}:{SRD_XN+3}], s{S_AG} offen offset:{off} lds"
            else:
                ins = f"buffer_load_dwordx4 v{v}, s[{SRD_W}:{SRD_W+3}], s{S_BG} offen offset:{off} lds"
            res.append((setup, ins))
        return res

    def emit_dma_now(kind, slot_sreg):
        for (setup, ins) in dma_list(kind, slot_sreg):
            if setup:
                I(setup)
                I("s_nop 0")
            I(ins)

    adv_a = [f"s_add_u32 s{S_AG}, s{S_AG}, 128"]
    adv_b = [f"s_add_u32 s{S_BG}, s{S_BG}, {c.bstage_g}"]

    def ring_next(sreg, size, n, base):
        I(f"s_add_u32 s{sreg}, s{sreg}, {size}")
        I(f"s_cmp_ge_u32 s{sreg}, {base + size * n}")
        I(f"s_cselect_b32 s{sreg}, {base}, s{sreg}")

    def frag_reads(fs, khalf, s_a, s_b):
        pre = []
        for (dyn, st0, st1) in c.xaddr:
            pre.append(f"v_add_u32 v{dyn}, s{s_a}, v{st1 if khalf else st0}")
        for (dyn, st) in c.waddr:
            pre.append(f"v_add_u32 v{dyn}, s{s_b}, v{st}")
        rd = []
        for i, (ai, off) in enumerate(c.xfrag):
            r = c.XF[fs] + 4 * i
            rd.append(f"ds_read_b128 v[{r}:{r+3}], v{c.xaddr[ai][0]} offset:{off}")
        for i, (ai, off) in enumerate(c.wfrag):
            r = c.WF[fs] + 4 * i
            rd.append(f"ds_read_b64_tr_b16 v[{r}:{r+1}], v{c.waddr[ai][0]} offset:{off}")
            rd.append(f"ds_read_b64_tr_b16 v[{r+2}:{r+3}], v{c.waddr[ai][0]} offset:{off + c.wrow4}")
        return pre, rd

    def mfmas(fs):
        res = []
        for (acc, xi, wi) in c.tiles:
            x = c.XF[fs] + 4 * xi
            w = c.WF[fs] + 4 * wi
            res.append(f"v_mfma_f32_16x16x32_bf16 v[{acc}:{acc+3}], v[{w}:{w+3}], v[{x}:{x+3}], v[{acc}:{acc+3}]")
        return res

    global STAMPS
    STAMPS = 2
    stamp()
    I(f"s_mov_b32 s{S_AG}, 0")
    I(f"s_mov_b32 s{S_BG}, 0")
    for it in ["A0", "B0", "A1", "B1", "B2", "A2", "B3"]:
        n = int(it[1])
        if it[0] == "A":
            I(f"s_mov_b32 s{S_T3}, {c.abase + n * c.asz}")
            emit_dma_now("A", S_T3)
            for x in adv_a:
                I(x)
        else:
            I(f"s_mov_b32 s{S_T3}, {c.bbase + n * c.bsz}")
            emit_dma_now("B", S_T3)
            for x in adv_b:
                I(x)
    extra = c.after_prologue() if hasattr(c, "after_prologue") else 0
    for r in range(c.acc0, c.acc0 + c.nacc):
        I(f"v_mov_b32 v{r}, 0")
    I(f"s_mov_b32 s{S_AR}, {c.abase}")
    I(f"s_mov_b32 s{S_ARN}, {c.abase + c.asz}")
    I(f"s_mov_b32 s{S_BW}, {c.bbase}")
    I(f"s_mov_b32 s{S_BR}, {c.bbase + c.bsz}")
    I(f"s_waitcnt vmcnt({3*b + 2*a + extra})")
    I("s_barrier")
    stamp()
    pre, rd = frag_reads(0, 0, S_AR, S_BW)
    for x in pre + rd:
        I(x)
    I(f"s_mov_b32 s{S_IT}, 0")
    I("s_waitcnt lgkmcnt(0)")
    def step(half, wait, with_dma, with_reads, fixed_t=None):
        if OPT["stamp"] == 3:
            I("s_memtime s[88:89]")
        if wait is not None:
            I(f"s_waitcnt vmcnt({wait})")
        if OPT["stamp"] == 3:
            I("s_memtime s[90:91]")
        if not OPT["x_nobar"]:
            I("s_barrier")
        if OPT["stamp"] == 3:
            I("s_memtime s[92:93]")
        pre, rd = [], []
        if with_reads:
            if half == 0:
                pre, rd = frag_reads(1, 1, S_AR, S_BR)
            else:
                pre, rd = frag_reads(0, 0, S_ARN, S_BR)
        if OPT["x_noreads"]:
            pre, rd = [], []
        for x in pre:
            I(x)
        dm = []
        if with_dma and not OPT["x_nodma"]:
            if half == 1:
                dl = dma_list("A", S_AR)
                dm += [(s_, i_, adv_a if k == len(dl) - 1 else [], True) for k, (s_, i_) in enumerate(dl)]
            dl = dma_list("B", S_BW)
            dm += [(s_, i_, adv_b if k == len(dl) - 1 else [], False) for k, (s_, i_) in enumerate(dl)]
        mf = mfmas(half)
        nm = len(mf)
        nd = max(len(dm), 1)
        if OPT["stagger"]:
            pos_e = [int((k + 0.5) * (nm // 2) / nd) for k in range(nd)]
            pos_l = [nm // 2 + int((k + 0.5) * (nm - nm // 2 - 1) / nd) for k in range(nd)]
            slots = [(p_, k, "e") for k, p_ in enumerate(pos_e)] + [(p_, k, "l") for k, p_ in enumerate(pos_l)]
        else:
            slots = [(int((k + 0.5) * nm / nd), k, "a") for k in range(nd)]
        if not dm:
            slots = []
        rdi = 0
        rpm = OPT["rpm"]
        for i, m in enumerate(mf):
            I(m)
            for (p_, k, kind) in slots:
                if p_ != i:
                    continue
                lab = f"{tag}_sk_{len(out)}"
                if kind == "e":
                    I(f"s_cbranch_vccz {lab}")
                elif kind == "l":
                    I(f"s_cbranch_vccnz {lab}")
                if dm[k][3]:
                    I(f"s_cmp_ge_u32 s{S_IT}, 7")
                    I(f"s_cbranch_scc1 {lab}")
                setup = dm[k][0]
                kk = k
                while setup is None:
                    kk -= 1
                    setup = dm[kk][0]
                I(setup)
                I("s_nop 0")
                I(dm[k][1])
                for x in dm[k][2]:
                    I(x)
                L(lab)
            for _ in range(rpm):
                if rdi < len(rd):
                    I(rd[rdi])
                    rdi += 1
        for x in rd[rdi:]:
            I(x)
        if with_reads:
            I(f"s_mov_b32 s{S_BW}, s{S_BR}")
            ring_next(S_BR, c.bsz, 4, c.bbase)
            if half == 1:
                I(f"s_mov_b32 s{S_AR}, s{S_ARN}")
                ring_next(S_ARN, c.asz, 3, c.abase)
            I("s_waitcnt lgkmcnt(0)")
        if OPT["stamp"] == 3:
            I("s_waitcnt lgkmcnt(0)")
            if fixed_t is None:
                I(f"s_lshl_b32 s94, s{S_IT}, 1")
                I(f"s_add_u32 s94, s94, {half}")
            else:
                I(f"s_mov_b32 s94, {fixed_t}")
            I("s_mov_b32 m0, s94")
            I("s_nop 0")
            I("v_writelane_b32 v253, s88, m0")
            I("v_writelane_b32 v254, s90, m0")
            I("v_writelane_b32 v255, s92, m0")

    L(f"{tag}_loop")
    step(0, 2 * b + a, True, True)
    step(1, 2 * b + a, True, True)
    I(f"s_add_u32 s{S_IT}, s{S_IT}, 1")
    I(f"s_cmp_lt_u32 s{S_IT}, 8")
    I(f"s_cbranch_scc1 {tag}_loop")
    step(0, 2 * b, False, True, 16)
    step(1, b, False, True, 17)
    step(0, 0, False, True, 18)
    step(1, None, False, False, 19)
    if OPT["stamp"] == 3:
        lab = f"st3_{len(out)}"
        I(f"s_cmp_lg_u32 s2, {OPT.get('wg', 0)}")
        I(f"s_cbranch_scc1 {lab}")
        I(f"s_cmp_lg_u32 s{S_W}, {OPT.get('wave', 0)}")
        I(f"s_cbranch_scc1 {lab}")
        srd(96, P_DBG, P_DBG + 1, 256)
        I("v_lshlrev_b32 v1, 2, v2")
        I("v_cmp_gt_u32 vcc, 20, v2")
        I("s_and_saveexec_b64 s[100:101], vcc")
        I("buffer_store_dword v253, v1, s[96:99], 0 offen")
        I("buffer_store_dword v254, v1, s[96:99], 0 offen offset:80")
        I("buffer_store_dword v255, v1, s[96:99], 0 offen offset:160")
        I("s_mov_b64 exec, s[100:101]")
        L(lab)
    stamp()
    I("s_waitcnt vmcnt(0)")
    I("s_barrier")
    stamp()


def gen_k1():
    name = "gemm1_kernel"
    kstart(name)
    I("s_cmp_ge_u32 s2, 256")
    I("s_cbranch_scc1 k1_done")
    stamp_init()
    stamp()
    load_kernargs()
    I(f"s_and_b32 s{S_T0}, s2, 7")
    I(f"s_lshr_b32 s{S_T1}, s2, 3")
    I(f"s_lshr_b32 s{S_RB}, s{S_T0}, 1")
    I(f"s_lshl_b32 s{S_RB}, s{S_RB}, 2")
    I(f"s_and_b32 s{S_T2}, s{S_T1}, 3")
    I(f"s_add_u32 s{S_RB}, s{S_RB}, s{S_T2}")
    I(f"s_lshr_b32 s{S_T1}, s{S_T1}, 2")
    I(f"s_and_b32 s{S_TYPE}, s{S_T1}, 1")
    I(f"s_lshr_b32 s{S_T1}, s{S_T1}, 1")
    I(f"s_and_b32 s{S_CB}, s{S_T0}, 1")
    I(f"s_lshl_b32 s{S_CB}, s{S_CB}, 2")
    I(f"s_add_u32 s{S_CB}, s{S_CB}, s{S_T1}")
    I(f"s_lshl_b32 s{S_M0}, s{S_RB}, 7")
    I("v_lshrrev_b32 v1, 6, v0")
    I("v_and_b32 v2, 63, v0")
    I(f"v_readfirstlane_b32 s{S_W}, v1")
    I("v_and_b32 v3, 15, v2")
    I("v_lshrrev_b32 v4, 4, v2")
    I(f"s_cmp_eq_u32 s{S_TYPE}, 0")
    I("s_cbranch_scc1 k1_qkv")

    def build_srds():
        global STAMPS
        STAMPS = 1
        stamp()
        I("s_waitcnt lgkmcnt(0)")
        srd(SRD_XN, P_WS, P_WS + 1, XN_BYTES)
        srd(SRD_A2, P_WS, P_WS + 1, A2_BYTES + W2_BYTES, add=A2_OFF)

    c = K1Cfg()
    c.asz, c.bsz, c.abase, c.bbase = 16384, 24576, 0, 49152
    c.bstage_g = 32 * F * 2
    c.wrow4 = 4 * 24 * 16
    c.acc0, c.nacc = 128, 96
    c.XF = [8, 48]
    c.WF = [24, 64]
    vX0, vX1, vW, vXa, vWa, vAd, vBd = 88, 89, 90, 93, 94, 97, 99
    I(f"s_lshl_b32 s{S_T0}, s{S_W}, 4")
    I(f"s_add_u32 s{S_T0}, s{S_T0}, s{S_M0}")
    I("v_lshrrev_b32 v5, 3, v2")
    I(f"v_add_u32 v5, s{S_T0}, v5")
    I("v_mul_u32_u24 v5, 1280, v5")
    I("v_and_b32 v6, 7, v2")
    I("v_xor_b32 v7, v6, v4")
    I(f"v_lshl_add_u32 v{vAd}, v7, 4, v5")
    I("v_or_b32 v7, 4, v4")
    I("v_xor_b32 v7, v6, v7")
    I(f"v_lshl_add_u32 v{vAd+1}, v7, 4, v5")
    I(f"v_add_u32 v{vAd+1}, {8*1280 - 1024}, v{vAd+1}")
    I(f"s_lshl_b32 s{S_MA}, s{S_W}, 11")
    c.a_dma = [(vAd, S_MA, 0), (vAd + 1, S_MA, 1024)]
    I(f"s_and_b32 s{S_T0}, s{S_W}, 3")
    I(f"s_mul_i32 s{S_T1}, s{S_T0}, 192")
    I(f"s_mul_i32 s{S_T2}, s{S_CB}, 384")
    for ii in range(3):
        I(f"v_add_u32 v5, s{S_T1}, v2")
        if ii:
            I(f"v_add_u32 v5, {64*ii}, v5")
        I("v_mul_u32_u24 v6, 2731, v5")
        I("v_lshrrev_b32 v6, 16, v6")
        I("v_mul_u32_u24 v7, 24, v6")
        I("v_sub_u32 v7, v5, v7")
        I("v_and_b32 v1, 2, v6")
        I("v_lshrrev_b32 v5, 1, v6")
        I("v_and_b32 v5, 4, v5")
        I("v_or_b32 v1, v1, v5")
        I("v_xor_b32 v7, v7, v1")
        I("v_mul_u32_u24 v6, 3072, v6")
        I("v_lshl_add_u32 v6, v7, 4, v6")
        I(f"v_add_u32 v{vBd+ii}, s{S_T2}, v6")
        if ii:
            I(f"v_subrev_u32 v{vBd+ii}, {1024*ii}, v{vBd+ii}")
    I(f"s_lshr_b32 s{S_T1}, s{S_W}, 2")
    I(f"s_mul_i32 s{S_MB}, s{S_T1}, 12288")
    I(f"s_mul_i32 s{S_T1}, s{S_T0}, 3072")
    I(f"s_add_u32 s{S_MB}, s{S_MB}, s{S_T1}")
    c.b_dma = [(vBd + ii, S_MB, 1024 * ii) for ii in range(3)]
    I(f"s_lshr_b32 s{S_T1}, s{S_W}, 2")
    I(f"s_lshl_b32 s{S_T1}, s{S_T1}, 13")
    I("v_lshrrev_b32 v6, 1, v3")
    I("v_xor_b32 v6, v6, v4")
    I("v_lshlrev_b32 v6, 4, v6")
    I("v_lshl_add_u32 v6, v3, 7, v6")
    I(f"v_add_u32 v{vX0}, s{S_T1}, v6")
    I(f"v_xor_b32 v{vX1}, 64, v{vX0}")
    c.xaddr = [(vXa, vX0, vX1)]
    c.xfrag = [(0, rt * 2048) for rt in range(4)]
    I("v_lshrrev_b32 v5, 2, v3")
    I("v_and_b32 v6, 3, v2")
    I("v_lshl_add_u32 v7, v4, 3, v5")
    I("v_mul_u32_u24 v7, 384, v7")
    I("v_and_b32 v1, 1, v6")
    I("v_lshl_add_u32 v7, v1, 3, v7")
    I("v_and_b32 v5, 2, v5")
    I("v_and_b32 v1, 1, v4")
    I("v_lshl_or_b32 v5, v1, 2, v5")
    I("v_lshrrev_b32 v6, 1, v6")
    I(f"s_mul_i32 s{S_T1}, s{S_T0}, 6")
    I(f"v_add_u32 v6, s{S_T1}, v6")
    for ct in range(3):
        I(f"v_add_u32 v1, {2*ct}, v6")
        I("v_xor_b32 v1, v1, v5")
        I(f"v_lshl_add_u32 v{vW+ct}, v1, 4, v7")
    c.waddr = [(vWa + ct, vW + ct) for ct in range(3)]
    c.wfrag = [(ct, 0) for ct in range(3)] + [(ct, 12288) for ct in range(3)]
    c.tiles = [(c.acc0 + (rt * 6 + ct) * 4, rt, ct) for rt in range(4) for ct in range(6)]
    build_srds()
    I(f"s_cmp_lt_u32 s{S_W}, 4")
    I(f"s_cselect_b32 s{SRD_W}, s{P_WG}, s{P_WU}")
    I(f"s_cselect_b32 s{SRD_W+1}, s{P_WG+1}, s{P_WU+1}")
    I(f"s_and_b32 s{SRD_W+1}, s{SRD_W+1}, 0xffff")
    I(f"s_mov_b32 s{SRD_W+2}, {D*F*2}")
    I(f"s_mov_b32 s{SRD_W+3}, 0x20000")
    k1_mainloop(c, "glu")
    I("s_nop 7")
    I(f"s_mov_b32 s{S_L2E}, 0xbfb8aa3b")
    I(f"s_lshr_b32 s{S_T1}, s{S_W}, 2")
    I(f"s_lshl_b32 s{S_T1}, s{S_T1}, 2")
    I(f"s_lshl_b32 s{S_T2}, s{S_RB}, 3")
    I(f"s_add_u32 s{S_T1}, s{S_T1}, s{S_T2}")
    I(f"s_mul_i32 s{S_T1}, s{S_T1}, 69632")
    I(f"s_mul_i32 s{S_T2}, s{S_CB}, 12")
    I(f"s_mul_i32 s{S_T3}, s{S_T0}, 3")
    I(f"s_add_u32 s{S_T2}, s{S_T2}, s{S_T3}")
    I(f"s_add_u32 s{S_T2}, s{S_T2}, 40")
    I(f"s_lshl_b32 s{S_T2}, s{S_T2}, 9")
    I(f"s_add_u32 s{S_T1}, s{S_T1}, s{S_T2}")
    I("v_lshrrev_b32 v5, 1, v4")
    I("v_lshlrev_b32 v5, 8, v5")
    I("v_lshl_add_u32 v5, v3, 4, v5")
    I("v_and_b32 v6, 1, v4")
    I("v_lshl_add_u32 v5, v6, 3, v5")
    I(f"v_add_u32 v5, s{S_T1}, v5")
    for rt in range(4):
        for ct in range(3):
            g = c.acc0 + (rt * 6 + ct) * 4
            u = c.acc0 + (rt * 6 + 3 + ct) * 4
            if OPT["round_gu"]:
                bf16_round_pair(g, g + 1, 8)
                bf16_round_pair(g + 2, g + 3, 9)
                bf16_round_pair(u, u + 1, 10)
                bf16_round_pair(u + 2, u + 3, 11)
            for r in range(4):
                I(f"v_mul_f32 v{g+r}, s{S_L2E}, v{g+r}")
            for r in range(4):
                I(f"v_exp_f32 v{g+r}, v{g+r}")
            I("s_nop 0")
            for r in range(4):
                I(f"v_add_f32 v{g+r}, 1.0, v{g+r}")
            for r in range(4):
                I(f"v_rcp_f32 v{g+r}, v{g+r}")
            I("s_nop 0")
            if OPT["round_gu"]:
                bf16_round_pair(g, g + 1, 8)
                bf16_round_pair(g + 2, g + 3, 9)
            for r in range(4):
                I(f"v_mul_f32 v{g+r}, v{g+r}, v{u+r}")
            I(f"v_cvt_pk_bf16_f32 v{u}, v{g}, v{g+1}")
            I(f"v_cvt_pk_bf16_f32 v{u+1}, v{g+2}, v{g+3}")
            I(f"buffer_store_dwordx2 v[{u}:{u+1}], v5, s[{SRD_A2}:{SRD_A2+3}], 0 offen offset:{ct*512}")
        if rt < 3:
            I(f"v_add_u32 v5, 69632, v5")
    if OPT["stamp"]:
        stamp()
        I("s_waitcnt vmcnt(0)")
        stamp()
        stamp_flush(8, 64)
    I("s_endpgm")

    L("k1_qkv")
    c = K1Cfg()
    c.asz, c.bsz, c.abase, c.bbase = 18432, 16384, 0, 55296
    c.bstage_g = 32 * 3 * D * 2
    c.wrow4 = 4 * 30 * 16
    c.acc0, c.nacc = 128, 72
    c.XF = [8, 60]
    c.WF = [20, 72]
    vXb0, vXb1, vXm0, vXm1, vW, vXma, vXha, vWa, vAd, vBd = 112, 113, 114, 115, 116, 119, 120, 121, 124, 200
    halo = {0: (5, 5), 2: (6, 6), 4: (7, 7), 6: (7, 7), 1: (8, 9), 3: (10, 11), 5: (12, 13), 7: (14, 14)}
    I(f"s_lshl_b32 s{S_T0}, s{S_W}, 4")
    I(f"s_add_u32 s{S_T0}, s{S_T0}, s{S_M0}")
    I("v_lshrrev_b32 v1, 3, v2")
    I(f"v_add_u32 v5, s{S_T0}, v1")
    I("v_mul_u32_u24 v5, 1280, v5")
    I("v_and_b32 v6, 7, v2")
    I("v_xor_b32 v7, v6, v4")
    I(f"v_lshl_add_u32 v{vAd}, v7, 4, v5")
    I("v_or_b32 v7, 4, v4")
    I("v_xor_b32 v7, v6, v7")
    I(f"v_lshl_add_u32 v{vAd+1}, v7, 4, v5")
    I(f"v_add_u32 v{vAd+1}, {8*1280 - 1024}, v{vAd+1}")
    I(f"s_and_b32 s{S_T1}, s{S_W}, 1")
    I(f"s_lshl_b32 s{S_T2}, s{S_T1}, 3")
    I(f"s_add_u32 s{S_T2}, s{S_T2}, s{S_M0}")
    I(f"s_sub_u32 s{S_T2}, s{S_T2}, 16")
    I(f"v_add_u32 v5, s{S_T2}, v1")
    I(f"s_mov_b32 s{S_T2}, 1280")
    I(f"v_mul_lo_u32 v5, v5, s{S_T2}")
    I(f"s_lshl_b32 s{S_T2}, s{S_T1}, 2")
    I(f"v_or_b32 v7, s{S_T2}, v4")
    I("v_xor_b32 v7, v6, v7")
    I(f"v_lshl_add_u32 v{vAd+2}, v7, 4, v5")
    I(f"s_lshl_b32 s{S_MA}, s{S_W}, 11")
    I(f"s_add_u32 s{S_MA}, s{S_MA}, 2048")
    I(f"s_lshl_b32 s{S_MH}, s{S_T1}, 10")
    c.a_dma = [(vAd, S_MA, 0), (vAd + 1, S_MA, 1024), (vAd + 2, S_MH, 0)]
    I(f"s_mul_i32 s{S_T2}, s{S_CB}, 160")
    I(f"s_lshl_b32 s{S_T0}, s{S_W}, 7")
    for ii in range(2):
        I(f"v_add_u32 v5, s{S_T0}, v2")
        if ii:
            I("v_add_u32 v5, 64, v5")
        I("v_mul_u32_u24 v6, 1058, v5")
        I("v_lshrrev_b32 v6, 18, v6")
        I("v_mul_u32_u24 v7, 248, v6")
        I("v_sub_u32 v5, v5, v7")
        I("v_mul_u32_u24 v7, 2185, v5")
        I("v_lshrrev_b32 v7, 16, v7")
        I("v_lshl_add_u32 v6, v6, 3, v7")
        I("v_mul_u32_u24 v7, 30, v7")
        I("v_sub_u32 v7, v5, v7")
        I("v_mul_u32_u24 v1, 26, v7")
        I("v_lshrrev_b32 v1, 8, v1")
        I("v_mul_u32_u24 v1, 1120, v1")
        I("v_lshl_add_u32 v1, v7, 4, v1")
        I("v_cmp_gt_u32 vcc, 240, v5")
        I("v_mul_u32_u24 v7, 3840, v6")
        I("v_add_u32 v1, v1, v7")
        I(f"v_add_u32 v1, s{S_T2}, v1")
        if ii:
            I("v_subrev_u32 v1, 1024, v1")
        I("v_mov_b32 v7, 0x7f000000")
        I("v_cndmask_b32 v1, v7, v1, vcc")
        I("v_cmp_gt_u32 vcc, 32, v6")
        I("s_nop 1")
        I(f"v_cndmask_b32 v{vBd+ii}, v7, v1, vcc")
    I(f"s_lshl_b32 s{S_MB}, s{S_W}, 11")
    c.b_dma = [(vBd + ii, S_MB, 1024 * ii) for ii in range(2)]
    I("v_lshrrev_b32 v6, 1, v3")
    I("v_xor_b32 v6, v6, v4")
    I("v_lshlrev_b32 v6, 4, v6")
    I(f"v_lshl_add_u32 v{vXb0}, v3, 7, v6")
    I(f"v_xor_b32 v{vXb1}, 64, v{vXb0}")
    I(f"s_lshr_b32 s{S_T2}, s{S_W}, 1")
    I(f"s_lshl_b32 s{S_T2}, s{S_T2}, 12")
    I(f"s_add_u32 s{S_T2}, s{S_T2}, 2048")
    I(f"v_add_u32 v{vXm0}, s{S_T2}, v{vXb0}")
    I(f"v_add_u32 v{vXm1}, s{S_T2}, v{vXb1}")
    c.xaddr = [(vXma, vXm0, vXm1), (vXha, vXb0, vXb1)]
    c.xfrag = [(0, 0), (0, 2048), (1, 0)]
    I("v_lshrrev_b32 v5, 2, v3")
    I("v_mul_u32_u24 v5, 30, v5")
    I("v_mul_u32_u24 v6, 248, v4")
    I("v_add_u32 v5, v5, v6")
    I("v_lshrrev_b32 v6, 1, v2")
    I("v_and_b32 v6, 1, v6")
    I("v_add_u32 v5, v5, v6")
    I("v_lshlrev_b32 v5, 4, v5")
    I("v_and_b32 v6, 1, v2")
    I("v_lshl_add_u32 v5, v6, 3, v5")
    I(f"s_lshl_b32 s{S_T2}, s{S_T1}, 8")
    I(f"v_add_u32 v{vW}, s{S_T2}, v5")
    hv = 0
    for w in range(8):
        hv |= (halo[w][0] | (halo[w][1] << 4)) << 0 if False else 0
    packed_lo = sum((halo[w][0] | (halo[w][1] << 4)) << (8 * w) for w in range(4))
    packed_hi = sum((halo[w][0] | (halo[w][1] << 4)) << (8 * (w - 4)) for w in range(4, 8))
    I(f"s_mov_b32 s{S_T2}, {packed_hi:#x}")
    I(f"s_cmp_lt_u32 s{S_W}, 4")
    I(f"s_cselect_b32 s{S_T2}, {packed_lo:#x}, s{S_T2}")
    I(f"s_and_b32 s{S_T3}, s{S_W}, 3")
    I(f"s_lshl_b32 s{S_T3}, s{S_T3}, 3")
    I(f"s_lshr_b32 s{S_T2}, s{S_T2}, s{S_T3}")
    for q in range(2):
        I(f"s_lshr_b32 s{S_T3}, s{S_T2}, {4*q}")
        I(f"s_and_b32 s{S_T3}, s{S_T3}, 15")
        I(f"s_lshl_b32 s{S_T0}, s{S_T3}, 5")
        I(f"v_add_u32 v{vW+1+q}, s{S_T0}, v5")
        I(f"s_mul_i32 s{S_T0}, s{S_T3}, 52")
        I(f"s_lshr_b32 s{S_T0}, s{S_T0}, 8")
        I(f"s_mul_i32 s{S_SLOT+8+q}, s{S_T0}, 5")
        I(f"s_sub_u32 s{S_T3}, s{S_T3}, s{S_SLOT+8+q}")
        I(f"s_lshl_b32 s{S_T3}, s{S_T3}, 5")
        I(f"s_mul_i32 s{S_T0}, s{S_T0}, 24192")
        I(f"s_add_u32 s{S_T0}, s{S_T0}, s{S_T3}")
        I(f"s_sub_u32 s{S_SLOT+8+q}, s{S_T0}, 2688")
    for q in range(8):
        def base(t):
            if t >= 15:
                return 70656 - 2688
            return (t // 5) * 24192 - 2688 + (t % 5) * 32
        b0, b1 = base(q) & 0xffffffff, base(8 + q) & 0xffffffff
        I(f"s_mov_b32 s{S_SLOT+q}, {b1:#x}")
        I(f"s_cmp_eq_u32 s{S_T1}, 0")
        I(f"s_cselect_b32 s{S_SLOT+q}, {b0:#x}, s{S_SLOT+q}")
    c.waddr = [(vWa, vW), (vWa + 1, vW + 1), (vWa + 2, vW + 2)]
    c.wfrag = [(0, q * 32) for q in range(8)] + [(1, 0), (2, 0)]
    c.tiles = [(c.acc0 + (q * 2 + rt) * 4, rt, q) for q in range(8) for rt in range(2)]
    c.tiles += [(c.acc0 + (16 + q) * 4, 2, 8 + q) for q in range(2)]
    build_srds()
    srd(SRD_W, P_WQKV, P_WQKV + 1, D * 3 * D * 2)
    RL_LDS = 120832
    sI, sKS, sCG, sV, sT, sD = 75, 76, 77, 78, 79, 80
    SRD_S = 84
    vRa, vRt = 202, 204
    if OPT["stamp"]:
        sD, SRD_S = 36, 84

    def relayout_issue():
        I(f"s_lshr_b32 s{sT}, s2, 3")
        I(f"s_and_b32 s{sV}, s{sT}, 3")
        I(f"s_lshr_b32 s{sT}, s{sT}, 3")
        I(f"s_lshl_b32 s{sT}, s{sT}, 2")
        I(f"s_add_u32 s{sV}, s{sV}, s{sT}")
        I(f"s_and_b32 s{sT}, s2, 7")
        I(f"s_lshl_b32 s{sT}, s{sT}, 4")
        I(f"s_add_u32 s{sV}, s{sV}, s{sT}")
        I(f"s_lshl_b32 s{sI}, s{sV}, 3")
        I(f"s_add_u32 s{sI}, s{sI}, s{S_W}")
        I(f"s_min_u32 s{sT}, s{sI}, 679")
        I(f"s_mul_i32 s{sKS}, s{sT}, 6554")
        I(f"s_lshr_b32 s{sKS}, s{sKS}, 16")
        I(f"s_mul_i32 s{sV}, s{sKS}, 10")
        I(f"s_sub_u32 s{sCG}, s{sT}, s{sV}")
        I(f"s_cmp_lt_u32 s{sKS}, 20")
        I(f"s_cselect_b32 s{SRD_S}, s{P_WO}, s{P_WD}")
        I(f"s_cselect_b32 s{SRD_S+1}, s{P_WO+1}, s{P_WD+1}")
        I(f"s_mov_b32 s{SRD_S+2}, {F*D*2}")
        I(f"s_cselect_b32 s{SRD_S+2}, {D*D*2}, s{SRD_S+2}")
        I(f"s_cselect_b32 s{sT}, 0, 20")
        I(f"s_and_b32 s{SRD_S+1}, s{SRD_S+1}, 0xffff")
        I(f"s_mov_b32 s{SRD_S+3}, 0x20000")
        I(f"s_sub_u32 s{sT}, s{sKS}, s{sT}")
        I(f"s_mul_i32 s{sT}, s{sT}, {32*1280}")
        I(f"s_lshl_b32 s{sV}, s{sCG}, 7")
        I(f"s_add_u32 s{sT}, s{sT}, s{sV}")
        I("v_lshrrev_b32 v5, 3, v2")
        I("v_and_b32 v6, 7, v2")
        I("v_and_b32 v7, 2, v5")
        I("v_xor_b32 v6, v6, v7")
        I("v_mul_u32_u24 v5, 1280, v5")
        I(f"v_lshl_add_u32 v{vRa}, v6, 4, v5")
        I("v_xor_b32 v6, 4, v6")
        I(f"v_lshl_add_u32 v{vRa+1}, v6, 4, v5")
        I(f"s_lshl_b32 s{sV}, s{S_W}, 12")
        I(f"s_add_u32 s{sV}, s{sV}, {RL_LDS}")
        for a_ in range(4):
            I(f"s_add_u32 m0, s{sV}, {1024*a_}")
            I("s_nop 0")
            I(f"buffer_load_dwordx4 v{vRa + (a_ & 1)}, s[{SRD_S}:{SRD_S+3}], s{sT} offen lds")
            if a_ < 3:
                I(f"s_add_u32 s{sT}, s{sT}, {8*1280}")
        I("v_lshrrev_b32 v5, 2, v3")
        I("v_lshl_add_u32 v6, v4, 3, v5")
        I("v_lshlrev_b32 v6, 7, v6")
        I("v_and_b32 v7, 1, v2")
        I("v_lshl_add_u32 v6, v7, 3, v6")
        I(f"v_add_u32 v6, s{sV}, v6")
        I("v_and_b32 v5, 2, v5")
        I("v_and_b32 v7, 1, v4")
        I("v_lshl_or_b32 v5, v7, 2, v5")
        I("v_lshrrev_b32 v7, 1, v2")
        I("v_and_b32 v7, 1, v7")
        for ct in range(4):
            I(f"v_add_u32 v1, {2*ct}, v7")
            I("v_xor_b32 v1, v1, v5")
            I(f"v_lshl_add_u32 v{vRt+ct}, v1, 4, v6")
        for ct in range(4):
            I(f"s_lshl_b32 s{sT}, s{sCG}, 2")
            I(f"s_add_u32 s{sT}, s{sT}, {ct}")
            I(f"s_mul_i32 s{sV}, s{sT}, 52")
            I(f"s_lshr_b32 s{sV}, s{sV}, 8")
            I(f"s_mul_i32 s{sD+ct}, s{sV}, 5")
            I(f"s_sub_u32 s{sT}, s{sT}, s{sD+ct}")
            I(f"s_mul_i32 s{sV}, s{sV}, 68")
            I(f"s_add_u32 s{sV}, s{sV}, s{sKS}")
            I(f"s_mul_i32 s{sV}, s{sV}, 5")
            I(f"s_add_u32 s{sV}, s{sV}, s{sT}")
            I(f"s_lshl_b32 s{sV}, s{sV}, 10")
            I(f"s_add_u32 s{sD+ct}, s{sV}, {W2_OFF - A2_OFF}")
        return 4

    c.after_prologue = relayout_issue
    k1_mainloop(c, "qkv")
    for ct in range(4):
        r = 208 + 4 * ct
        I(f"ds_read_b64_tr_b16 v[{r}:{r+1}], v{vRt+ct}")
        I(f"ds_read_b64_tr_b16 v[{r+2}:{r+3}], v{vRt+ct} offset:512")
    I("v_lshlrev_b32 v1, 4, v2")
    for ct in range(4):
        r = 208 + 4 * ct
        I(f"s_waitcnt lgkmcnt({2*(3-ct)})")
        I(f"buffer_store_dwordx4 v[{r}:{r+3}], v1, s[{SRD_A2}:{SRD_A2+3}], s{sD+ct} offen")
    I("s_nop 7")
    I(f"s_lshr_b32 s{S_T1}, s{S_W}, 1")
    I(f"s_mul_i32 s{S_T1}, s{S_T1}, {32*168}")
    I(f"s_add_u32 s{S_T1}, s{S_T1}, {16*168}")
    I("v_mul_u32_u24 v5, 168, v3")
    I("v_lshl_add_u32 v5, v4, 3, v5")
    I(f"v_add_u32 v6, s{S_T1}, v5")
    for q in range(8):
        for rt in range(2):
            a = c.acc0 + (q * 2 + rt) * 4
            I(f"v_cvt_pk_bf16_f32 v{a}, v{a}, v{a+1}")
            I(f"v_cvt_pk_bf16_f32 v{a+1}, v{a+2}, v{a+3}")
            if rt == 0:
                I(f"v_add_u32 v7, s{S_SLOT+q}, v6")
            I(f"ds_write_b64 v7, v[{a}:{a+1}] offset:{rt*16*168}")
    for q in range(2):
        a = c.acc0 + (16 + q) * 4
        I(f"v_cvt_pk_bf16_f32 v{a}, v{a}, v{a+1}")
        I(f"v_cvt_pk_bf16_f32 v{a+1}, v{a+2}, v{a+3}")
        I(f"v_add_u32 v7, s{S_SLOT+8+q}, v5")
        I(f"ds_write_b64 v7, v[{a}:{a+1}]")
    I("s_waitcnt lgkmcnt(0)")
    I("s_barrier")
    KOFF, VOFF = 21504, 45696
    I(f"s_and_b32 s{S_T0}, s{S_W}, 1")
    I(f"s_lshl_b32 s{S_T0}, s{S_T0}, 6")
    I(f"v_add_u32 v5, s{S_T0}, v2")
    I(f"v_add_u32 v6, s{S_M0}, v5")
    I("v_mul_u32_u24 v5, 168, v5")
    I(f"s_lshr_b32 s{S_T1}, s{S_W}, 1")
    I(f"s_mul_i32 s{S_T2}, s{S_T1}, 40")
    I(f"v_add_u32 v5, s{S_T2}, v5")
    Q = 8
    KV = 20
    LG = 100
    O = 110
    for i in range(5):
        I(f"ds_read_b64 v[{Q+2*i}:{Q+2*i+1}], v5 offset:{8*i}")
    for wi in range(8):
        for i in range(5):
            off = KOFF + (16 - 2 * wi) * 168 + 8 * i
            I(f"ds_read_b64 v[{KV+10*wi+2*i}:{KV+10*wi+2*i+1}], v5 offset:{off}")
    I(f"s_mov_b32 s{S_SCALE}, 0x3e64f92e")
    I(f"s_mov_b32 s{S_L2E}, 0x3fb8aa3b")
    I(f"s_mov_b32 s{S_SEL_LO}, 0x05040100")
    I(f"s_mov_b32 s{S_SEL_HI}, 0x07060302")
    I("s_waitcnt lgkmcnt(0)")
    for i in range(10):
        for wi in range(8):
            src = "0" if i == 0 else f"v{LG+wi}"
            I(f"v_dot2_f32_bf16 v{LG+wi}, v{Q+i}, v{KV+10*wi+i}, {src}")
    I("s_nop 3")
    for wi in range(8):
        for i in range(5):
            off = VOFF + (16 - 2 * wi) * 168 + 8 * i
            I(f"ds_read_b64 v[{KV+10*wi+2*i}:{KV+10*wi+2*i+1}], v5 offset:{off}")
    for p in range(4):
        a, b = LG + 2 * p, LG + 2 * p + 1
        bf16_round_pair(a, b, 7)
        I(f"v_mul_f32 v{a}, s{S_SCALE}, v{a}")
        I(f"v_mul_f32 v{b}, s{S_SCALE}, v{b}")
        bf16_round_pair(a, b, 7)
    I("v_mov_b32 v7, 0xce6e6b28")
    for wi in range(1, 8):
        I(f"v_cmp_le_u32 vcc, {2*wi}, v6")
        I("s_nop 1")
        I(f"v_cndmask_b32 v{LG+wi}, v7, v{LG+wi}, vcc")
    I(f"v_max3_f32 v7, v{LG}, v{LG+1}, v{LG+2}")
    I(f"v_max3_f32 v7, v7, v{LG+3}, v{LG+4}")
    I(f"v_max3_f32 v7, v7, v{LG+5}, v{LG+6}")
    I(f"v_max_f32 v7, v7, v{LG+7}")
    for wi in range(8):
        I(f"v_sub_f32 v{LG+wi}, v{LG+wi}, v7")
        I(f"v_mul_f32 v{LG+wi}, s{S_L2E}, v{LG+wi}")
    for wi in range(8):
        I(f"v_exp_f32 v{LG+wi}, v{LG+wi}")
    I("s_nop 0")
    I(f"v_add_f32 v7, v{LG}, v{LG+1}")
    for wi in range(2, 8):
        I(f"v_add_f32 v7, v7, v{LG+wi}")
    I("v_rcp_f32 v7, v7")
    I("s_nop 0")
    for wi in range(8):
        I(f"v_mul_f32 v{LG+wi}, v{LG+wi}, v7")
    for p in range(4):
        I(f"v_cvt_pk_bf16_f32 v{LG+p}, v{LG+2*p}, v{LG+2*p+1}")
    I("s_waitcnt lgkmcnt(0)")
    T = 130
    for p in range(4):
        for i in range(10):
            A_ = KV + 10 * (2 * p) + i
            B_ = KV + 10 * (2 * p + 1) + i
            t0 = T + 2 * (i % 4)
            I(f"v_perm_b32 v{t0}, v{B_}, v{A_}, s{S_SEL_LO}")
            I(f"v_perm_b32 v{t0+1}, v{B_}, v{A_}, s{S_SEL_HI}")
            s0 = "0" if p == 0 else f"v{O+2*i}"
            s1 = "0" if p == 0 else f"v{O+2*i+1}"
            I(f"v_dot2_f32_bf16 v{O+2*i}, v{t0}, v{LG+p}, {s0}")
            I(f"v_dot2_f32_bf16 v{O+2*i+1}, v{t0+1}, v{LG+p}, {s1}")
    I("s_nop 3")
    for i in range(10):
        I(f"v_cvt_pk_bf16_f32 v{Q+i}, v{O+2*i}, v{O+2*i+1}")
    I("v_lshrrev_b32 v5, 4, v6")
    I("v_mul_u32_u24 v5, 69632, v5")
    I("v_and_b32 v7, 15, v6")
    I("v_lshl_add_u32 v5, v7, 4, v5")
    I(f"s_lshl_b32 s{S_T0}, s{S_CB}, 2")
    I(f"s_add_u32 s{S_T0}, s{S_T0}, s{S_T1}")
    I(f"s_mul_i32 s{S_T0}, s{S_T0}, 5")
    for i in range(5):
        I(f"s_add_u32 s{S_T2}, s{S_T0}, {i}")
        I(f"s_lshr_b32 s{S_T3}, s{S_T2}, 1")
        I(f"s_lshl_b32 s{S_T3}, s{S_T3}, 8")
        I(f"s_and_b32 s{S_T2}, s{S_T2}, 1")
        I(f"s_lshl_b32 s{S_T2}, s{S_T2}, 3")
        I(f"s_add_u32 s{S_T2}, s{S_T2}, s{S_T3}")
        I(f"buffer_store_dwordx2 v[{Q+2*i}:{Q+2*i+1}], v5, s[{SRD_A2}:{SRD_A2+3}], s{S_T2} offen")
    if OPT["stamp"]:
        stamp()
        I("s_waitcnt vmcnt(0)")
        stamp()
        stamp_flush(0, 0)
    L("k1_done")
    I("s_endpgm")
    kd(name, 256, 96)


def gen_k2():
    name = "gemm2_kernel"
    kstart(name)
    I("s_cmp_ge_u32 s2, 256")
    I("s_cbranch_scc1 k2_done")
    stamp_init()
    stamp()
    load_kernargs()
    S_RB_, S_CB_, S_M0_, S_N0B, S_W_ = 4, 5, 6, 7, 8
    S_KS, S_STEP, S_N, S_AG_, S_BG_, S_END = 9, 10, 11, 12, 13, 14
    SRD_A, SRD_B, SRD_X, SRD_O = 40, 44, 48, 52
    T0, T1, T2 = 56, 57, 58
    I(f"s_and_b32 s{T0}, s2, 7")
    I(f"s_lshr_b32 s{T1}, s2, 3")
    I(f"s_lshr_b32 s{S_RB_}, s{T0}, 1")
    I(f"s_lshl_b32 s{S_RB_}, s{S_RB_}, 3")
    I(f"s_lshr_b32 s{T2}, s{T1}, 2")
    I(f"s_add_u32 s{S_RB_}, s{S_RB_}, s{T2}")
    I(f"s_and_b32 s{S_CB_}, s{T0}, 1")
    I(f"s_lshl_b32 s{S_CB_}, s{S_CB_}, 2")
    I(f"s_and_b32 s{T2}, s{T1}, 3")
    I(f"s_add_u32 s{S_CB_}, s{S_CB_}, s{T2}")
    I(f"s_lshl_b32 s{S_M0_}, s{S_RB_}, 6")
    I(f"s_mul_i32 s{S_N0B}, s{S_CB_}, 160")
    I("v_lshrrev_b32 v1, 6, v0")
    I("v_and_b32 v2, 63, v0")
    I(f"v_readfirstlane_b32 s{S_W_}, v1")
    I("v_and_b32 v3, 15, v2")
    I("v_lshrrev_b32 v4, 4, v2")
    ACC = 160
    FR = [8, 44, 80, 116]
    vA = 152
    vB = 156
    XR = 240
    I("v_lshlrev_b32 v5, 4, v2")
    I(f"s_mul_i32 s{T0}, s{S_RB_}, {4*69632 if not (OPT['k2_same'] & 1) else 0}")
    I(f"v_add_u32 v{vA}, s{T0}, v5")
    for rt in range(1, 4):
        I(f"v_add_u32 v{vA+rt}, {69632*rt}, v{vA}")
    I(f"s_mul_i32 s{T0}, s{S_CB_}, {68*5120 if not (OPT['k2_same'] & 2) else 0}")
    I(f"v_add_u32 v{vB}, s{T0}, v5")
    I(f"v_add_u32 v{vB+1}, 4096, v{vB}")
    I(f"s_cmp_lt_u32 s{S_W_}, 2")
    I(f"s_cselect_b32 s{S_STEP}, 2, 6")
    I(f"s_cselect_b32 s{S_N}, 3, 2")
    I(f"s_cselect_b32 s{S_END}, 20, 68")
    I(f"s_cselect_b32 s{T0}, 0, 18")
    I(f"s_add_u32 s{S_KS}, s{S_W_}, s{T0}")
    I(f"v_add_u32 v5, s{S_M0_}, v2")
    I("v_mul_u32_u24 v5, 1280, v5")
    I(f"s_lshl_b32 s{T0}, s{S_W_}, 3")
    I(f"s_add_u32 s{T0}, s{T0}, s{S_N0B}")
    I(f"v_add_u32 v{XR+6}, s{T0}, v5")
    I(f"s_cmp_lt_u32 s{S_W_}, 4")
    I(f"s_cselect_b32 s{T0}, 128, 0x40000000")
    I(f"v_add_u32 v{XR+7}, s{T0}, v{XR+6}")
    I("s_waitcnt lgkmcnt(0)")
    srd(SRD_A, P_WS, P_WS + 1, A2_BYTES, add=A2_OFF)
    srd(SRD_B, P_WS, P_WS + 1, W2_BYTES, add=W2_OFF)
    srd(SRD_X, P_X, P_X + 1, XN_BYTES)
    srd(SRD_O, P_OUT, P_OUT + 1, XN_BYTES)
    stamp()

    def issue(fs):
        I(f"s_lshl_b32 s{S_AG_}, s{S_KS}, 10")
        I(f"s_mul_i32 s{S_BG_}, s{S_KS}, 5120")
        for rt in range(4):
            r = FR[fs] + 4 * rt
            I(f"buffer_load_dwordx4 v[{r}:{r+3}], v{vA+rt}, s[{SRD_A}:{SRD_A+3}], s{S_AG_} offen")
        for ct in range(5):
            r = FR[fs] + 16 + 4 * ct
            if ct < 4:
                I(f"buffer_load_dwordx4 v[{r}:{r+3}], v{vB}, s[{SRD_B}:{SRD_B+3}], s{S_BG_} offen offset:{ct*1024}")
            else:
                I(f"buffer_load_dwordx4 v[{r}:{r+3}], v{vB+1}, s[{SRD_B}:{SRD_B+3}], s{S_BG_} offen")
        I(f"s_add_u32 s{S_KS}, s{S_KS}, s{S_STEP}")

    I(f"buffer_load_dwordx2 v[{XR}:{XR+1}], v{XR+6}, s[{SRD_X}:{SRD_X+3}], 0 offen")
    I(f"buffer_load_dwordx2 v[{XR+2}:{XR+3}], v{XR+6}, s[{SRD_X}:{SRD_X+3}], 0 offen offset:64")
    I(f"buffer_load_dwordx2 v[{XR+4}:{XR+5}], v{XR+7}, s[{SRD_X}:{SRD_X+3}], 0 offen")
    for fs in range(4):
        issue(fs)
    stamp()
    for r in range(ACC, ACC + 80):
        I(f"v_mov_b32 v{r}, 0")

    def compute(fs):
        for ct in range(5):
            for rt in range(4):
                a = ACC + (rt * 5 + ct) * 4
                w = FR[fs] + 16 + 4 * ct
                x = FR[fs] + 4 * rt
                if not OPT["k2_nomfma"]:
                    I(f"v_mfma_f32_16x16x32_bf16 v[{a}:{a+3}], v[{w}:{w+3}], v[{x}:{x+3}], v[{a}:{a+3}]")

    def body(n):
        for j in range(n):
            left = min(n - 1 - j, 3)
            I(f"s_waitcnt vmcnt({9*left})")
            compute(j % 4)
            if j + 4 < n:
                issue(j % 4)

    I(f"s_cmp_lt_u32 s{S_W_}, 2")
    I("s_cbranch_scc0 k2_h")
    body(10)
    I("s_branch k2_join")
    L("k2_h")
    body(8)
    L("k2_join")
    stamp()
    I(f"s_mul_i32 s{T0}, s{S_W_}, 20480")
    I("v_lshlrev_b32 v5, 10, v4")
    I("v_lshl_add_u32 v5, v3, 4, v5")
    I(f"v_add_u32 v5, s{T0}, v5")
    I("s_nop 4")
    for rt in range(4):
        for ct in range(5):
            a = ACC + (rt * 5 + ct) * 4
            I(f"ds_write_b128 v5, v[{a}:{a+3}] offset:{ct*4096 + rt*256}")
    I("s_waitcnt lgkmcnt(0)")
    I("s_barrier")
    stamp()
    I(f"s_lshl_b32 s{T0}, s{S_W_}, 10")
    I("v_lshlrev_b32 v5, 4, v2")
    I(f"v_add_u32 v5, s{T0}, v5")
    for i in range(1, 4):
        I(f"v_add_u32 v{248+i}, {2*20480*i}, v5")
    I("v_mov_b32 v248, v5")
    for j in range(3):
        for p in range(8):
            r = 8 + (j * 8 + p) * 4
            I(f"ds_read_b128 v[{r}:{r+3}], v{248 + p // 2} offset:{(p % 2) * 20480 + j * 8192}")
    I("s_waitcnt vmcnt(0) lgkmcnt(0)")
    for j in range(3):
        b = 8 + j * 32
        for r in range(4):
            I(f"v_add_f32 v{b+r}, v{b+r}, v{b+4+r}")
            I(f"v_add_f32 v{b+8+r}, v{b+8+r}, v{b+12+r}")
            I(f"v_add_f32 v{b+16+r}, v{b+16+r}, v{b+20+r}")
            I(f"v_add_f32 v{b+24+r}, v{b+24+r}, v{b+28+r}")
            I(f"v_add_f32 v{b+8+r}, v{b+8+r}, v{b+16+r}")
            I(f"v_add_f32 v{b+8+r}, v{b+8+r}, v{b+24+r}")
        bf16_round_pair(b, b + 1, 7)
        bf16_round_pair(b + 2, b + 3, 7)
        bf16_round_pair(b + 8, b + 9, 7)
        bf16_round_pair(b + 10, b + 11, 7)
        xr = XR + 2 * j
        I(f"v_lshlrev_b32 v{b+4}, 16, v{xr}")
        I(f"v_and_b32 v{b+5}, 0xffff0000, v{xr}")
        I(f"v_lshlrev_b32 v{b+6}, 16, v{xr+1}")
        I(f"v_and_b32 v{b+7}, 0xffff0000, v{xr+1}")
        for r in range(4):
            I(f"v_add_f32 v{b+r}, v{b+r}, v{b+4+r}")
        bf16_round_pair(b, b + 1, 7)
        bf16_round_pair(b + 2, b + 3, 7)
        for r in range(4):
            I(f"v_add_f32 v{b+r}, v{b+r}, v{b+8+r}")
        I(f"v_cvt_pk_bf16_f32 v{xr}, v{b}, v{b+1}")
        I(f"v_cvt_pk_bf16_f32 v{xr+1}, v{b+2}, v{b+3}")
        if j < 2:
            I(f"buffer_store_dwordx2 v[{xr}:{xr+1}], v{XR+6}, s[{SRD_O}:{SRD_O+3}], 0 offen offset:{64*j}")
        else:
            I(f"buffer_store_dwordx2 v[{xr}:{xr+1}], v{XR+7}, s[{SRD_O}:{SRD_O+3}], 0 offen")
    if OPT["stamp"]:
        stamp()
        I("s_waitcnt vmcnt(0)")
        stamp()
        if OPT["stamp"] == 2:
            stamp_flush_waves(OPT.get("wg", 0))
        else:
            stamp_flush(0, 0)
    L("k2_done")
    I("s_endpgm")
    kd(name, 256, 64)


def header():
    ref = open(f"cdna_kernels/{NAME}.s.ref").read().splitlines()
    for line in ref:
        if line.startswith("; @launch"):
            break
        e(line)
    e(f"; @launch kernel=prep_kernel grid=({K0_GRID},1,1) block=(512,1,1) lds=0")
    e("; @launch kernel=gemm1_kernel grid=(256,1,1) block=(512,1,1) lds=153600")
    e("; @launch kernel=gemm2_kernel grid=(256,1,1) block=(512,1,1) lds=163840")
    e('.amdgcn_target "amdgcn-amd-amdhsa--gfx950"')
    e(".text")


def selfcheck():
    for p_ in range(1024):
        assert (p_ * 1058) >> 18 == p_ // 248
    for p_ in range(248):
        assert (p_ * 2185) >> 16 == p_ // 30
    for p_ in range(768):
        assert (p_ * 2731) >> 16 == p_ // 24
    for p_ in range(680):
        assert (p_ * 6554) >> 16 == p_ // 10
    for i in range(600):
        assert (i * 3277) >> 16 == i // 20
    for i in range(480):
        assert (i * 6554) >> 16 == i // 10
        assert (i * 2731) >> 16 == i // 24
    for i in range(600):
        assert (i * 2185) >> 16 == i // 30
    for t in range(40):
        assert (t * 52) >> 8 == t // 5
    for t in range(24):
        assert (t * 86) >> 8 == t // 3
    for t in range(30):
        assert (t * 26) >> 8 == t // 10


selfcheck()
header()
gen_k0()
gen_k1()
gen_k2()
path = f"cdna_kernels/{NAME}.s"
for a in sys.argv[1:]:
    if a.startswith("-o"):
        path = a[2:]
open(path, "w").write("\n".join(out) + "\n")
print("wrote", path, len(out), "lines")
```

```python
import sys

NAME = "parallel_sum__sliding_local_dilated__glu_gated_glu__prompt"

S = 2048
D = 640
F = 1536
XN_BYTES = S * D * 2
XN_OFF = 0
A2_OFF = XN_BYTES
A2_BYTES = 128 * 68 * 1024
W2_OFF = A2_OFF + A2_BYTES
W2_BYTES = 8 * 68 * 5 * 1024
WS_USED = W2_OFF + W2_BYTES
FLG_OFF = WS_USED
FLG_BYTES = 2048

OPT = dict(round_gu=1, stamp=0, k2_same=0, k2_nomfma=0, k2_map=0, k0_mode=0, stagger=1, rpm=2, x_noreads=0, x_nobar=0, x_nodma=0, pf_rows=256, poll_max=100000, tagwin=500, sleep=2, probe=0, probe_all=0)
for a in sys.argv[1:]:
    if "=" in a:
        k, v = a.split("=")
        OPT[k] = int(v)

out = []


def e(s=""):
    out.append(s)


def I(s):
    out.append("    " + s)


def L(s):
    out.append(s + ":")


def srd(dst, lo, hi, nbytes, add=0):
    if add:
        I(f"s_add_u32 s{dst}, s{lo}, {add}")
        I(f"s_addc_u32 s{dst+1}, s{hi}, 0")
        I(f"s_and_b32 s{dst+1}, s{dst+1}, 0xffff")
    else:
        I(f"s_mov_b32 s{dst}, s{lo}")
        I(f"s_and_b32 s{dst+1}, s{hi}, 0xffff")
    I(f"s_mov_b32 s{dst+2}, {nbytes}")
    I(f"s_mov_b32 s{dst+3}, 0x20000")


P_X, P_WQKV, P_WO, P_BX, P_WG, P_WU, P_WD, P_OUT, P_DBG, P_WS = 16, 18, 20, 22, 24, 26, 28, 30, 32, 34

STAMPS = 0


def stamp_init():
    global STAMPS
    STAMPS = 0
    if OPT["stamp"] in (1, 2):
        I("s_memrealtime s[96:97]")


def stamp():
    global STAMPS
    if OPT["stamp"] in (1, 2):
        I(f"s_memtime s[{80+2*STAMPS}:{81+2*STAMPS}]")
        STAMPS += 1


def stamp_flush(wgsel, base=0):
    if OPT["stamp"] not in (1, 2):
        return
    I("s_memrealtime s[98:99]")
    I("s_waitcnt lgkmcnt(0)")
    lab = f"st_skip_{len(out)}"
    I(f"s_cmp_lg_u32 s2, {wgsel}")
    I(f"s_cbranch_scc1 {lab}")
    I("v_cmp_eq_u32 vcc, 0, v0")
    I("s_and_saveexec_b64 s[100:101], vcc")
    I(f"s_cbranch_execz {lab}")
    srd(76, P_DBG, P_DBG + 1, 256)
    I("v_mov_b32 v1, 0")
    regs = [96, 98] + [80 + 2 * i for i in range(STAMPS)]
    for i, r in enumerate(regs):
        I(f"v_mov_b32 v2, s{r}")
        I(f"buffer_store_dword v2, v1, s[76:79], 0 offen offset:{base+4*i}")
    L(lab)


def stamp_flush_waves(wgsel):
    if not OPT["stamp"]:
        return
    I("s_waitcnt lgkmcnt(0)")
    lab = f"st_skipw_{len(out)}"
    I(f"s_cmp_lg_u32 s2, {wgsel}")
    I(f"s_cbranch_scc1 {lab}")
    I("v_and_b32 v1, 63, v0")
    I("v_cmp_eq_u32 vcc, 0, v1")
    I("v_lshrrev_b32 v1, 1, v0")
    I("s_and_saveexec_b64 s[100:101], vcc")
    I(f"s_cbranch_execz {lab}")
    srd(76, P_DBG, P_DBG + 1, 256)
    regs = [80 + 2 * i for i in range(STAMPS)][:8]
    for i, r in enumerate(regs):
        I(f"v_mov_b32 v2, s{r}")
        I(f"buffer_store_dword v2, v1, s[76:79], 0 offen offset:{4*i}")
    L(lab)


RT = 0
def rt_stamp():
    global RT
    if OPT["stamp"] == 4:
        I("s_memrealtime s[96:97]")
        I("s_waitcnt lgkmcnt(0)")
        I(f"v_writelane_b32 v252, s96, {RT}")
        RT += 1

def rt_flush(off):
    global RT
    if OPT["stamp"] != 4:
        return
    I("s_waitcnt vmcnt(0)")
    rt_stamp()
    I("s_getreg_b32 s3, hwreg(HW_REG_XCC_ID)")
    I("v_writelane_b32 v252, s3, 7")
    lab = f"rt_skip_{len(out)}"
    I("v_cmp_gt_u32 vcc, 8, v0")
    I("s_and_saveexec_b64 s[100:101], vcc")
    I(f"s_cbranch_execz {lab}")
    srd(96, P_WS, P_WS + 1, 0x8000000)
    I("s_lshl_b32 s3, s2, 5")
    I(f"s_add_u32 s3, s3, {off}")
    I("v_lshlrev_b32 v1, 2, v0")
    I("buffer_store_dword v252, v1, s[96:99], s3 offen")
    L(lab)


def kd(name, vgpr, sgpr):
    if OPT["stamp"]:
        sgpr = 102
    acc = (vgpr + 3) // 4 * 4
    e('.section .rodata,"a"')
    e(".p2align 6")
    e(f".amdhsa_kernel {name}")
    e(f"  .amdhsa_next_free_vgpr {vgpr}")
    e(f"  .amdhsa_next_free_sgpr {sgpr}")
    e(f"  .amdhsa_accum_offset {acc}")
    e("  .amdhsa_group_segment_fixed_size 0")
    e("  .amdhsa_kernarg_size 80")
    e("  .amdhsa_user_sgpr_count 2")
    e("  .amdhsa_user_sgpr_kernarg_segment_ptr 1")
    e("  .amdhsa_system_sgpr_workgroup_id_x 1")
    e(".end_amdhsa_kernel")
    e(".text")


def kstart(name):
    e(f".globl {name}")
    e(".p2align 8")
    e(f".type {name},@function")
    L(name)


def load_kernargs():
    I("s_load_dwordx16 s[16:31], s[0:1], 0")
    I("s_load_dwordx4 s[32:35], s[0:1], 64")


def bf16_round_pair(a, b, t):
    I(f"v_cvt_pk_bf16_f32 v{t}, v{a}, v{b}")
    I(f"v_lshlrev_b32 v{a}, 16, v{t}")
    I(f"v_and_b32 v{b}, 0xffff0000, v{t}")


def wave_allreduce(v, sbase):
    for ctrl in ("quad_perm:[1,0,3,2]", "quad_perm:[2,3,0,1]", "row_half_mirror", "row_mirror"):
        I("s_nop 1")
        I(f"v_add_f32_dpp v{v}, v{v}, v{v} {ctrl} row_mask:0xf bank_mask:0xf")
    I("s_nop 1")
    for i in range(4):
        I(f"v_readlane_b32 s{sbase+i}, v{v}, {16*i}")
    I("s_nop 1")
    I(f"v_mov_b32 v{v}, s{sbase}")
    I(f"v_add_f32 v{v}, s{sbase+1}, v{v}")
    I(f"v_add_f32 v{v}, s{sbase+2}, v{v}")
    I(f"v_add_f32 v{v}, s{sbase+3}, v{v}")


K0_GRID = 256


def gen_k0():
    name = "prep_kernel"
    kstart(name)
    I(f"s_cmp_ge_u32 s2, {K0_GRID}")
    I("s_cbranch_scc1 k0_done")
    I("s_load_dwordx16 s[16:31], s[0:1], 0")
    I("s_load_dwordx2 s[34:35], s[0:1], 72")
    I("v_lshrrev_b32 v1, 6, v0")
    I("v_and_b32 v2, 63, v0")
    I("s_and_b32 s4, s2, 7")
    I("s_lshr_b32 s5, s2, 3")
    I("s_lshr_b32 s6, s4, 1")
    I("s_lshl_b32 s6, s6, 6")
    I("s_and_b32 s4, s4, 1")
    I("s_lshl_b32 s4, s4, 5")
    I("s_add_u32 s6, s6, s4")
    I("s_add_u32 s6, s6, s5")
    I("s_lshl_b32 s3, s6, 3")
    I("v_add_u32 v1, s3, v1")
    I("v_mul_u32_u24 v3, 1280, v1")
    I("v_lshl_add_u32 v3, v2, 2, v3")
    I("s_waitcnt lgkmcnt(0)")
    srd(36, P_X, P_X + 1, XN_BYTES)
    srd(40, P_WS, P_WS + 1, XN_BYTES)
    for i in range(5):
        I(f"buffer_load_dword v{4+i}, v3, s[36:39], 0 offen offset:{256*i}")
    npf = 0
    if OPT["pf_rows"]:
        R = OPT["pf_rows"]
        I("s_lshl_b32 s7, s2, 3")
        I("v_lshrrev_b32 v9, 6, v0")
        I("v_add_u32 v9, s7, v9")
        I("v_lshlrev_b32 v9, 10, v9")
        I("v_lshl_add_u32 v9, v2, 4, v9")
        srd(44, P_WQKV, P_WQKV + 1, R * 3840)
        srd(48, P_WG, P_WG + 1, R * 3072)
        srd(52, P_WU, P_WU + 1, R * 3072)
        I("buffer_load_dwordx4 v[24:27], v9, s[44:47], 0 offen")
        I("buffer_load_dwordx4 v[28:31], v9, s[48:51], 0 offen")
        I("buffer_load_dwordx4 v[32:35], v9, s[52:55], 0 offen")
        npf = 3
        if R * 3840 > 2048 * 1024:
            I("s_mov_b32 s56, 0x200000")
            I("buffer_load_dwordx4 v[36:39], v9, s[44:47], s56 offen")
            npf = 4
    I(f"s_waitcnt vmcnt({npf})")
    for i in range(5):
        I(f"v_lshlrev_b32 v{10+2*i}, 16, v{4+i}")
        I(f"v_and_b32 v{11+2*i}, 0xffff0000, v{4+i}")
    I("v_add_f32 v20, v10, v11")
    for i in range(2, 10):
        I(f"v_add_f32 v20, v20, v{10+i}")
    wave_allreduce(20, 4)
    I("v_mul_f32 v20, 0x3acccccd, v20")
    I("v_sub_f32 v22, v10, v20")
    I("v_mul_f32 v21, v22, v22")
    for i in range(1, 10):
        I(f"v_sub_f32 v22, v{10+i}, v20")
        I("v_fmac_f32 v21, v22, v22")
    wave_allreduce(21, 4)
    I("v_mul_f32 v21, 0x3acccccd, v21")
    I("v_cvt_pk_bf16_f32 v22, v20, v21")
    I("v_lshlrev_b32 v20, 16, v22")
    I("v_and_b32 v21, 0xffff0000, v22")
    I("v_add_f32 v21, 0x3727c5ac, v21")
    I("v_cvt_pk_bf16_f32 v21, v21, v21")
    I("v_lshlrev_b32 v21, 16, v21")
    I("v_sqrt_f32 v21, v21")
    I("s_nop 0")
    I("v_cvt_pk_bf16_f32 v21, v21, v21")
    I("v_lshlrev_b32 v21, 16, v21")
    I("v_rcp_f32 v21, v21")
    I("s_nop 0")
    for i in range(5):
        a, b = 10 + 2 * i, 11 + 2 * i
        I(f"v_sub_f32 v{a}, v{a}, v20")
        I(f"v_sub_f32 v{b}, v{b}, v20")
        I(f"v_cvt_pk_bf16_f32 v22, v{a}, v{b}")
        I(f"v_lshlrev_b32 v{a}, 16, v22")
        I(f"v_and_b32 v{b}, 0xffff0000, v22")
        I(f"v_mul_f32 v{a}, v{a}, v21")
        I(f"v_mul_f32 v{b}, v{b}, v21")
        I(f"v_cvt_pk_bf16_f32 v{4+i}, v{a}, v{b}")
        I(f"buffer_store_dword v{4+i}, v3, s[40:43], 0 offen offset:{256*i}")
    L("k0_done")
    I("s_endpgm")
    kd(name, 40, 64)


S_CB, S_RB, S_TYPE, S_M0, S_W = 4, 5, 6, 7, 8
S_AR, S_ARN, S_BR, S_BW = 9, 10, 11, 12
S_AG, S_BG = 13, 14
S_IT = 15
SRD_XN, SRD_A2, SRD_W = 40, 44, 48
S_T0, S_T1, S_T2, S_T3 = 52, 53, 54, 55
S_MA, S_MB, S_MH = 56, 57, 58
S_AW = 59
S_SLOT = 60
S_SEL_LO, S_SEL_HI, S_SCALE, S_L2E = 70, 71, 72, 73
S_BG0 = 74
SRD_X, SRD_FLG, S_LNROW, S_LNCNT, S_FB, S_POLL = 36, 88, 92, 93, 94, 95
S_TMIN, S_J = 98, 74


class K1Cfg:
    pass


def k1_mainloop(c, tag):
    a = len(c.a_dma)
    b = len(c.b_dma)

    def dma_list(kind, slot_sreg):
        res = []
        last = None
        lst = c.a_dma if kind == "A" else c.b_dma
        for (v, sm, off) in lst:
            setup = None
            if sm != last:
                setup = f"s_add_u32 m0, s{slot_sreg}, s{sm}"
                last = sm
            if kind == "A":
                ins = f"buffer_load_dwordx4 v{v}, s[{SRD_XN}:{SRD_XN+3}], s{S_AG} offen offset:{off} sc1 lds"
            else:
                ins = f"buffer_load_dwordx4 v{v}, s[{SRD_W}:{SRD_W+3}], s{S_BG} offen offset:{off} lds"
            res.append((setup, ins))
        return res

    def emit_dma_now(kind, slot_sreg):
        for (setup, ins) in dma_list(kind, slot_sreg):
            if setup:
                I(setup)
                I("s_nop 0")
            I(ins)

    adv_a = [f"s_add_u32 s{S_AG}, s{S_AG}, 128"]
    adv_b = [f"s_add_u32 s{S_BG}, s{S_BG}, {c.bstage_g}"]

    def ring_next(sreg, size, n, base):
        I(f"s_add_u32 s{sreg}, s{sreg}, {size}")
        I(f"s_cmp_ge_u32 s{sreg}, {base + size * n}")
        I(f"s_cselect_b32 s{sreg}, {base}, s{sreg}")

    def frag_reads(fs, khalf, s_a, s_b):
        pre = []
        for (dyn, st0, st1) in c.xaddr:
            pre.append(f"v_add_u32 v{dyn}, s{s_a}, v{st1 if khalf else st0}")
        for (dyn, st) in c.waddr:
            pre.append(f"v_add_u32 v{dyn}, s{s_b}, v{st}")
        rd = []
        for i, (ai, off) in enumerate(c.xfrag):
            r = c.XF[fs] + 4 * i
            rd.append(f"ds_read_b128 v[{r}:{r+3}], v{c.xaddr[ai][0]} offset:{off}")
        for i, (ai, off) in enumerate(c.wfrag):
            r = c.WF[fs] + 4 * i
            rd.append(f"ds_read_b64_tr_b16 v[{r}:{r+1}], v{c.waddr[ai][0]} offset:{off}")
            rd.append(f"ds_read_b64_tr_b16 v[{r+2}:{r+3}], v{c.waddr[ai][0]} offset:{off + c.wrow4}")
        return pre, rd

    def mfmas(fs):
        res = []
        for (acc, xi, wi) in c.tiles:
            x = c.XF[fs] + 4 * xi
            w = c.WF[fs] + 4 * wi
            res.append(f"v_mfma_f32_16x16x32_bf16 v[{acc}:{acc+3}], v[{w}:{w+3}], v[{x}:{x+3}], v[{acc}:{acc+3}]")
        return res

    global STAMPS
    STAMPS = 2
    stamp()
    FLAG_LDS = 153600
    srd(SRD_FLG, P_WS, P_WS + 1, FLG_BYTES, add=FLG_OFF)
    I(f"s_mov_b32 s{S_LNCNT}, 1")
    I(f"s_mov_b32 s{S_FB}, 0")
    I(f"s_mov_b32 s{S_AG}, 0")
    I(f"s_mov_b32 s{S_BG}, 0")
    I(f"s_branch {tag}_ln_go")
    L(f"{tag}_ln")
    I(f"s_mul_i32 s3, s{S_LNROW}, 1280")
    I("v_add_u32 v27, s3, v13")
    I(f"buffer_load_dwordx4 v[8:11], v27, s[{SRD_X}:{SRD_X+3}], 0 offen")
    I(f"buffer_load_dword v12, v27, s[{SRD_X}:{SRD_X+3}], 0 offen offset:16")
    L(f"{tag}_ln_go")
    I("s_waitcnt vmcnt(0)")
    global RT
    RT = 4
    rt_stamp()
    for i in range(5):
        I(f"v_lshlrev_b32 v{14+2*i}, 16, v{8+i}")
        I(f"v_and_b32 v{15+2*i}, 0xffff0000, v{8+i}")
    I("v_add_f32 v24, v14, v15")
    for i in range(2, 10):
        I(f"v_add_f32 v24, v24, v{14+i}")
    wave_allreduce(24, 75)
    I("v_mul_f32 v24, 0x3acccccd, v24")
    I("v_sub_f32 v26, v14, v24")
    I("v_mul_f32 v25, v26, v26")
    for i in range(1, 10):
        I(f"v_sub_f32 v26, v{14+i}, v24")
        I("v_fmac_f32 v25, v26, v26")
    wave_allreduce(25, 75)
    I("v_mul_f32 v25, 0x3acccccd, v25")
    I("v_cvt_pk_bf16_f32 v26, v24, v25")
    I("v_lshlrev_b32 v24, 16, v26")
    I("v_and_b32 v25, 0xffff0000, v26")
    I("v_add_f32 v25, 0x3727c5ac, v25")
    I("v_cvt_pk_bf16_f32 v25, v25, v25")
    I("v_lshlrev_b32 v25, 16, v25")
    I("v_sqrt_f32 v25, v25")
    I("s_nop 0")
    I("v_cvt_pk_bf16_f32 v25, v25, v25")
    I("v_lshlrev_b32 v25, 16, v25")
    I("v_rcp_f32 v25, v25")
    I("s_nop 0")
    for i in range(5):
        a_, b_ = 14 + 2 * i, 15 + 2 * i
        I(f"v_sub_f32 v{a_}, v{a_}, v24")
        I(f"v_sub_f32 v{b_}, v{b_}, v24")
        I(f"v_cvt_pk_bf16_f32 v26, v{a_}, v{b_}")
        I(f"v_lshlrev_b32 v{a_}, 16, v26")
        I(f"v_and_b32 v{b_}, 0xffff0000, v26")
        I(f"v_mul_f32 v{a_}, v{a_}, v25")
        I(f"v_mul_f32 v{b_}, v{b_}, v25")
        I(f"v_cvt_pk_bf16_f32 v{28+i}, v{a_}, v{b_}")
    I(f"buffer_store_dwordx4 v[28:31], v27, s[{SRD_XN}:{SRD_XN+3}], 0 offen sc1")
    I(f"buffer_store_dword v32, v27, s[{SRD_XN}:{SRD_XN+3}], 0 offen offset:16 sc1")
    I(f"s_add_u32 s{S_LNROW}, s{S_LNROW}, 8")
    I(f"s_sub_u32 s{S_LNCNT}, s{S_LNCNT}, 1")
    I(f"s_cmp_lg_u32 s{S_LNCNT}, 0")
    I(f"s_cbranch_scc1 {tag}_ln")
    I(f"s_cmp_lg_u32 s{S_FB}, 0")
    I(f"s_cbranch_scc1 {tag}_fb_done")
    for n in range(4):
        I(f"s_mov_b32 s{S_T3}, {c.bbase + n * c.bsz}")
        emit_dma_now("B", S_T3)
        for x in adv_b:
            I(x)
    extra = c.after_prologue() if hasattr(c, "after_prologue") else 0
    I(f"s_waitcnt vmcnt({4*b + extra})")
    rt_stamp()
    I("s_barrier")
    I(f"s_cmp_lg_u32 s{S_W}, 0")
    I(f"s_cbranch_scc1 {tag}_poll_join")
    I("s_memrealtime s[96:97]")
    I(f"s_lshl_b32 s3, s{S_RB}, 7")
    I(f"s_lshl_b32 s{S_POLL}, s{S_J}, 3")
    I(f"s_add_u32 s{S_POLL}, s{S_POLL}, s3")
    I(f"v_mov_b32 v8, s{S_POLL}")
    if c.need_prev:
        I(f"s_sub_u32 s{S_POLL}, s3, 128")
        I(f"s_cmp_eq_u32 s{S_RB}, 0")
        I(f"s_cselect_b32 s{S_POLL}, s3, s{S_POLL}")
    else:
        I(f"s_mov_b32 s{S_POLL}, s3")
    I("v_lshlrev_b32 v9, 3, v3")
    I(f"v_mov_b32 v10, s{S_POLL}")
    I("v_mov_b32 v11, s3")
    I("v_cmp_gt_u32 vcc, 16, v2")
    I("s_nop 1")
    I("v_cndmask_b32 v10, v10, v11, vcc")
    I("v_add_u32 v9, v9, v10")
    I("s_waitcnt lgkmcnt(0)")
    I("v_mov_b32 v10, s96")
    I("v_mov_b32 v11, s97")
    I("s_mov_b64 exec, 1")
    I(f"buffer_store_dwordx2 v[10:11], v8, s[{SRD_FLG}:{SRD_FLG+3}], 0 offen sc1")
    I("s_mov_b64 exec, 0xffffffff")
    I(f"s_mov_b32 s{S_POLL}, 0")
    I(f"v_mov_b32 v14, s{S_TMIN}")
    I(f"v_mov_b32 v15, s{S_TMIN+1}")
    L(f"{tag}_poll")
    I(f"buffer_load_dwordx2 v[10:11], v9, s[{SRD_FLG}:{SRD_FLG+3}], 0 offen sc1")
    I("s_waitcnt vmcnt(0)")
    I("v_sub_co_u32 v10, vcc, v10, v14")
    I("s_nop 1")
    I("v_subb_co_u32 v11, vcc, v11, v15, vcc")
    I("v_lshrrev_b32 v10, 20, v10")
    I("v_or_b32 v10, v10, v11")
    I("v_cmp_ne_u32 vcc, 0, v10")
    I("v_mov_b32 v10, 0")
    I("s_nop 1")
    I("s_cmp_eq_u64 vcc, 0")
    I(f"s_cbranch_scc1 {tag}_poll_end")
    I(f"s_sleep {OPT['sleep']}")
    I(f"s_add_u32 s{S_POLL}, s{S_POLL}, 1")
    I(f"s_cmp_lt_u32 s{S_POLL}, {OPT['poll_max']}")
    I(f"s_cbranch_scc1 {tag}_poll")
    I("v_mov_b32 v10, 1")
    L(f"{tag}_poll_end")
    I(f"v_mov_b32 v8, {FLAG_LDS}")
    I("ds_write_b32 v8, v10")
    I("s_mov_b64 exec, -1")
    I("s_waitcnt lgkmcnt(0)")
    L(f"{tag}_poll_join")
    I("s_barrier")
    I(f"v_mov_b32 v8, {FLAG_LDS}")
    I("ds_read_b32 v9, v8")
    I("s_waitcnt lgkmcnt(0)")
    I("v_readfirstlane_b32 s3, v9")
    I("s_nop 3")
    I("s_cmp_eq_u32 s3, 0")
    I(f"s_cbranch_scc1 {tag}_ln_done")
    I(f"s_mov_b32 s{S_FB}, 1")
    I(f"s_sub_u32 s{S_LNROW}, s{S_M0}, 16")
    I(f"s_add_u32 s{S_LNROW}, s{S_LNROW}, s{S_W}")
    I(f"s_mov_b32 s{S_LNCNT}, 18")
    I(f"s_branch {tag}_ln")
    L(f"{tag}_fb_done")
    I("s_waitcnt vmcnt(0)")
    I("s_barrier")
    L(f"{tag}_ln_done")
    rt_stamp()
    for n in range(3):
        I(f"s_mov_b32 s{S_T3}, {c.abase + n * c.asz}")
        emit_dma_now("A", S_T3)
        for x in adv_a:
            I(x)
    for r in range(c.acc0, c.acc0 + c.nacc):
        I(f"v_mov_b32 v{r}, 0")
    I(f"s_mov_b32 s{S_AR}, {c.abase}")
    I(f"s_mov_b32 s{S_ARN}, {c.abase + c.asz}")
    I(f"s_mov_b32 s{S_BW}, {c.bbase}")
    I(f"s_mov_b32 s{S_BR}, {c.bbase + c.bsz}")
    I(f"s_waitcnt vmcnt({a})")
    I("s_barrier")
    RT = 1
    rt_stamp()
    pre, rd = frag_reads(0, 0, S_AR, S_BW)
    for x in pre + rd:
        I(x)
    I(f"s_mov_b32 s{S_IT}, 0")
    I(f"s_cmp_lt_u32 s{S_W}, 4")
    I("s_cselect_b64 vcc, -1, 0")
    I("s_waitcnt lgkmcnt(0)")
    def step(half, wait, with_dma, with_reads, fixed_t=None):
        if OPT["stamp"] == 3:
            I("s_memtime s[88:89]")
        if wait is not None:
            I(f"s_waitcnt vmcnt({wait})")
        if OPT["stamp"] == 3:
            I("s_memtime s[90:91]")
        if not OPT["x_nobar"]:
            I("s_barrier")
        if OPT["stamp"] == 3:
            I("s_memtime s[92:93]")
        pre, rd = [], []
        if with_reads:
            if half == 0:
                pre, rd = frag_reads(1, 1, S_AR, S_BR)
            else:
                pre, rd = frag_reads(0, 0, S_ARN, S_BR)
        if OPT["x_noreads"]:
            pre, rd = [], []
        for x in pre:
            I(x)
        dm = []
        if with_dma and not OPT["x_nodma"]:
            if half == 1:
                dl = dma_list("A", S_AR)
                dm += [(s_, i_, adv_a if k == len(dl) - 1 else [], True) for k, (s_, i_) in enumerate(dl)]
            dl = dma_list("B", S_BW)
            dm += [(s_, i_, adv_b if k == len(dl) - 1 else [], False) for k, (s_, i_) in enumerate(dl)]
        mf = mfmas(half)
        nm = len(mf)
        nd = max(len(dm), 1)
        if OPT["stagger"]:
            pos_e = [int((k + 0.5) * (nm // 2) / nd) for k in range(nd)]
            pos_l = [nm // 2 + int((k + 0.5) * (nm - nm // 2 - 1) / nd) for k in range(nd)]
            slots = [(p_, k, "e") for k, p_ in enumerate(pos_e)] + [(p_, k, "l") for k, p_ in enumerate(pos_l)]
        else:
            slots = [(int((k + 0.5) * nm / nd), k, "a") for k in range(nd)]
        if not dm:
            slots = []
        rdi = 0
        rpm = OPT["rpm"]
        for i, m in enumerate(mf):
            I(m)
            for (p_, k, kind) in slots:
                if p_ != i:
                    continue
                lab = f"{tag}_sk_{len(out)}"
                if kind == "e":
                    I(f"s_cbranch_vccz {lab}")
                elif kind == "l":
                    I(f"s_cbranch_vccnz {lab}")
                if dm[k][3]:
                    I(f"s_cmp_ge_u32 s{S_IT}, 7")
                    I(f"s_cbranch_scc1 {lab}")
                setup = dm[k][0]
                kk = k
                while setup is None:
                    kk -= 1
                    setup = dm[kk][0]
                I(setup)
                I("s_nop 0")
                I(dm[k][1])
                for x in dm[k][2]:
                    I(x)
                L(lab)
            for _ in range(rpm):
                if rdi < len(rd):
                    I(rd[rdi])
                    rdi += 1
        for x in rd[rdi:]:
            I(x)
        if with_reads:
            I(f"s_mov_b32 s{S_BW}, s{S_BR}")
            ring_next(S_BR, c.bsz, 4, c.bbase)
            if half == 1:
                I(f"s_mov_b32 s{S_AR}, s{S_ARN}")
                ring_next(S_ARN, c.asz, 3, c.abase)
            I("s_waitcnt lgkmcnt(0)")
        if OPT["stamp"] == 3:
            I("s_waitcnt lgkmcnt(0)")
            if fixed_t is None:
                I(f"s_lshl_b32 s94, s{S_IT}, 1")
                I(f"s_add_u32 s94, s94, {half}")
            else:
                I(f"s_mov_b32 s94, {fixed_t}")
            I("s_mov_b32 m0, s94")
            I("s_nop 0")
            I("v_writelane_b32 v253, s88, m0")
            I("v_writelane_b32 v254, s90, m0")
            I("v_writelane_b32 v255, s92, m0")

    L(f"{tag}_loop")
    step(0, 2 * b + a, True, True)
    step(1, 2 * b + a, True, True)
    I(f"s_add_u32 s{S_IT}, s{S_IT}, 1")
    I(f"s_cmp_lt_u32 s{S_IT}, 8")
    I(f"s_cbranch_scc1 {tag}_loop")
    step(0, 2 * b, False, True, 16)
    step(1, b, False, True, 17)
    step(0, 0, False, True, 18)
    step(1, None, False, False, 19)
    if OPT["stamp"] == 3:
        lab = f"st3_{len(out)}"
        I(f"s_cmp_lg_u32 s2, {OPT.get('wg', 0)}")
        I(f"s_cbranch_scc1 {lab}")
        I(f"s_cmp_lg_u32 s{S_W}, {OPT.get('wave', 0)}")
        I(f"s_cbranch_scc1 {lab}")
        srd(96, P_DBG, P_DBG + 1, 256)
        I("v_lshlrev_b32 v1, 2, v2")
        I("v_cmp_gt_u32 vcc, 20, v2")
        I("s_and_saveexec_b64 s[100:101], vcc")
        I("buffer_store_dword v253, v1, s[96:99], 0 offen")
        I("buffer_store_dword v254, v1, s[96:99], 0 offen offset:80")
        I("buffer_store_dword v255, v1, s[96:99], 0 offen offset:160")
        I("s_mov_b64 exec, s[100:101]")
        L(lab)
    stamp()
    rt_stamp()
    I("s_waitcnt vmcnt(0)")
    I("s_barrier")
    stamp()


def gen_k1():
    name = "gemm1_kernel"
    kstart(name)
    I("s_cmp_ge_u32 s2, 256")
    I("s_cbranch_scc1 k1_done")
    stamp_init()
    stamp()
    global RT
    RT = 0
    rt_stamp()
    load_kernargs()
    I(f"s_memrealtime s[{S_TMIN}:{S_TMIN+1}]")
    I(f"s_and_b32 s{S_T0}, s2, 7")
    I(f"s_lshr_b32 s{S_T1}, s2, 3")
    I(f"s_lshr_b32 s{S_RB}, s{S_T0}, 1")
    I(f"s_lshl_b32 s{S_RB}, s{S_RB}, 2")
    I(f"s_and_b32 s{S_T2}, s{S_T1}, 3")
    I(f"s_add_u32 s{S_RB}, s{S_RB}, s{S_T2}")
    I(f"s_lshr_b32 s{S_T1}, s{S_T1}, 2")
    I(f"s_and_b32 s{S_TYPE}, s{S_T1}, 1")
    I(f"s_lshr_b32 s{S_T1}, s{S_T1}, 1")
    I(f"s_and_b32 s{S_CB}, s{S_T0}, 1")
    I(f"s_lshl_b32 s{S_CB}, s{S_CB}, 2")
    I(f"s_add_u32 s{S_CB}, s{S_CB}, s{S_T1}")
    I(f"s_lshl_b32 s{S_M0}, s{S_RB}, 7")
    I("v_lshrrev_b32 v1, 6, v0")
    I("v_and_b32 v2, 63, v0")
    I(f"v_readfirstlane_b32 s{S_W}, v1")
    I("v_and_b32 v3, 15, v2")
    I("v_lshrrev_b32 v4, 4, v2")
    I(f"s_and_b32 s{S_LNROW}, s2, 1")
    I(f"s_lshl_b32 s{S_LNROW}, s{S_LNROW}, 3")
    I(f"s_lshr_b32 s3, s2, 5")
    I(f"s_add_u32 s{S_J}, s{S_LNROW}, s3")
    I(f"s_lshl_b32 s{S_LNROW}, s{S_J}, 3")
    I(f"s_add_u32 s{S_LNROW}, s{S_LNROW}, s{S_M0}")
    I(f"s_add_u32 s{S_LNROW}, s{S_LNROW}, s{S_W}")
    I("v_mul_u32_u24 v13, 20, v2")
    I(f"s_mul_i32 s3, s{S_LNROW}, 1280")
    I("v_add_u32 v27, s3, v13")
    I("s_waitcnt lgkmcnt(0)")
    srd(SRD_X, P_X, P_X + 1, XN_BYTES)
    I(f"buffer_load_dwordx4 v[8:11], v27, s[{SRD_X}:{SRD_X+3}], 0 offen")
    I(f"buffer_load_dword v12, v27, s[{SRD_X}:{SRD_X+3}], 0 offen offset:16")
    I(f"s_sub_u32 s{S_TMIN}, s{S_TMIN}, {OPT['tagwin']}")
    I(f"s_subb_u32 s{S_TMIN+1}, s{S_TMIN+1}, 0")
    I(f"s_cmp_eq_u32 s{S_TYPE}, 0")
    I("s_cbranch_scc1 k1_qkv")

    def build_srds():
        global STAMPS
        STAMPS = 1
        stamp()
        srd(SRD_XN, P_WS, P_WS + 1, XN_BYTES)
        srd(SRD_A2, P_WS, P_WS + 1, A2_BYTES + W2_BYTES, add=A2_OFF)

    c = K1Cfg()
    c.need_prev = False
    c.asz, c.bsz, c.abase, c.bbase = 16384, 24576, 0, 49152
    c.bstage_g = 32 * F * 2
    c.wrow4 = 4 * 24 * 16
    c.acc0, c.nacc = 128, 96
    c.XF = [8, 48]
    c.WF = [24, 64]
    vX0, vX1, vW, vXa, vWa, vAd, vBd = 88, 89, 90, 93, 94, 97, 99
    I(f"s_lshl_b32 s{S_T0}, s{S_W}, 4")
    I(f"s_add_u32 s{S_T0}, s{S_T0}, s{S_M0}")
    I("v_lshrrev_b32 v5, 3, v2")
    I(f"v_add_u32 v5, s{S_T0}, v5")
    I("v_mul_u32_u24 v5, 1280, v5")
    I("v_and_b32 v6, 7, v2")
    I("v_xor_b32 v7, v6, v4")
    I(f"v_lshl_add_u32 v{vAd}, v7, 4, v5")
    I("v_or_b32 v7, 4, v4")
    I("v_xor_b32 v7, v6, v7")
    I(f"v_lshl_add_u32 v{vAd+1}, v7, 4, v5")
    I(f"v_add_u32 v{vAd+1}, {8*1280 - 1024}, v{vAd+1}")
    I(f"s_lshl_b32 s{S_MA}, s{S_W}, 11")
    c.a_dma = [(vAd, S_MA, 0), (vAd + 1, S_MA, 1024)]
    I(f"s_and_b32 s{S_T0}, s{S_W}, 3")
    I(f"s_mul_i32 s{S_T1}, s{S_T0}, 192")
    I(f"s_mul_i32 s{S_T2}, s{S_CB}, 384")
    for ii in range(3):
        I(f"v_add_u32 v5, s{S_T1}, v2")
        if ii:
            I(f"v_add_u32 v5, {64*ii}, v5")
        I("v_mul_u32_u24 v6, 2731, v5")
        I("v_lshrrev_b32 v6, 16, v6")
        I("v_mul_u32_u24 v7, 24, v6")
        I("v_sub_u32 v7, v5, v7")
        I("v_and_b32 v1, 2, v6")
        I("v_lshrrev_b32 v5, 1, v6")
        I("v_and_b32 v5, 4, v5")
        I("v_or_b32 v1, v1, v5")
        I("v_xor_b32 v7, v7, v1")
        I("v_mul_u32_u24 v6, 3072, v6")
        I("v_lshl_add_u32 v6, v7, 4, v6")
        I(f"v_add_u32 v{vBd+ii}, s{S_T2}, v6")
        if ii:
            I(f"v_subrev_u32 v{vBd+ii}, {1024*ii}, v{vBd+ii}")
    I(f"s_lshr_b32 s{S_T1}, s{S_W}, 2")
    I(f"s_mul_i32 s{S_MB}, s{S_T1}, 12288")
    I(f"s_mul_i32 s{S_T1}, s{S_T0}, 3072")
    I(f"s_add_u32 s{S_MB}, s{S_MB}, s{S_T1}")
    c.b_dma = [(vBd + ii, S_MB, 1024 * ii) for ii in range(3)]
    I(f"s_lshr_b32 s{S_T1}, s{S_W}, 2")
    I(f"s_lshl_b32 s{S_T1}, s{S_T1}, 13")
    I("v_lshrrev_b32 v6, 1, v3")
    I("v_xor_b32 v6, v6, v4")
    I("v_lshlrev_b32 v6, 4, v6")
    I("v_lshl_add_u32 v6, v3, 7, v6")
    I(f"v_add_u32 v{vX0}, s{S_T1}, v6")
    I(f"v_xor_b32 v{vX1}, 64, v{vX0}")
    c.xaddr = [(vXa, vX0, vX1)]
    c.xfrag = [(0, rt * 2048) for rt in range(4)]
    I("v_lshrrev_b32 v5, 2, v3")
    I("v_and_b32 v6, 3, v2")
    I("v_lshl_add_u32 v7, v4, 3, v5")
    I("v_mul_u32_u24 v7, 384, v7")
    I("v_and_b32 v1, 1, v6")
    I("v_lshl_add_u32 v7, v1, 3, v7")
    I("v_and_b32 v5, 2, v5")
    I("v_and_b32 v1, 1, v4")
    I("v_lshl_or_b32 v5, v1, 2, v5")
    I("v_lshrrev_b32 v6, 1, v6")
    I(f"s_mul_i32 s{S_T1}, s{S_T0}, 6")
    I(f"v_add_u32 v6, s{S_T1}, v6")
    for ct in range(3):
        I(f"v_add_u32 v1, {2*ct}, v6")
        I("v_xor_b32 v1, v1, v5")
        I(f"v_lshl_add_u32 v{vW+ct}, v1, 4, v7")
    c.waddr = [(vWa + ct, vW + ct) for ct in range(3)]
    c.wfrag = [(ct, 0) for ct in range(3)] + [(ct, 12288) for ct in range(3)]
    c.tiles = [(c.acc0 + (rt * 6 + ct) * 4, rt, ct) for rt in range(4) for ct in range(6)]
    build_srds()
    I(f"s_cmp_lt_u32 s{S_W}, 4")
    I(f"s_cselect_b32 s{SRD_W}, s{P_WG}, s{P_WU}")
    I(f"s_cselect_b32 s{SRD_W+1}, s{P_WG+1}, s{P_WU+1}")
    I(f"s_and_b32 s{SRD_W+1}, s{SRD_W+1}, 0xffff")
    I(f"s_mov_b32 s{SRD_W+2}, {D*F*2}")
    I(f"s_mov_b32 s{SRD_W+3}, 0x20000")
    k1_mainloop(c, "glu")
    I("s_nop 7")
    I(f"s_mov_b32 s{S_L2E}, 0xbfb8aa3b")
    I(f"s_lshr_b32 s{S_T1}, s{S_W}, 2")
    I(f"s_lshl_b32 s{S_T1}, s{S_T1}, 2")
    I(f"s_lshl_b32 s{S_T2}, s{S_RB}, 3")
    I(f"s_add_u32 s{S_T1}, s{S_T1}, s{S_T2}")
    I(f"s_mul_i32 s{S_T1}, s{S_T1}, 69632")
    I(f"s_mul_i32 s{S_T2}, s{S_CB}, 12")
    I(f"s_mul_i32 s{S_T3}, s{S_T0}, 3")
    I(f"s_add_u32 s{S_T2}, s{S_T2}, s{S_T3}")
    I(f"s_add_u32 s{S_T2}, s{S_T2}, 40")
    I(f"s_lshl_b32 s{S_T2}, s{S_T2}, 9")
    I(f"s_add_u32 s{S_T1}, s{S_T1}, s{S_T2}")
    I("v_lshrrev_b32 v5, 1, v4")
    I("v_lshlrev_b32 v5, 8, v5")
    I("v_lshl_add_u32 v5, v3, 4, v5")
    I("v_and_b32 v6, 1, v4")
    I("v_lshl_add_u32 v5, v6, 3, v5")
    I(f"v_add_u32 v5, s{S_T1}, v5")
    for rt in range(4):
        for ct in range(3):
            g = c.acc0 + (rt * 6 + ct) * 4
            u = c.acc0 + (rt * 6 + 3 + ct) * 4
            if OPT["round_gu"]:
                bf16_round_pair(g, g + 1, 8)
                bf16_round_pair(g + 2, g + 3, 9)
                bf16_round_pair(u, u + 1, 10)
                bf16_round_pair(u + 2, u + 3, 11)
            for r in range(4):
                I(f"v_mul_f32 v{g+r}, s{S_L2E}, v{g+r}")
            for r in range(4):
                I(f"v_exp_f32 v{g+r}, v{g+r}")
            I("s_nop 0")
            for r in range(4):
                I(f"v_add_f32 v{g+r}, 1.0, v{g+r}")
            for r in range(4):
                I(f"v_rcp_f32 v{g+r}, v{g+r}")
            I("s_nop 0")
            if OPT["round_gu"]:
                bf16_round_pair(g, g + 1, 8)
                bf16_round_pair(g + 2, g + 3, 9)
            for r in range(4):
                I(f"v_mul_f32 v{g+r}, v{g+r}, v{u+r}")
            I(f"v_cvt_pk_bf16_f32 v{u}, v{g}, v{g+1}")
            I(f"v_cvt_pk_bf16_f32 v{u+1}, v{g+2}, v{g+3}")
            I(f"buffer_store_dwordx2 v[{u}:{u+1}], v5, s[{SRD_A2}:{SRD_A2+3}], 0 offen offset:{ct*512}")
        if rt < 3:
            I(f"v_add_u32 v5, 69632, v5")
    if OPT["stamp"]:
        stamp()
        I("s_waitcnt vmcnt(0)")
        stamp()
        stamp_flush(8, 64)
    rt_flush(0x4000000)
    I("s_endpgm")

    L("k1_qkv")
    c = K1Cfg()
    c.need_prev = True
    c.asz, c.bsz, c.abase, c.bbase = 18432, 16384, 0, 55296
    c.bstage_g = 32 * 3 * D * 2
    c.wrow4 = 4 * 30 * 16
    c.acc0, c.nacc = 128, 72
    c.XF = [8, 60]
    c.WF = [20, 72]
    vXb0, vXb1, vXm0, vXm1, vW, vXma, vXha, vWa, vAd, vBd = 112, 113, 114, 115, 116, 119, 120, 121, 124, 200
    halo = {0: (5, 5), 2: (6, 6), 4: (7, 7), 6: (7, 7), 1: (8, 9), 3: (10, 11), 5: (12, 13), 7: (14, 14)}
    I(f"s_lshl_b32 s{S_T0}, s{S_W}, 4")
    I(f"s_add_u32 s{S_T0}, s{S_T0}, s{S_M0}")
    I("v_lshrrev_b32 v1, 3, v2")
    I(f"v_add_u32 v5, s{S_T0}, v1")
    I("v_mul_u32_u24 v5, 1280, v5")
    I("v_and_b32 v6, 7, v2")
    I("v_xor_b32 v7, v6, v4")
    I(f"v_lshl_add_u32 v{vAd}, v7, 4, v5")
    I("v_or_b32 v7, 4, v4")
    I("v_xor_b32 v7, v6, v7")
    I(f"v_lshl_add_u32 v{vAd+1}, v7, 4, v5")
    I(f"v_add_u32 v{vAd+1}, {8*1280 - 1024}, v{vAd+1}")
    I(f"s_and_b32 s{S_T1}, s{S_W}, 1")
    I(f"s_lshl_b32 s{S_T2}, s{S_T1}, 3")
    I(f"s_add_u32 s{S_T2}, s{S_T2}, s{S_M0}")
    I(f"s_sub_u32 s{S_T2}, s{S_T2}, 16")
    I(f"v_add_u32 v5, s{S_T2}, v1")
    I(f"s_mov_b32 s{S_T2}, 1280")
    I(f"v_mul_lo_u32 v5, v5, s{S_T2}")
    I(f"s_lshl_b32 s{S_T2}, s{S_T1}, 2")
    I(f"v_or_b32 v7, s{S_T2}, v4")
    I("v_xor_b32 v7, v6, v7")
    I(f"v_lshl_add_u32 v{vAd+2}, v7, 4, v5")
    I(f"s_lshl_b32 s{S_MA}, s{S_W}, 11")
    I(f"s_add_u32 s{S_MA}, s{S_MA}, 2048")
    I(f"s_lshl_b32 s{S_MH}, s{S_T1}, 10")
    c.a_dma = [(vAd, S_MA, 0), (vAd + 1, S_MA, 1024), (vAd + 2, S_MH, 0)]
    I(f"s_mul_i32 s{S_T2}, s{S_CB}, 160")
    I(f"s_lshl_b32 s{S_T0}, s{S_W}, 7")
    for ii in range(2):
        I(f"v_add_u32 v5, s{S_T0}, v2")
        if ii:
            I("v_add_u32 v5, 64, v5")
        I("v_mul_u32_u24 v6, 1058, v5")
        I("v_lshrrev_b32 v6, 18, v6")
        I("v_mul_u32_u24 v7, 248, v6")
        I("v_sub_u32 v5, v5, v7")
        I("v_mul_u32_u24 v7, 2185, v5")
        I("v_lshrrev_b32 v7, 16, v7")
        I("v_lshl_add_u32 v6, v6, 3, v7")
        I("v_mul_u32_u24 v7, 30, v7")
        I("v_sub_u32 v7, v5, v7")
        I("v_mul_u32_u24 v1, 26, v7")
        I("v_lshrrev_b32 v1, 8, v1")
        I("v_mul_u32_u24 v1, 1120, v1")
        I("v_lshl_add_u32 v1, v7, 4, v1")
        I("v_cmp_gt_u32 vcc, 240, v5")
        I("v_mul_u32_u24 v7, 3840, v6")
        I("v_add_u32 v1, v1, v7")
        I(f"v_add_u32 v1, s{S_T2}, v1")
        if ii:
            I("v_subrev_u32 v1, 1024, v1")
        I("v_mov_b32 v7, 0x7f000000")
        I("v_cndmask_b32 v1, v7, v1, vcc")
        I("v_cmp_gt_u32 vcc, 32, v6")
        I("s_nop 1")
        I(f"v_cndmask_b32 v{vBd+ii}, v7, v1, vcc")
    I(f"s_lshl_b32 s{S_MB}, s{S_W}, 11")
    c.b_dma = [(vBd + ii, S_MB, 1024 * ii) for ii in range(2)]
    I("v_lshrrev_b32 v6, 1, v3")
    I("v_xor_b32 v6, v6, v4")
    I("v_lshlrev_b32 v6, 4, v6")
    I(f"v_lshl_add_u32 v{vXb0}, v3, 7, v6")
    I(f"v_xor_b32 v{vXb1}, 64, v{vXb0}")
    I(f"s_lshr_b32 s{S_T2}, s{S_W}, 1")
    I(f"s_lshl_b32 s{S_T2}, s{S_T2}, 12")
    I(f"s_add_u32 s{S_T2}, s{S_T2}, 2048")
    I(f"v_add_u32 v{vXm0}, s{S_T2}, v{vXb0}")
    I(f"v_add_u32 v{vXm1}, s{S_T2}, v{vXb1}")
    c.xaddr = [(vXma, vXm0, vXm1), (vXha, vXb0, vXb1)]
    c.xfrag = [(0, 0), (0, 2048), (1, 0)]
    I("v_lshrrev_b32 v5, 2, v3")
    I("v_mul_u32_u24 v5, 30, v5")
    I("v_mul_u32_u24 v6, 248, v4")
    I("v_add_u32 v5, v5, v6")
    I("v_lshrrev_b32 v6, 1, v2")
    I("v_and_b32 v6, 1, v6")
    I("v_add_u32 v5, v5, v6")
    I("v_lshlrev_b32 v5, 4, v5")
    I("v_and_b32 v6, 1, v2")
    I("v_lshl_add_u32 v5, v6, 3, v5")
    I(f"s_lshl_b32 s{S_T2}, s{S_T1}, 8")
    I(f"v_add_u32 v{vW}, s{S_T2}, v5")
    hv = 0
    for w in range(8):
        hv |= (halo[w][0] | (halo[w][1] << 4)) << 0 if False else 0
    packed_lo = sum((halo[w][0] | (halo[w][1] << 4)) << (8 * w) for w in range(4))
    packed_hi = sum((halo[w][0] | (halo[w][1] << 4)) << (8 * (w - 4)) for w in range(4, 8))
    I(f"s_mov_b32 s{S_T2}, {packed_hi:#x}")
    I(f"s_cmp_lt_u32 s{S_W}, 4")
    I(f"s_cselect_b32 s{S_T2}, {packed_lo:#x}, s{S_T2}")
    I(f"s_and_b32 s{S_T3}, s{S_W}, 3")
    I(f"s_lshl_b32 s{S_T3}, s{S_T3}, 3")
    I(f"s_lshr_b32 s{S_T2}, s{S_T2}, s{S_T3}")
    for q in range(2):
        I(f"s_lshr_b32 s{S_T3}, s{S_T2}, {4*q}")
        I(f"s_and_b32 s{S_T3}, s{S_T3}, 15")
        I(f"s_lshl_b32 s{S_T0}, s{S_T3}, 5")
        I(f"v_add_u32 v{vW+1+q}, s{S_T0}, v5")
        I(f"s_mul_i32 s{S_T0}, s{S_T3}, 52")
        I(f"s_lshr_b32 s{S_T0}, s{S_T0}, 8")
        I(f"s_mul_i32 s{S_SLOT+8+q}, s{S_T0}, 5")
        I(f"s_sub_u32 s{S_T3}, s{S_T3}, s{S_SLOT+8+q}")
        I(f"s_lshl_b32 s{S_T3}, s{S_T3}, 5")
        I(f"s_mul_i32 s{S_T0}, s{S_T0}, 24192")
        I(f"s_add_u32 s{S_T0}, s{S_T0}, s{S_T3}")
        I(f"s_sub_u32 s{S_SLOT+8+q}, s{S_T0}, 2688")
    for q in range(8):
        def base(t):
            if t >= 15:
                return 70656 - 2688
            return (t // 5) * 24192 - 2688 + (t % 5) * 32
        b0, b1 = base(q) & 0xffffffff, base(8 + q) & 0xffffffff
        I(f"s_mov_b32 s{S_SLOT+q}, {b1:#x}")
        I(f"s_cmp_eq_u32 s{S_T1}, 0")
        I(f"s_cselect_b32 s{S_SLOT+q}, {b0:#x}, s{S_SLOT+q}")
    c.waddr = [(vWa, vW), (vWa + 1, vW + 1), (vWa + 2, vW + 2)]
    c.wfrag = [(0, q * 32) for q in range(8)] + [(1, 0), (2, 0)]
    c.tiles = [(c.acc0 + (q * 2 + rt) * 4, rt, q) for q in range(8) for rt in range(2)]
    c.tiles += [(c.acc0 + (16 + q) * 4, 2, 8 + q) for q in range(2)]
    build_srds()
    srd(SRD_W, P_WQKV, P_WQKV + 1, D * 3 * D * 2)
    RL_LDS = 120832
    sI, sKS, sCG, sV, sT, sD = 75, 76, 77, 78, 79, 80
    SRD_S = 84
    vRa, vRt = 202, 204

    def relayout_issue():
        I(f"s_lshr_b32 s{sT}, s2, 3")
        I(f"s_and_b32 s{sV}, s{sT}, 3")
        I(f"s_lshr_b32 s{sT}, s{sT}, 3")
        I(f"s_lshl_b32 s{sT}, s{sT}, 2")
        I(f"s_add_u32 s{sV}, s{sV}, s{sT}")
        I(f"s_and_b32 s{sT}, s2, 7")
        I(f"s_lshl_b32 s{sT}, s{sT}, 4")
        I(f"s_add_u32 s{sV}, s{sV}, s{sT}")
        I(f"s_lshl_b32 s{sI}, s{sV}, 3")
        I(f"s_add_u32 s{sI}, s{sI}, s{S_W}")
        I(f"s_min_u32 s{sT}, s{sI}, 679")
        I(f"s_mul_i32 s{sKS}, s{sT}, 6554")
        I(f"s_lshr_b32 s{sKS}, s{sKS}, 16")
        I(f"s_mul_i32 s{sV}, s{sKS}, 10")
        I(f"s_sub_u32 s{sCG}, s{sT}, s{sV}")
        I(f"s_cmp_lt_u32 s{sKS}, 20")
        I(f"s_cselect_b32 s{SRD_S}, s{P_WO}, s{P_WD}")
        I(f"s_cselect_b32 s{SRD_S+1}, s{P_WO+1}, s{P_WD+1}")
        I(f"s_mov_b32 s{SRD_S+2}, {F*D*2}")
        I(f"s_cselect_b32 s{SRD_S+2}, {D*D*2}, s{SRD_S+2}")
        I(f"s_cselect_b32 s{sT}, 0, 20")
        I(f"s_and_b32 s{SRD_S+1}, s{SRD_S+1}, 0xffff")
        I(f"s_mov_b32 s{SRD_S+3}, 0x20000")
        I(f"s_sub_u32 s{sT}, s{sKS}, s{sT}")
        I(f"s_mul_i32 s{sT}, s{sT}, {32*1280}")
        I(f"s_lshl_b32 s{sV}, s{sCG}, 7")
        I(f"s_add_u32 s{sT}, s{sT}, s{sV}")
        I("v_lshrrev_b32 v5, 3, v2")
        I("v_and_b32 v6, 7, v2")
        I("v_and_b32 v7, 2, v5")
        I("v_xor_b32 v6, v6, v7")
        I("v_mul_u32_u24 v5, 1280, v5")
        I(f"v_lshl_add_u32 v{vRa}, v6, 4, v5")
        I("v_xor_b32 v6, 4, v6")
        I(f"v_lshl_add_u32 v{vRa+1}, v6, 4, v5")
        I(f"s_lshl_b32 s{sV}, s{S_W}, 12")
        I(f"s_add_u32 s{sV}, s{sV}, {RL_LDS}")
        for a_ in range(4):
            I(f"s_add_u32 m0, s{sV}, {1024*a_}")
            I("s_nop 0")
            I(f"buffer_load_dwordx4 v{vRa + (a_ & 1)}, s[{SRD_S}:{SRD_S+3}], s{sT} offen lds")
            if a_ < 3:
                I(f"s_add_u32 s{sT}, s{sT}, {8*1280}")
        I("v_lshrrev_b32 v5, 2, v3")
        I("v_lshl_add_u32 v6, v4, 3, v5")
        I("v_lshlrev_b32 v6, 7, v6")
        I("v_and_b32 v7, 1, v2")
        I("v_lshl_add_u32 v6, v7, 3, v6")
        I(f"v_add_u32 v6, s{sV}, v6")
        I("v_and_b32 v5, 2, v5")
        I("v_and_b32 v7, 1, v4")
        I("v_lshl_or_b32 v5, v7, 2, v5")
        I("v_lshrrev_b32 v7, 1, v2")
        I("v_and_b32 v7, 1, v7")
        for ct in range(4):
            I(f"v_add_u32 v1, {2*ct}, v7")
            I("v_xor_b32 v1, v1, v5")
            I(f"v_lshl_add_u32 v{vRt+ct}, v1, 4, v6")
        for ct in range(4):
            I(f"s_lshl_b32 s{sT}, s{sCG}, 2")
            I(f"s_add_u32 s{sT}, s{sT}, {ct}")
            I(f"s_mul_i32 s{sV}, s{sT}, 52")
            I(f"s_lshr_b32 s{sV}, s{sV}, 8")
            I(f"s_mul_i32 s{sD+ct}, s{sV}, 5")
            I(f"s_sub_u32 s{sT}, s{sT}, s{sD+ct}")
            I(f"s_mul_i32 s{sV}, s{sV}, 68")
            I(f"s_add_u32 s{sV}, s{sV}, s{sKS}")
            I(f"s_mul_i32 s{sV}, s{sV}, 5")
            I(f"s_add_u32 s{sV}, s{sV}, s{sT}")
            I(f"s_lshl_b32 s{sV}, s{sV}, 10")
            I(f"s_add_u32 s{sD+ct}, s{sV}, {W2_OFF - A2_OFF}")
        return 4

    c.after_prologue = relayout_issue
    k1_mainloop(c, "qkv")
    for ct in range(4):
        r = 208 + 4 * ct
        I(f"ds_read_b64_tr_b16 v[{r}:{r+1}], v{vRt+ct}")
        I(f"ds_read_b64_tr_b16 v[{r+2}:{r+3}], v{vRt+ct} offset:512")
    I("v_lshlrev_b32 v1, 4, v2")
    for ct in range(4):
        r = 208 + 4 * ct
        I(f"s_waitcnt lgkmcnt({2*(3-ct)})")
        I(f"buffer_store_dwordx4 v[{r}:{r+3}], v1, s[{SRD_A2}:{SRD_A2+3}], s{sD+ct} offen")
    I("s_nop 7")
    I(f"s_lshr_b32 s{S_T1}, s{S_W}, 1")
    I(f"s_mul_i32 s{S_T1}, s{S_T1}, {32*168}")
    I(f"s_add_u32 s{S_T1}, s{S_T1}, {16*168}")
    I("v_mul_u32_u24 v5, 168, v3")
    I("v_lshl_add_u32 v5, v4, 3, v5")
    I(f"v_add_u32 v6, s{S_T1}, v5")
    for q in range(8):
        for rt in range(2):
            a = c.acc0 + (q * 2 + rt) * 4
            I(f"v_cvt_pk_bf16_f32 v{a}, v{a}, v{a+1}")
            I(f"v_cvt_pk_bf16_f32 v{a+1}, v{a+2}, v{a+3}")
            if rt == 0:
                I(f"v_add_u32 v7, s{S_SLOT+q}, v6")
            I(f"ds_write_b64 v7, v[{a}:{a+1}] offset:{rt*16*168}")
    for q in range(2):
        a = c.acc0 + (16 + q) * 4
        I(f"v_cvt_pk_bf16_f32 v{a}, v{a}, v{a+1}")
        I(f"v_cvt_pk_bf16_f32 v{a+1}, v{a+2}, v{a+3}")
        I(f"v_add_u32 v7, s{S_SLOT+8+q}, v5")
        I(f"ds_write_b64 v7, v[{a}:{a+1}]")
    I("s_waitcnt lgkmcnt(0)")
    I("s_barrier")
    KOFF, VOFF = 21504, 45696
    I(f"s_and_b32 s{S_T0}, s{S_W}, 1")
    I(f"s_lshl_b32 s{S_T0}, s{S_T0}, 6")
    I(f"v_add_u32 v5, s{S_T0}, v2")
    I(f"v_add_u32 v6, s{S_M0}, v5")
    I("v_mul_u32_u24 v5, 168, v5")
    I(f"s_lshr_b32 s{S_T1}, s{S_W}, 1")
    I(f"s_mul_i32 s{S_T2}, s{S_T1}, 40")
    I(f"v_add_u32 v5, s{S_T2}, v5")
    Q = 8
    KV = 20
    LG = 100
    O = 110
    for i in range(5):
        I(f"ds_read_b64 v[{Q+2*i}:{Q+2*i+1}], v5 offset:{8*i}")
    for wi in range(8):
        for i in range(5):
            off = KOFF + (16 - 2 * wi) * 168 + 8 * i
            I(f"ds_read_b64 v[{KV+10*wi+2*i}:{KV+10*wi+2*i+1}], v5 offset:{off}")
    I(f"s_mov_b32 s{S_SCALE}, 0x3e64f92e")
    I(f"s_mov_b32 s{S_L2E}, 0x3fb8aa3b")
    I(f"s_mov_b32 s{S_SEL_LO}, 0x05040100")
    I(f"s_mov_b32 s{S_SEL_HI}, 0x07060302")
    I("s_waitcnt lgkmcnt(0)")
    for i in range(10):
        for wi in range(8):
            src = "0" if i == 0 else f"v{LG+wi}"
            I(f"v_dot2_f32_bf16 v{LG+wi}, v{Q+i}, v{KV+10*wi+i}, {src}")
    I("s_nop 3")
    for wi in range(8):
        for i in range(5):
            off = VOFF + (16 - 2 * wi) * 168 + 8 * i
            I(f"ds_read_b64 v[{KV+10*wi+2*i}:{KV+10*wi+2*i+1}], v5 offset:{off}")
    for p in range(4):
        a, b = LG + 2 * p, LG + 2 * p + 1
        bf16_round_pair(a, b, 7)
        I(f"v_mul_f32 v{a}, s{S_SCALE}, v{a}")
        I(f"v_mul_f32 v{b}, s{S_SCALE}, v{b}")
        bf16_round_pair(a, b, 7)
    I("v_mov_b32 v7, 0xce6e6b28")
    for wi in range(1, 8):
        I(f"v_cmp_le_u32 vcc, {2*wi}, v6")
        I("s_nop 1")
        I(f"v_cndmask_b32 v{LG+wi}, v7, v{LG+wi}, vcc")
    I(f"v_max3_f32 v7, v{LG}, v{LG+1}, v{LG+2}")
    I(f"v_max3_f32 v7, v7, v{LG+3}, v{LG+4}")
    I(f"v_max3_f32 v7, v7, v{LG+5}, v{LG+6}")
    I(f"v_max_f32 v7, v7, v{LG+7}")
    for wi in range(8):
        I(f"v_sub_f32 v{LG+wi}, v{LG+wi}, v7")
        I(f"v_mul_f32 v{LG+wi}, s{S_L2E}, v{LG+wi}")
    for wi in range(8):
        I(f"v_exp_f32 v{LG+wi}, v{LG+wi}")
    I("s_nop 0")
    I(f"v_add_f32 v7, v{LG}, v{LG+1}")
    for wi in range(2, 8):
        I(f"v_add_f32 v7, v7, v{LG+wi}")
    I("v_rcp_f32 v7, v7")
    I("s_nop 0")
    for wi in range(8):
        I(f"v_mul_f32 v{LG+wi}, v{LG+wi}, v7")
    for p in range(4):
        I(f"v_cvt_pk_bf16_f32 v{LG+p}, v{LG+2*p}, v{LG+2*p+1}")
    I("s_waitcnt lgkmcnt(0)")
    T = 130
    for p in range(4):
        for i in range(10):
            A_ = KV + 10 * (2 * p) + i
            B_ = KV + 10 * (2 * p + 1) + i
            t0 = T + 2 * (i % 4)
            I(f"v_perm_b32 v{t0}, v{B_}, v{A_}, s{S_SEL_LO}")
            I(f"v_perm_b32 v{t0+1}, v{B_}, v{A_}, s{S_SEL_HI}")
            s0 = "0" if p == 0 else f"v{O+2*i}"
            s1 = "0" if p == 0 else f"v{O+2*i+1}"
            I(f"v_dot2_f32_bf16 v{O+2*i}, v{t0}, v{LG+p}, {s0}")
            I(f"v_dot2_f32_bf16 v{O+2*i+1}, v{t0+1}, v{LG+p}, {s1}")
    I("s_nop 3")
    for i in range(10):
        I(f"v_cvt_pk_bf16_f32 v{Q+i}, v{O+2*i}, v{O+2*i+1}")
    I("v_lshrrev_b32 v5, 4, v6")
    I("v_mul_u32_u24 v5, 69632, v5")
    I("v_and_b32 v7, 15, v6")
    I("v_lshl_add_u32 v5, v7, 4, v5")
    I(f"s_lshl_b32 s{S_T0}, s{S_CB}, 2")
    I(f"s_add_u32 s{S_T0}, s{S_T0}, s{S_T1}")
    I(f"s_mul_i32 s{S_T0}, s{S_T0}, 5")
    for i in range(5):
        I(f"s_add_u32 s{S_T2}, s{S_T0}, {i}")
        I(f"s_lshr_b32 s{S_T3}, s{S_T2}, 1")
        I(f"s_lshl_b32 s{S_T3}, s{S_T3}, 8")
        I(f"s_and_b32 s{S_T2}, s{S_T2}, 1")
        I(f"s_lshl_b32 s{S_T2}, s{S_T2}, 3")
        I(f"s_add_u32 s{S_T2}, s{S_T2}, s{S_T3}")
        I(f"buffer_store_dwordx2 v[{Q+2*i}:{Q+2*i+1}], v5, s[{SRD_A2}:{SRD_A2+3}], s{S_T2} offen")
    if OPT["stamp"]:
        stamp()
        I("s_waitcnt vmcnt(0)")
        stamp()
        stamp_flush(0, 0)
    rt_flush(0x4000000)
    L("k1_done")
    I("s_endpgm")
    kd(name, 256, 100)


def gen_k2():
    name = "gemm2_kernel"
    kstart(name)
    I("s_cmp_ge_u32 s2, 256")
    I("s_cbranch_scc1 k2_done")
    stamp_init()
    stamp()
    load_kernargs()
    S_RB_, S_CB_, S_M0_, S_N0B, S_W_ = 4, 5, 6, 7, 8
    S_KS, S_STEP, S_N, S_AG_, S_BG_, S_END = 9, 10, 11, 12, 13, 14
    SRD_A, SRD_B, SRD_X, SRD_O = 40, 44, 48, 52
    T0, T1, T2 = 56, 57, 58
    I(f"s_and_b32 s{T0}, s2, 7")
    I(f"s_lshr_b32 s{T1}, s2, 3")
    I(f"s_lshr_b32 s{S_RB_}, s{T0}, 1")
    I(f"s_lshl_b32 s{S_RB_}, s{S_RB_}, 3")
    I(f"s_lshr_b32 s{T2}, s{T1}, 2")
    I(f"s_add_u32 s{S_RB_}, s{S_RB_}, s{T2}")
    I(f"s_and_b32 s{S_CB_}, s{T0}, 1")
    I(f"s_lshl_b32 s{S_CB_}, s{S_CB_}, 2")
    I(f"s_and_b32 s{T2}, s{T1}, 3")
    I(f"s_add_u32 s{S_CB_}, s{S_CB_}, s{T2}")
    I(f"s_lshl_b32 s{S_M0_}, s{S_RB_}, 6")
    I(f"s_mul_i32 s{S_N0B}, s{S_CB_}, 160")
    I("v_lshrrev_b32 v1, 6, v0")
    I("v_and_b32 v2, 63, v0")
    I(f"v_readfirstlane_b32 s{S_W_}, v1")
    I("v_and_b32 v3, 15, v2")
    I("v_lshrrev_b32 v4, 4, v2")
    ACC = 160
    FR = [8, 44, 80, 116]
    vA = 152
    vB = 156
    XR = 240
    I("v_lshlrev_b32 v5, 4, v2")
    I(f"s_mul_i32 s{T0}, s{S_RB_}, {4*69632 if not (OPT['k2_same'] & 1) else 0}")
    I(f"v_add_u32 v{vA}, s{T0}, v5")
    for rt in range(1, 4):
        I(f"v_add_u32 v{vA+rt}, {69632*rt}, v{vA}")
    I(f"s_mul_i32 s{T0}, s{S_CB_}, {68*5120 if not (OPT['k2_same'] & 2) else 0}")
    I(f"v_add_u32 v{vB}, s{T0}, v5")
    I(f"v_add_u32 v{vB+1}, 4096, v{vB}")
    I(f"s_cmp_lt_u32 s{S_W_}, 2")
    I(f"s_cselect_b32 s{S_STEP}, 2, 6")
    I(f"s_cselect_b32 s{S_N}, 3, 2")
    I(f"s_cselect_b32 s{S_END}, 20, 68")
    I(f"s_cselect_b32 s{T0}, 0, 18")
    I(f"s_add_u32 s{S_KS}, s{S_W_}, s{T0}")
    I(f"v_add_u32 v5, s{S_M0_}, v2")
    I("v_mul_u32_u24 v5, 1280, v5")
    I(f"s_lshl_b32 s{T0}, s{S_W_}, 3")
    I(f"s_add_u32 s{T0}, s{T0}, s{S_N0B}")
    I(f"v_add_u32 v{XR+6}, s{T0}, v5")
    I(f"s_cmp_lt_u32 s{S_W_}, 4")
    I(f"s_cselect_b32 s{T0}, 128, 0x40000000")
    I(f"v_add_u32 v{XR+7}, s{T0}, v{XR+6}")
    I("s_waitcnt lgkmcnt(0)")
    srd(SRD_A, P_WS, P_WS + 1, A2_BYTES, add=A2_OFF)
    srd(SRD_B, P_WS, P_WS + 1, W2_BYTES, add=W2_OFF)
    srd(SRD_X, P_X, P_X + 1, XN_BYTES)
    srd(SRD_O, P_OUT, P_OUT + 1, XN_BYTES)
    stamp()

    def issue(fs):
        I(f"s_lshl_b32 s{S_AG_}, s{S_KS}, 10")
        I(f"s_mul_i32 s{S_BG_}, s{S_KS}, 5120")
        for rt in range(4):
            r = FR[fs] + 4 * rt
            I(f"buffer_load_dwordx4 v[{r}:{r+3}], v{vA+rt}, s[{SRD_A}:{SRD_A+3}], s{S_AG_} offen")
        for ct in range(5):
            r = FR[fs] + 16 + 4 * ct
            if ct < 4:
                I(f"buffer_load_dwordx4 v[{r}:{r+3}], v{vB}, s[{SRD_B}:{SRD_B+3}], s{S_BG_} offen offset:{ct*1024}")
            else:
                I(f"buffer_load_dwordx4 v[{r}:{r+3}], v{vB+1}, s[{SRD_B}:{SRD_B+3}], s{S_BG_} offen")
        I(f"s_add_u32 s{S_KS}, s{S_KS}, s{S_STEP}")

    I(f"buffer_load_dwordx2 v[{XR}:{XR+1}], v{XR+6}, s[{SRD_X}:{SRD_X+3}], 0 offen")
    I(f"buffer_load_dwordx2 v[{XR+2}:{XR+3}], v{XR+6}, s[{SRD_X}:{SRD_X+3}], 0 offen offset:64")
    I(f"buffer_load_dwordx2 v[{XR+4}:{XR+5}], v{XR+7}, s[{SRD_X}:{SRD_X+3}], 0 offen")
    for fs in range(4):
        issue(fs)
    stamp()
    for r in range(ACC, ACC + 80):
        I(f"v_mov_b32 v{r}, 0")

    def compute(fs):
        for ct in range(5):
            for rt in range(4):
                a = ACC + (rt * 5 + ct) * 4
                w = FR[fs] + 16 + 4 * ct
                x = FR[fs] + 4 * rt
                if not OPT["k2_nomfma"]:
                    I(f"v_mfma_f32_16x16x32_bf16 v[{a}:{a+3}], v[{w}:{w+3}], v[{x}:{x+3}], v[{a}:{a+3}]")

    def body(n):
        for j in range(n):
            left = min(n - 1 - j, 3)
            I(f"s_waitcnt vmcnt({9*left})")
            compute(j % 4)
            if j + 4 < n:
                issue(j % 4)

    I(f"s_cmp_lt_u32 s{S_W_}, 2")
    I("s_cbranch_scc0 k2_h")
    body(10)
    I("s_branch k2_join")
    L("k2_h")
    body(8)
    L("k2_join")
    stamp()
    I(f"s_mul_i32 s{T0}, s{S_W_}, 20480")
    I("v_lshlrev_b32 v5, 10, v4")
    I("v_lshl_add_u32 v5, v3, 4, v5")
    I(f"v_add_u32 v5, s{T0}, v5")
    I("s_nop 4")
    for rt in range(4):
        for ct in range(5):
            a = ACC + (rt * 5 + ct) * 4
            I(f"ds_write_b128 v5, v[{a}:{a+3}] offset:{ct*4096 + rt*256}")
    I("s_waitcnt lgkmcnt(0)")
    I("s_barrier")
    stamp()
    I(f"s_lshl_b32 s{T0}, s{S_W_}, 10")
    I("v_lshlrev_b32 v5, 4, v2")
    I(f"v_add_u32 v5, s{T0}, v5")
    for i in range(1, 4):
        I(f"v_add_u32 v{248+i}, {2*20480*i}, v5")
    I("v_mov_b32 v248, v5")
    for j in range(3):
        for p in range(8):
            r = 8 + (j * 8 + p) * 4
            I(f"ds_read_b128 v[{r}:{r+3}], v{248 + p // 2} offset:{(p % 2) * 20480 + j * 8192}")
    I("s_waitcnt vmcnt(0) lgkmcnt(0)")
    for j in range(3):
        b = 8 + j * 32
        for r in range(4):
            I(f"v_add_f32 v{b+r}, v{b+r}, v{b+4+r}")
            I(f"v_add_f32 v{b+8+r}, v{b+8+r}, v{b+12+r}")
            I(f"v_add_f32 v{b+16+r}, v{b+16+r}, v{b+20+r}")
            I(f"v_add_f32 v{b+24+r}, v{b+24+r}, v{b+28+r}")
            I(f"v_add_f32 v{b+8+r}, v{b+8+r}, v{b+16+r}")
            I(f"v_add_f32 v{b+8+r}, v{b+8+r}, v{b+24+r}")
        bf16_round_pair(b, b + 1, 7)
        bf16_round_pair(b + 2, b + 3, 7)
        bf16_round_pair(b + 8, b + 9, 7)
        bf16_round_pair(b + 10, b + 11, 7)
        xr = XR + 2 * j
        I(f"v_lshlrev_b32 v{b+4}, 16, v{xr}")
        I(f"v_and_b32 v{b+5}, 0xffff0000, v{xr}")
        I(f"v_lshlrev_b32 v{b+6}, 16, v{xr+1}")
        I(f"v_and_b32 v{b+7}, 0xffff0000, v{xr+1}")
        for r in range(4):
            I(f"v_add_f32 v{b+r}, v{b+r}, v{b+4+r}")
        bf16_round_pair(b, b + 1, 7)
        bf16_round_pair(b + 2, b + 3, 7)
        for r in range(4):
            I(f"v_add_f32 v{b+r}, v{b+r}, v{b+8+r}")
        if OPT["probe"] and j == 0:
            import struct
            dl = struct.unpack("<I", struct.pack("<f", OPT["probe"] / 1000.0))[0]
            I(f"v_mov_b32 v6, {dl:#x}")
            if not OPT["probe_all"]:
                I("s_cmp_eq_u32 s2, 5")
                I("s_cselect_b32 s3, 1, 0")
                I("v_cvt_f32_u32 v7, s3")
                I("v_mul_f32 v6, v6, v7")
            I(f"v_add_f32 v{b}, v{b}, v6")
        I(f"v_cvt_pk_bf16_f32 v{xr}, v{b}, v{b+1}")
        I(f"v_cvt_pk_bf16_f32 v{xr+1}, v{b+2}, v{b+3}")
        if j < 2:
            I(f"buffer_store_dwordx2 v[{xr}:{xr+1}], v{XR+6}, s[{SRD_O}:{SRD_O+3}], 0 offen offset:{64*j}")
        else:
            I(f"buffer_store_dwordx2 v[{xr}:{xr+1}], v{XR+7}, s[{SRD_O}:{SRD_O+3}], 0 offen")
    if OPT["stamp"]:
        stamp()
        I("s_waitcnt vmcnt(0)")
        stamp()
        if OPT["stamp"] == 2:
            stamp_flush_waves(OPT.get("wg", 0))
        else:
            stamp_flush(0, 0)
    L("k2_done")
    I("s_endpgm")
    kd(name, 256, 64)


def header():
    ref = open(f"cdna_kernels/{NAME}.s.ref").read().splitlines()
    for line in ref:
        if line.startswith("; @launch"):
            break
        e(line)
    e("; @launch kernel=gemm1_kernel grid=(256,1,1) block=(512,1,1) lds=153664")
    e("; @launch kernel=gemm2_kernel grid=(256,1,1) block=(512,1,1) lds=163840")
    e('.amdgcn_target "amdgcn-amd-amdhsa--gfx950"')
    e(".text")


def selfcheck():
    for p_ in range(1024):
        assert (p_ * 1058) >> 18 == p_ // 248
    for p_ in range(248):
        assert (p_ * 2185) >> 16 == p_ // 30
    for p_ in range(768):
        assert (p_ * 2731) >> 16 == p_ // 24
    for p_ in range(680):
        assert (p_ * 6554) >> 16 == p_ // 10
    for i in range(600):
        assert (i * 3277) >> 16 == i // 20
    for i in range(480):
        assert (i * 6554) >> 16 == i // 10
        assert (i * 2731) >> 16 == i // 24
    for i in range(600):
        assert (i * 2185) >> 16 == i // 30
    for t in range(40):
        assert (t * 52) >> 8 == t // 5
    for t in range(24):
        assert (t * 86) >> 8 == t // 3
    for t in range(30):
        assert (t * 26) >> 8 == t // 10


selfcheck()
header()
gen_k1()
gen_k2()
path = f"cdna_kernels/{NAME}.s"
for a in sys.argv[1:]:
    if a.startswith("-o"):
        path = a[2:]
open(path, "w").write("\n".join(out) + "\n")
print("wrote", path, len(out), "lines")
```

```python
import sys

NAME = "parallel_sum__sliding_local_dilated__glu_gated_glu__prompt"

S = 2048
D = 640
F = 1536
X_BYTES = S * D * 2
A2_OFF = 0
A2_BYTES = 128 * 68 * 1024
W2_OFF = A2_OFF + A2_BYTES
W2_BYTES = 8 * 68 * 5 * 1024

OPT = dict(stamp=0, stagger=1, rpm=2, exact=0)
for a in sys.argv[1:]:
    if "=" in a:
        k, v = a.split("=")
        OPT[k] = int(v)

out = []


def e(s=""):
    out.append(s)


def I(s):
    out.append("    " + s)


def L(s):
    out.append(s + ":")


def srd(dst, lo, hi, nbytes, add=0):
    if add:
        I(f"s_add_u32 s{dst}, s{lo}, {add}")
        I(f"s_addc_u32 s{dst+1}, s{hi}, 0")
        I(f"s_and_b32 s{dst+1}, s{dst+1}, 0xffff")
    else:
        I(f"s_mov_b32 s{dst}, s{lo}")
        I(f"s_and_b32 s{dst+1}, s{hi}, 0xffff")
    I(f"s_mov_b32 s{dst+2}, {nbytes}")
    I(f"s_mov_b32 s{dst+3}, 0x20000")


P_X, P_WQKV, P_WO, P_BX, P_WG, P_WU, P_WD, P_OUT, P_DBG, P_WS = 16, 18, 20, 22, 24, 26, 28, 30, 32, 34

RT = 0


def rt_stamp(idx):
    if OPT["stamp"] == 4:
        I("s_memrealtime s[96:97]")
        I("s_waitcnt lgkmcnt(0)")
        I(f"v_writelane_b32 v252, s96, {idx}")


def rt_flush(off):
    if OPT["stamp"] != 4:
        return
    I("s_waitcnt vmcnt(0)")
    rt_stamp(3)
    I("s_getreg_b32 s3, hwreg(HW_REG_XCC_ID)")
    I("v_writelane_b32 v252, s3, 7")
    lab = f"rt_skip_{len(out)}"
    I("v_cmp_gt_u32 vcc, 8, v0")
    I("s_and_saveexec_b64 s[100:101], vcc")
    I(f"s_cbranch_execz {lab}")
    srd(96, P_WS, P_WS + 1, 0x8000000)
    I("s_lshl_b32 s3, s2, 5")
    I(f"s_add_u32 s3, s3, {off}")
    I("v_lshlrev_b32 v1, 2, v0")
    I("buffer_store_dword v252, v1, s[96:99], s3 offen")
    L(lab)


def kd(name, vgpr, sgpr):
    if OPT["stamp"]:
        sgpr = 102
    acc = (vgpr + 3) // 4 * 4
    e('.section .rodata,"a"')
    e(".p2align 6")
    e(f".amdhsa_kernel {name}")
    e(f"  .amdhsa_next_free_vgpr {vgpr}")
    e(f"  .amdhsa_next_free_sgpr {sgpr}")
    e(f"  .amdhsa_accum_offset {acc}")
    e("  .amdhsa_group_segment_fixed_size 0")
    e("  .amdhsa_kernarg_size 80")
    e("  .amdhsa_user_sgpr_count 2")
    e("  .amdhsa_user_sgpr_kernarg_segment_ptr 1")
    e("  .amdhsa_system_sgpr_workgroup_id_x 1")
    e(".end_amdhsa_kernel")
    e(".text")


def kstart(name):
    e(f".globl {name}")
    e(".p2align 8")
    e(f".type {name},@function")
    L(name)


def load_kernargs():
    I("s_load_dwordx16 s[16:31], s[0:1], 0")
    I("s_load_dwordx4 s[32:35], s[0:1], 64")


def bf16_round_pair(a, b, t):
    I(f"v_cvt_pk_bf16_f32 v{t}, v{a}, v{b}")
    I(f"v_lshlrev_b32 v{a}, 16, v{t}")
    I(f"v_and_b32 v{b}, 0xffff0000, v{t}")


S_CB, S_RB, S_TYPE, S_M0, S_W = 4, 5, 6, 7, 8
S_AR, S_ARN, S_BR, S_BW = 9, 10, 11, 12
S_AG, S_BG = 13, 14
S_IT = 15
S_ROT = 36
SRD_X, SRD_A2, SRD_W = 40, 44, 48
S_T0, S_T1, S_T2, S_T3 = 52, 53, 54, 55
S_MA, S_MB, S_MH = 56, 57, 58
S_SLOT = 60
S_SEL_LO, S_SEL_HI, S_SCALE, S_L2E = 70, 71, 72, 73
ST_ROW, ST_COL = 112000, 113664
V_ONE = 250


class Cfg:
    pass


def k1_mainloop(c, tag):
    a = len(c.a_dma)
    b = len(c.b_dma)

    def dma_list(kind, slot_sreg):
        res = []
        lst = c.a_dma if kind == "A" else c.b_dma
        for (v, sm, off) in lst:
            setup = f"s_add_u32 m0, s{slot_sreg}, s{sm}"
            if kind == "A":
                ins = f"buffer_load_dwordx4 v{v}, s[{SRD_X}:{SRD_X+3}], s{S_AG} offen offset:{off} lds"
            else:
                ins = f"buffer_load_dwordx4 v{v}, s[{SRD_W}:{SRD_W+3}], s{S_BG} offen offset:{off} lds"
            res.append((setup, ins))
        return res

    def emit_dma_now(kind, slot_sreg):
        last = None
        for (setup, ins) in dma_list(kind, slot_sreg):
            if setup != last:
                I(setup)
                I("s_nop 0")
                last = setup
            I(ins)

    adv_a = [f"s_add_u32 s{S_AG}, s{S_AG}, 128"]
    adv_b = [f"s_add_u32 s{S_BG}, s{S_BG}, {c.bstage_g}"]

    def ring_next(sreg, size, n, base):
        I(f"s_add_u32 s{sreg}, s{sreg}, {size}")
        I(f"s_cmp_ge_u32 s{sreg}, {base + size * n}")
        I(f"s_cselect_b32 s{sreg}, {base}, s{sreg}")

    def frag_reads(fs, khalf, s_a, s_b):
        pre = []
        for (dyn, srot) in c.xaddr:
            st = c.vX1 if khalf else c.vX0
            if srot is None:
                pre.append(f"v_add_u32 v{dyn}, s{s_a}, v{st}")
            else:
                pre.append(f"s_add_u32 s3, s{s_a}, s{srot}")
                pre.append(f"v_add_u32 v{dyn}, s3, v{st}")
        for (dyn, st) in c.waddr:
            pre.append(f"v_add_u32 v{dyn}, s{s_b}, v{st}")
        rd = []
        for i, (dyn, srot) in enumerate(c.xaddr):
            r = c.XF[fs] + 4 * i
            rd.append(f"ds_read_b128 v[{r}:{r+3}], v{dyn}")
        for i, (ai, off) in enumerate(c.wfrag):
            r = c.WF[fs] + 4 * i
            rd.append(f"ds_read_b64_tr_b16 v[{r}:{r+1}], v{c.waddr[ai][0]} offset:{off}")
            rd.append(f"ds_read_b64_tr_b16 v[{r+2}:{r+3}], v{c.waddr[ai][0]} offset:{off + c.wrow4}")
        return pre, rd

    def mfmas(fs):
        res = []
        for (acc, xi, wi) in c.tiles:
            x = c.XF[fs] + 4 * xi
            w = c.WF[fs] + 4 * wi
            res.append(f"v_mfma_f32_16x16x32_bf16 v[{acc}:{acc+3}], v[{w}:{w+3}], v[{x}:{x+3}], v[{acc}:{acc+3}]")
        return res

    I(f"s_mov_b32 s{S_AG}, 0")
    I(f"s_mov_b32 s{S_BG}, 0")
    for it in ["A0", "B0", "A1", "B1", "B2", "A2", "B3"]:
        n = int(it[1])
        if it[0] == "A":
            I(f"s_mov_b32 s{S_T3}, {c.abase + n * c.asz}")
            emit_dma_now("A", S_T3)
            for x in adv_a:
                I(x)
        else:
            I(f"s_mov_b32 s{S_T3}, {c.bbase + n * c.bsz}")
            emit_dma_now("B", S_T3)
            for x in adv_b:
                I(x)
    extra = c.after_prologue()
    for r in range(c.acc0, c.acc0 + c.nacc):
        I(f"v_mov_b32 v{r}, 0")
    for r in c.stat_regs:
        I(f"v_mov_b32 v{r}, 0")
    I(f"v_mov_b32 v{V_ONE}, 0x3f803f80")
    I(f"s_mov_b32 s{S_AR}, {c.abase}")
    I(f"s_mov_b32 s{S_ARN}, {c.abase + c.asz}")
    I(f"s_mov_b32 s{S_BW}, {c.bbase}")
    I(f"s_mov_b32 s{S_BR}, {c.bbase + c.bsz}")
    I(f"s_waitcnt vmcnt({3*b + 2*a + extra})")
    I("s_barrier")
    rt_stamp(1)
    pre, rd = frag_reads(0, 0, S_AR, S_BW)
    for x in pre + rd:
        I(x)
    I(f"s_mov_b32 s{S_IT}, 0")
    I(f"s_cmp_lt_u32 s{S_W}, 4")
    I("s_cselect_b64 vcc, -1, 0")
    I("s_waitcnt lgkmcnt(0)")

    def step(half, wait, with_dma, with_reads):
        if wait is not None:
            I(f"s_waitcnt vmcnt({wait})")
        I("s_barrier")
        pre, rd = [], []
        if with_reads:
            if half == 0:
                pre, rd = frag_reads(1, 1, S_AR, S_BR)
            else:
                pre, rd = frag_reads(0, 0, S_ARN, S_BR)
        for x in pre:
            I(x)
        dm = []
        if with_dma:
            if half == 1:
                dl = dma_list("A", S_AR)
                dm += [(s_, i_, adv_a if k == len(dl) - 1 else [], True) for k, (s_, i_) in enumerate(dl)]
            dl = dma_list("B", S_BW)
            dm += [(s_, i_, adv_b if k == len(dl) - 1 else [], False) for k, (s_, i_) in enumerate(dl)]
        mf = mfmas(half)
        nm = len(mf)
        nd = len(dm)
        slots = []
        if dm:
            if OPT["stagger"]:
                pos_e = [int((k + 0.5) * (nm // 2) / nd) for k in range(nd)]
                pos_l = [nm // 2 + int((k + 0.5) * (nm - nm // 2 - 1) / nd) for k in range(nd)]
                slots = [(p_, k, "e") for k, p_ in enumerate(pos_e)] + [(p_, k, "l") for k, p_ in enumerate(pos_l)]
            else:
                slots = [(int((k + 0.5) * nm / nd), k, "a") for k in range(nd)]
        stat = c.stats(half)
        rdi = 0
        for i, m in enumerate(mf):
            I(m)
            for (p_, k, kind) in slots:
                if p_ != i:
                    continue
                lab = f"{tag}_sk_{len(out)}"
                if kind == "e":
                    I(f"s_cbranch_vccz {lab}")
                elif kind == "l":
                    I(f"s_cbranch_vccnz {lab}")
                if dm[k][3]:
                    I(f"s_cmp_ge_u32 s{S_IT}, 7")
                    I(f"s_cbranch_scc1 {lab}")
                I(dm[k][0])
                I("s_nop 0")
                I(dm[k][1])
                for x in dm[k][2]:
                    I(x)
                L(lab)
            for _ in range(OPT["rpm"]):
                if rdi < len(rd):
                    I(rd[rdi])
                    rdi += 1
            for x in stat.get(i, []):
                if x.endswith(":"):
                    e(x)
                else:
                    I(x)
        for x in rd[rdi:]:
            I(x)
        if with_reads:
            I(f"s_mov_b32 s{S_BW}, s{S_BR}")
            ring_next(S_BR, c.bsz, 4, c.bbase)
            if half == 1:
                I(f"s_mov_b32 s{S_AR}, s{S_ARN}")
                ring_next(S_ARN, c.asz, 3, c.abase)
            I("s_waitcnt lgkmcnt(0)")

    L(f"{tag}_loop")
    step(0, 2 * b + a, True, True)
    step(1, 2 * b + a, True, True)
    I(f"s_add_u32 s{S_IT}, s{S_IT}, 1")
    I(f"s_cmp_lt_u32 s{S_IT}, 8")
    I(f"s_cbranch_scc1 {tag}_loop")
    step(0, 2 * b, False, True)
    step(1, b, False, True)
    step(0, 0, False, True)
    step(1, None, False, False)
    rt_stamp(2)
    I("s_waitcnt vmcnt(0)")
    I("s_barrier")


def row_dots(xreg, s1, s2):
    r = []
    for j in range(4):
        r.append(f"v_dot2_f32_bf16 v{s1}, v{xreg+j}, v{V_ONE}, v{s1}")
        r.append(f"v_dot2_f32_bf16 v{s2}, v{xreg+j}, v{xreg+j}, v{s2}")
    return r


def col_dots(wreg, cs):
    return [f"v_dot2_f32_bf16 v{cs}, v{wreg+j}, v{V_ONE}, v{cs}" for j in range(4)]


def reduce_groups(regs, t):
    I("s_nop 3")
    for op in ("v_permlane16_swap_b32", "v_permlane32_swap_b32"):
        for r in regs:
            I(f"v_mov_b32 v{t}, v{r}")
            I("s_nop 1")
            I(f"{op} v{r}, v{t}")
            I("s_nop 1")
            I(f"v_add_f32 v{r}, v{r}, v{t}")


def finish_row_stats(p, mu, rs, t):
    I(f"v_mul_f32 v{mu}, 0x3acccccd, v{p}")
    I(f"v_mul_f32 v{rs}, 0x3acccccd, v{p+1}")
    I(f"v_fma_f32 v{rs}, -v{mu}, v{mu}, v{rs}")
    I(f"v_max_f32 v{rs}, 0, v{rs}")
    I(f"v_cvt_pk_bf16_f32 v{t}, v{mu}, v{rs}")
    I(f"v_lshlrev_b32 v{mu}, 16, v{t}")
    I(f"v_and_b32 v{rs}, 0xffff0000, v{t}")
    I(f"v_add_f32 v{rs}, 0x3727c5ac, v{rs}")
    I(f"v_cvt_pk_bf16_f32 v{rs}, v{rs}, v{rs}")
    I(f"v_lshlrev_b32 v{rs}, 16, v{rs}")
    I(f"v_sqrt_f32 v{rs}, v{rs}")
    I("s_nop 0")
    I(f"v_cvt_pk_bf16_f32 v{rs}, v{rs}, v{rs}")
    I(f"v_lshlrev_b32 v{rs}, 16, v{rs}")
    I(f"v_rcp_f32 v{rs}, v{rs}")
    I("s_nop 0")


def gen_k1():
    name = "gemm1_kernel"
    kstart(name)
    I("s_cmp_ge_u32 s2, 256")
    I("s_cbranch_scc1 k1_done")
    rt_stamp(0)
    load_kernargs()
    I(f"s_and_b32 s{S_T0}, s2, 7")
    I(f"s_lshr_b32 s{S_T1}, s2, 3")
    I(f"s_lshr_b32 s{S_RB}, s{S_T0}, 1")
    I(f"s_lshl_b32 s{S_RB}, s{S_RB}, 2")
    I(f"s_and_b32 s{S_T2}, s{S_T1}, 3")
    I(f"s_add_u32 s{S_RB}, s{S_RB}, s{S_T2}")
    I(f"s_lshr_b32 s{S_T1}, s{S_T1}, 2")
    I(f"s_and_b32 s{S_TYPE}, s{S_T1}, 1")
    I(f"s_lshr_b32 s{S_T1}, s{S_T1}, 1")
    I(f"s_and_b32 s{S_CB}, s{S_T0}, 1")
    I(f"s_lshl_b32 s{S_CB}, s{S_CB}, 2")
    I(f"s_add_u32 s{S_CB}, s{S_CB}, s{S_T1}")
    I(f"s_lshl_b32 s{S_M0}, s{S_RB}, 7")
    I("v_lshrrev_b32 v1, 6, v0")
    I("v_and_b32 v2, 63, v0")
    I(f"v_readfirstlane_b32 s{S_W}, v1")
    I("v_and_b32 v3, 15, v2")
    I("v_lshrrev_b32 v4, 4, v2")
    I(f"s_cmp_eq_u32 s{S_TYPE}, 0")
    I("s_cbranch_scc1 k1_qkv")

    def build_srds():
        I("s_waitcnt lgkmcnt(0)")
        srd(SRD_X, P_X, P_X + 1, X_BYTES)
        srd(SRD_A2, P_WS, P_WS + 1, A2_BYTES + W2_BYTES)

    def a_dma_main(vAd):
        I(f"s_lshl_b32 s{S_T0}, s{S_W}, 4")
        I(f"s_add_u32 s{S_T0}, s{S_T0}, s{S_M0}")
        I("v_lshrrev_b32 v1, 3, v2")
        I(f"v_add_u32 v5, s{S_T0}, v1")
        I("v_mul_u32_u24 v5, 1280, v5")
        I("v_and_b32 v6, 7, v2")
        I("v_xor_b32 v7, v6, v4")
        I(f"v_lshl_add_u32 v{vAd}, v7, 4, v5")
        I("v_or_b32 v7, 4, v4")
        I("v_xor_b32 v7, v6, v7")
        I(f"v_lshl_add_u32 v{vAd+1}, v7, 4, v5")
        I(f"v_add_u32 v{vAd+1}, {8*1280 - 1024}, v{vAd+1}")

    def x_base(vX0, vX1):
        I("v_lshrrev_b32 v6, 1, v3")
        I("v_xor_b32 v6, v6, v4")
        I("v_lshlrev_b32 v6, 4, v6")
        I(f"v_lshl_add_u32 v{vX0}, v3, 7, v6")
        I(f"v_xor_b32 v{vX1}, 64, v{vX0}")

    c = Cfg()
    c.asz, c.bsz, c.abase, c.bbase = 16384, 24576, 0, 49152
    c.bstage_g = 32 * F * 2
    c.wrow4 = 4 * 24 * 16
    c.acc0, c.nacc = 128, 96
    c.XF = [8, 48]
    c.WF = [24, 64]
    c.vX0, c.vX1 = 88, 89
    vW, vXa, vWa, vAd, vBd = 90, 93, 97, 100, 102
    vS1, vS2, vC = 106, 107, 108
    c.stat_regs = [vS1, vS2, vC, vC + 1, vC + 2]
    a_dma_main(vAd)
    I(f"s_lshl_b32 s{S_MA}, s{S_W}, 11")
    c.a_dma = [(vAd, S_MA, 0), (vAd + 1, S_MA, 1024)]
    I(f"s_and_b32 s{S_T0}, s{S_W}, 3")
    I(f"s_mul_i32 s{S_T1}, s{S_T0}, 192")
    I(f"s_mul_i32 s{S_T2}, s{S_CB}, 384")
    for ii in range(3):
        I(f"v_add_u32 v5, s{S_T1}, v2")
        if ii:
            I(f"v_add_u32 v5, {64*ii}, v5")
        I("v_mul_u32_u24 v6, 2731, v5")
        I("v_lshrrev_b32 v6, 16, v6")
        I("v_mul_u32_u24 v7, 24, v6")
        I("v_sub_u32 v7, v5, v7")
        I("v_and_b32 v1, 2, v6")
        I("v_lshrrev_b32 v5, 1, v6")
        I("v_and_b32 v5, 4, v5")
        I("v_or_b32 v1, v1, v5")
        I("v_xor_b32 v7, v7, v1")
        I("v_mul_u32_u24 v6, 3072, v6")
        I("v_lshl_add_u32 v6, v7, 4, v6")
        I(f"v_add_u32 v{vBd+ii}, s{S_T2}, v6")
        if ii:
            I(f"v_subrev_u32 v{vBd+ii}, {1024*ii}, v{vBd+ii}")
    I(f"s_lshr_b32 s{S_T1}, s{S_W}, 2")
    I(f"s_mul_i32 s{S_MB}, s{S_T1}, 12288")
    I(f"s_mul_i32 s{S_T1}, s{S_T0}, 3072")
    I(f"s_add_u32 s{S_MB}, s{S_MB}, s{S_T1}")
    c.b_dma = [(vBd + ii, S_MB, 1024 * ii) for ii in range(3)]
    build_srds()
    I(f"s_cmp_lt_u32 s{S_W}, 4")
    I(f"s_cselect_b32 s{SRD_W}, s{P_WG}, s{P_WU}")
    I(f"s_cselect_b32 s{SRD_W+1}, s{P_WG+1}, s{P_WU+1}")
    I(f"s_and_b32 s{SRD_W+1}, s{SRD_W+1}, 0xffff")
    I(f"s_mov_b32 s{SRD_W+2}, {D*F*2}")
    I(f"s_mov_b32 s{SRD_W+3}, 0x20000")

    def glu_after():
        x_base(c.vX0, c.vX1)
        I(f"s_lshr_b32 s{S_T1}, s{S_W}, 2")
        I(f"s_lshl_b32 s{S_T1}, s{S_T1}, 2")
        for i in range(4):
            I(f"s_add_u32 s{S_T2}, s{S_T0}, {i}")
            I(f"s_and_b32 s{S_T2}, s{S_T2}, 3")
            I(f"s_add_u32 s{S_T2}, s{S_T2}, s{S_T1}")
            I(f"s_lshl_b32 s{S_ROT+i}, s{S_T2}, 11")
        I("v_lshrrev_b32 v5, 2, v3")
        I("v_and_b32 v6, 3, v2")
        I("v_lshl_add_u32 v7, v4, 3, v5")
        I("v_mul_u32_u24 v7, 384, v7")
        I("v_and_b32 v1, 1, v6")
        I("v_lshl_add_u32 v7, v1, 3, v7")
        I("v_and_b32 v5, 2, v5")
        I("v_and_b32 v1, 1, v4")
        I("v_lshl_or_b32 v5, v1, 2, v5")
        I("v_lshrrev_b32 v6, 1, v6")
        I(f"s_mul_i32 s{S_T1}, s{S_T0}, 6")
        I(f"v_add_u32 v6, s{S_T1}, v6")
        for ct in range(3):
            I(f"v_add_u32 v1, {2*ct}, v6")
            I("v_xor_b32 v1, v1, v5")
            I(f"v_lshl_add_u32 v{vW+ct}, v1, 4, v7")
        return 0

    c.after_prologue = glu_after
    c.xaddr = [(vXa + i, S_ROT + i) for i in range(4)]
    c.waddr = [(vWa + ct, vW + ct) for ct in range(3)]
    c.wfrag = [(ct, 0) for ct in range(3)] + [(ct, 12288) for ct in range(3)]
    c.tiles = [(c.acc0 + (rt * 6 + ct) * 4, rt, ct) for rt in range(4) for ct in range(6)]

    def glu_stats(fs):
        d = {}
        rdts = row_dots(c.XF[fs], vS1, vS2)
        for k in range(4):
            d[9 + k] = rdts[2 * k:2 * k + 2]
        la, lj = f"glu_cb_{len(out)}_{fs}", f"glu_cj_{len(out)}_{fs}"
        blk = [f"s_cbranch_vccz {la}"]
        for ct in range(3):
            blk += col_dots(c.WF[fs] + 4 * ct, vC + ct)
        blk += [f"s_branch {lj}", f"{la}:"]
        for ct in range(3):
            blk += col_dots(c.WF[fs] + 12 + 4 * ct, vC + ct)
        blk += [f"{lj}:"]
        d[16] = blk
        return d

    c.stats = glu_stats
    k1_mainloop(c, "glu")
    reduce_groups([vS1, vS2, vC, vC + 1, vC + 2], 8)
    I(f"s_lshr_b32 s{S_T1}, s{S_ROT}, 4")
    I(f"s_add_u32 s{S_T1}, s{S_T1}, {ST_ROW}")
    I("v_lshlrev_b32 v5, 3, v3")
    I(f"v_add_u32 v5, s{S_T1}, v5")
    I(f"s_lshr_b32 s{S_T1}, s{S_W}, 2")
    I(f"s_mul_i32 s{S_T1}, s{S_T1}, 768")
    I(f"s_mul_i32 s{S_T2}, s{S_T0}, 192")
    I(f"s_add_u32 s{S_T1}, s{S_T1}, s{S_T2}")
    I(f"s_add_u32 s{S_T1}, s{S_T1}, {ST_COL}")
    I("v_lshlrev_b32 v6, 2, v3")
    I(f"v_add_u32 v6, s{S_T1}, v6")
    I("s_mov_b64 exec, 0xffff")
    I(f"ds_write_b64 v5, v[{vS1}:{vS2}]")
    for ct in range(3):
        I(f"ds_write_b32 v6, v{vC+ct} offset:{64*ct}")
    I("s_mov_b64 exec, -1")
    I("s_waitcnt lgkmcnt(0)")
    I("s_barrier")
    RSV = 8
    I("v_lshlrev_b32 v5, 3, v3")
    I(f"v_add_u32 v5, {ST_ROW}, v5")
    for i in range(4):
        I(f"s_lshr_b32 s{S_T1}, s{S_ROT+i}, 4")
        I(f"v_add_u32 v6, s{S_T1}, v5")
        I(f"ds_read_b64 v[{RSV+2*i}:{RSV+2*i+1}], v6")
    I("v_lshlrev_b32 v6, 4, v4")
    I(f"v_add_u32 v6, s{S_T2}, v6")
    I(f"v_add_u32 v6, {ST_COL}, v6")
    for ct in range(3):
        I(f"ds_read_b128 v[{32+4*ct}:{35+4*ct}], v6 offset:{64*ct}")
        I(f"ds_read_b128 v[{44+4*ct}:{47+4*ct}], v6 offset:{768 + 64*ct}")
    I(f"s_mov_b32 s{S_L2E}, 0xbfb8aa3b")
    I("s_waitcnt lgkmcnt(0)")
    for i in range(4):
        finish_row_stats(RSV + 2 * i, 16 + i, 20 + i, 7)
        I(f"v_mul_f32 v{24+i}, s{S_L2E}, v{20+i}")
    I(f"s_mul_i32 s{S_T1}, s{S_RB}, {8*69632}")
    I(f"s_mul_i32 s{S_T2}, s{S_CB}, 12")
    I(f"s_mul_i32 s{S_T3}, s{S_T0}, 3")
    I(f"s_add_u32 s{S_T2}, s{S_T2}, s{S_T3}")
    I(f"s_add_u32 s{S_T2}, s{S_T2}, 40")
    I(f"s_lshl_b32 s{S_T2}, s{S_T2}, 9")
    I(f"s_add_u32 s{S_T1}, s{S_T1}, s{S_T2}")
    I("v_lshrrev_b32 v5, 1, v4")
    I("v_lshlrev_b32 v5, 8, v5")
    I("v_lshl_add_u32 v5, v3, 4, v5")
    I("v_and_b32 v6, 1, v4")
    I("v_lshl_add_u32 v5, v6, 3, v5")
    I(f"v_add_u32 v5, s{S_T1}, v5")
    for rt in range(4):
        I(f"s_mul_i32 s{S_T2}, s{S_ROT+rt}, 34")
        for ct in range(3):
            g = c.acc0 + (rt * 6 + ct) * 4
            u = c.acc0 + (rt * 6 + 3 + ct) * 4
            for r in range(4):
                I(f"v_fma_f32 v{g+r}, -v{16+rt}, v{32+4*ct+r}, v{g+r}")
                I(f"v_fma_f32 v{u+r}, -v{16+rt}, v{44+4*ct+r}, v{u+r}")
            if OPT["exact"]:
                for r in range(4):
                    I(f"v_mul_f32 v{g+r}, v{g+r}, v{20+rt}")
                    I(f"v_mul_f32 v{u+r}, v{u+r}, v{20+rt}")
                bf16_round_pair(g, g + 1, 7)
                bf16_round_pair(g + 2, g + 3, 7)
                bf16_round_pair(u, u + 1, 7)
                bf16_round_pair(u + 2, u + 3, 7)
                for r in range(4):
                    I(f"v_mul_f32 v{g+r}, s{S_L2E}, v{g+r}")
            else:
                for r in range(4):
                    I(f"v_mul_f32 v{g+r}, v{g+r}, v{24+rt}")
                    I(f"v_mul_f32 v{u+r}, v{u+r}, v{20+rt}")
            for r in range(4):
                I(f"v_exp_f32 v{g+r}, v{g+r}")
            I("s_nop 0")
            for r in range(4):
                I(f"v_add_f32 v{g+r}, 1.0, v{g+r}")
            for r in range(4):
                I(f"v_rcp_f32 v{g+r}, v{g+r}")
            I("s_nop 0")
            if OPT["exact"]:
                bf16_round_pair(g, g + 1, 7)
                bf16_round_pair(g + 2, g + 3, 7)
            for r in range(4):
                I(f"v_mul_f32 v{g+r}, v{g+r}, v{u+r}")
            I(f"v_cvt_pk_bf16_f32 v{u}, v{g}, v{g+1}")
            I(f"v_cvt_pk_bf16_f32 v{u+1}, v{g+2}, v{g+3}")
            I(f"buffer_store_dwordx2 v[{u}:{u+1}], v5, s[{SRD_A2}:{SRD_A2+3}], s{S_T2} offen offset:{ct*512}")
    rt_flush(0x4000000)
    I("s_endpgm")

    L("k1_qkv")
    c = Cfg()
    c.asz, c.bsz, c.abase, c.bbase = 18432, 16384, 0, 55296
    c.bstage_g = 32 * 3 * D * 2
    c.wrow4 = 4 * 30 * 16
    c.acc0, c.nacc = 128, 72
    c.XF = [8, 60]
    c.WF = [20, 72]
    c.vX0, c.vX1 = 112, 113
    vW, vXa, vWa, vAd, vBd = 114, 117, 120, 123, 200
    vS1, vS2, vH1, vH2, vC = 224, 225, 226, 227, 228
    c.stat_regs = [vS1, vS2, vH1, vH2, vC, vC + 1]
    extra_t = {0: (5, 0), 2: (6, 1), 4: (7, 2), 6: (3, 4), 1: (8, 9), 3: (10, 11), 5: (12, 13), 7: (14, 14)}
    a_dma_main(vAd)
    I(f"s_and_b32 s{S_T1}, s{S_W}, 1")
    I(f"s_lshl_b32 s{S_T2}, s{S_T1}, 3")
    I(f"s_add_u32 s{S_T2}, s{S_T2}, s{S_M0}")
    I(f"s_sub_u32 s{S_T2}, s{S_T2}, 16")
    I(f"v_add_u32 v5, s{S_T2}, v1")
    I(f"s_mov_b32 s{S_T2}, 1280")
    I(f"v_mul_lo_u32 v5, v5, s{S_T2}")
    I(f"s_lshl_b32 s{S_T2}, s{S_T1}, 2")
    I(f"v_or_b32 v7, s{S_T2}, v4")
    I("v_xor_b32 v7, v6, v7")
    I(f"v_lshl_add_u32 v{vAd+2}, v7, 4, v5")
    I(f"s_lshl_b32 s{S_MA}, s{S_W}, 11")
    I(f"s_add_u32 s{S_MA}, s{S_MA}, 2048")
    I(f"s_lshl_b32 s{S_MH}, s{S_T1}, 10")
    c.a_dma = [(vAd, S_MA, 0), (vAd + 1, S_MA, 1024), (vAd + 2, S_MH, 0)]
    I(f"s_mul_i32 s{S_T2}, s{S_CB}, 160")
    I(f"s_lshl_b32 s{S_T0}, s{S_W}, 7")
    for ii in range(2):
        I(f"v_add_u32 v5, s{S_T0}, v2")
        if ii:
            I("v_add_u32 v5, 64, v5")
        I("v_mul_u32_u24 v6, 1058, v5")
        I("v_lshrrev_b32 v6, 18, v6")
        I("v_mul_u32_u24 v7, 248, v6")
        I("v_sub_u32 v5, v5, v7")
        I("v_mul_u32_u24 v7, 2185, v5")
        I("v_lshrrev_b32 v7, 16, v7")
        I("v_lshl_add_u32 v6, v6, 3, v7")
        I("v_mul_u32_u24 v7, 30, v7")
        I("v_sub_u32 v7, v5, v7")
        I("v_mul_u32_u24 v1, 26, v7")
        I("v_lshrrev_b32 v1, 8, v1")
        I("v_mul_u32_u24 v1, 1120, v1")
        I("v_lshl_add_u32 v1, v7, 4, v1")
        I("v_cmp_gt_u32 vcc, 240, v5")
        I("v_mul_u32_u24 v7, 3840, v6")
        I("v_add_u32 v1, v1, v7")
        I(f"v_add_u32 v1, s{S_T2}, v1")
        if ii:
            I("v_subrev_u32 v1, 1024, v1")
        I("v_mov_b32 v7, 0x7f000000")
        I("v_cndmask_b32 v1, v7, v1, vcc")
        I("v_cmp_gt_u32 vcc, 32, v6")
        I("s_nop 1")
        I(f"v_cndmask_b32 v{vBd+ii}, v7, v1, vcc")
    I(f"s_lshl_b32 s{S_MB}, s{S_W}, 11")
    c.b_dma = [(vBd + ii, S_MB, 1024 * ii) for ii in range(2)]
    build_srds()
    srd(SRD_W, P_WQKV, P_WQKV + 1, D * 3 * D * 2)
    RL_LDS = 120832
    sI, sKS, sCG, sV, sT, sD = 75, 76, 77, 78, 79, 80
    SRD_S = 84
    S_ET = 88
    vRa, vRt = 202, 204

    def qkv_after():
        I(f"s_lshr_b32 s{sT}, s2, 3")
        I(f"s_and_b32 s{sV}, s{sT}, 3")
        I(f"s_lshr_b32 s{sT}, s{sT}, 3")
        I(f"s_lshl_b32 s{sT}, s{sT}, 2")
        I(f"s_add_u32 s{sV}, s{sV}, s{sT}")
        I(f"s_and_b32 s{sT}, s2, 7")
        I(f"s_lshl_b32 s{sT}, s{sT}, 4")
        I(f"s_add_u32 s{sV}, s{sV}, s{sT}")
        I(f"s_lshl_b32 s{sI}, s{sV}, 3")
        I(f"s_add_u32 s{sI}, s{sI}, s{S_W}")
        I(f"s_min_u32 s{sT}, s{sI}, 679")
        I(f"s_mul_i32 s{sKS}, s{sT}, 6554")
        I(f"s_lshr_b32 s{sKS}, s{sKS}, 16")
        I(f"s_mul_i32 s{sV}, s{sKS}, 10")
        I(f"s_sub_u32 s{sCG}, s{sT}, s{sV}")
        I(f"s_cmp_lt_u32 s{sKS}, 20")
        I(f"s_cselect_b32 s{SRD_S}, s{P_WO}, s{P_WD}")
        I(f"s_cselect_b32 s{SRD_S+1}, s{P_WO+1}, s{P_WD+1}")
        I(f"s_mov_b32 s{SRD_S+2}, {F*D*2}")
        I(f"s_cselect_b32 s{SRD_S+2}, {D*D*2}, s{SRD_S+2}")
        I(f"s_cselect_b32 s{sT}, 0, 20")
        I(f"s_and_b32 s{SRD_S+1}, s{SRD_S+1}, 0xffff")
        I(f"s_mov_b32 s{SRD_S+3}, 0x20000")
        I(f"s_sub_u32 s{sT}, s{sKS}, s{sT}")
        I(f"s_mul_i32 s{sT}, s{sT}, {32*1280}")
        I(f"s_lshl_b32 s{sV}, s{sCG}, 7")
        I(f"s_add_u32 s{sT}, s{sT}, s{sV}")
        I("v_lshrrev_b32 v5, 3, v2")
        I("v_and_b32 v6, 7, v2")
        I("v_and_b32 v7, 2, v5")
        I("v_xor_b32 v6, v6, v7")
        I("v_mul_u32_u24 v5, 1280, v5")
        I(f"v_lshl_add_u32 v{vRa}, v6, 4, v5")
        I("v_xor_b32 v6, 4, v6")
        I(f"v_lshl_add_u32 v{vRa+1}, v6, 4, v5")
        I(f"s_lshl_b32 s{sV}, s{S_W}, 12")
        I(f"s_add_u32 s{sV}, s{sV}, {RL_LDS}")
        for a_ in range(4):
            I(f"s_add_u32 m0, s{sV}, {1024*a_}")
            I("s_nop 0")
            I(f"buffer_load_dwordx4 v{vRa + (a_ & 1)}, s[{SRD_S}:{SRD_S+3}], s{sT} offen lds")
            if a_ < 3:
                I(f"s_add_u32 s{sT}, s{sT}, {8*1280}")
        I("v_lshrrev_b32 v5, 2, v3")
        I("v_lshl_add_u32 v6, v4, 3, v5")
        I("v_lshlrev_b32 v6, 7, v6")
        I("v_and_b32 v7, 1, v2")
        I("v_lshl_add_u32 v6, v7, 3, v6")
        I(f"v_add_u32 v6, s{sV}, v6")
        I("v_and_b32 v5, 2, v5")
        I("v_and_b32 v7, 1, v4")
        I("v_lshl_or_b32 v5, v7, 2, v5")
        I("v_lshrrev_b32 v7, 1, v2")
        I("v_and_b32 v7, 1, v7")
        for ct in range(4):
            I(f"v_add_u32 v1, {2*ct}, v7")
            I("v_xor_b32 v1, v1, v5")
            I(f"v_lshl_add_u32 v{vRt+ct}, v1, 4, v6")
        for ct in range(4):
            I(f"s_lshl_b32 s{sT}, s{sCG}, 2")
            I(f"s_add_u32 s{sT}, s{sT}, {ct}")
            I(f"s_mul_i32 s{sV}, s{sT}, 52")
            I(f"s_lshr_b32 s{sV}, s{sV}, 8")
            I(f"s_mul_i32 s{sD+ct}, s{sV}, 5")
            I(f"s_sub_u32 s{sT}, s{sT}, s{sD+ct}")
            I(f"s_mul_i32 s{sV}, s{sV}, 68")
            I(f"s_add_u32 s{sV}, s{sV}, s{sKS}")
            I(f"s_mul_i32 s{sV}, s{sV}, 5")
            I(f"s_add_u32 s{sV}, s{sV}, s{sT}")
            I(f"s_lshl_b32 s{sV}, s{sV}, 10")
            I(f"s_add_u32 s{sD+ct}, s{sV}, {W2_OFF}")
        x_base(c.vX0, c.vX1)
        I(f"s_and_b32 s{S_T2}, s{S_W}, 6")
        I(f"s_add_u32 s{S_T3}, s{S_T2}, s{S_T1}")
        I(f"s_add_u32 s{S_T3}, s{S_T3}, 1")
        I(f"s_lshl_b32 s{S_ROT}, s{S_T3}, 11")
        I(f"s_sub_u32 s{S_T3}, s{S_T2}, s{S_T1}")
        I(f"s_add_u32 s{S_T3}, s{S_T3}, 2")
        I(f"s_lshl_b32 s{S_ROT+1}, s{S_T3}, 11")
        I("v_lshrrev_b32 v5, 2, v3")
        I("v_mul_u32_u24 v5, 30, v5")
        I("v_mul_u32_u24 v6, 248, v4")
        I("v_add_u32 v5, v5, v6")
        I("v_lshrrev_b32 v6, 1, v2")
        I("v_and_b32 v6, 1, v6")
        I("v_add_u32 v5, v5, v6")
        I("v_lshlrev_b32 v5, 4, v5")
        I("v_and_b32 v6, 1, v2")
        I("v_lshl_add_u32 v5, v6, 3, v5")
        I(f"s_lshl_b32 s{S_T2}, s{S_T1}, 8")
        I(f"v_add_u32 v{vW}, s{S_T2}, v5")
        packed_lo = sum((extra_t[w][0] | (extra_t[w][1] << 4)) << (8 * w) for w in range(4))
        packed_hi = sum((extra_t[w][0] | (extra_t[w][1] << 4)) << (8 * (w - 4)) for w in range(4, 8))
        I(f"s_mov_b32 s{S_T2}, {packed_hi:#x}")
        I(f"s_cmp_lt_u32 s{S_W}, 4")
        I(f"s_cselect_b32 s{S_T2}, {packed_lo:#x}, s{S_T2}")
        I(f"s_and_b32 s{S_T3}, s{S_W}, 3")
        I(f"s_lshl_b32 s{S_T3}, s{S_T3}, 3")
        I(f"s_lshr_b32 s{S_T2}, s{S_T2}, s{S_T3}")
        for q in range(2):
            I(f"s_lshr_b32 s{S_T3}, s{S_T2}, {4*q}")
            I(f"s_and_b32 s{S_ET+q}, s{S_T3}, 15")
            I(f"s_lshl_b32 s{S_T0}, s{S_ET+q}, 5")
            I(f"v_add_u32 v{vW+1+q}, s{S_T0}, v5")
            I(f"s_mul_i32 s{S_T0}, s{S_ET+q}, 52")
            I(f"s_lshr_b32 s{S_T0}, s{S_T0}, 8")
            I(f"s_mul_i32 s{S_T3}, s{S_T0}, 5")
            I(f"s_sub_u32 s{S_T3}, s{S_ET+q}, s{S_T3}")
            I(f"s_lshl_b32 s{S_T3}, s{S_T3}, 5")
            I(f"s_mul_i32 s{S_T0}, s{S_T0}, 24192")
            I(f"s_add_u32 s{S_T0}, s{S_T0}, s{S_T3}")
            I(f"s_sub_u32 s{S_T0}, s{S_T0}, 2688")
            I(f"s_cmp_ge_u32 s{S_ET+q}, 5")
            I(f"s_cselect_b32 s{S_SLOT+8+q}, s{S_T0}, 70656")
        for q in range(8):
            def base(t):
                if t >= 15:
                    return 70656 - 2688
                return (t // 5) * 24192 - 2688 + (t % 5) * 32
            b0, b1 = base(q) & 0xffffffff, base(8 + q) & 0xffffffff
            I(f"s_mov_b32 s{S_SLOT+q}, {b1:#x}")
            I(f"s_cmp_eq_u32 s{S_T1}, 0")
            I(f"s_cselect_b32 s{S_SLOT+q}, {b0:#x}, s{S_SLOT+q}")
        return 4

    c.after_prologue = qkv_after
    c.xaddr = [(vXa, S_ROT), (vXa + 1, S_ROT + 1), (vXa + 2, None)]
    c.waddr = [(vWa, vW), (vWa + 1, vW + 1), (vWa + 2, vW + 2)]
    c.wfrag = [(0, q * 32) for q in range(8)] + [(1, 0), (2, 0)]
    c.tiles = [(c.acc0 + (q * 2 + rt) * 4, rt, q) for q in range(8) for rt in range(2)]
    c.tiles += [(c.acc0 + (16 + q) * 4, 2, 8 + q) for q in range(2)]

    def qkv_stats(fs):
        d = {}
        rdts = row_dots(c.XF[fs], vS1, vS2)
        for k in range(4):
            d[6 + k] = rdts[2 * k:2 * k + 2]
        cd = col_dots(c.WF[fs] + 32, vC) + col_dots(c.WF[fs] + 36, vC + 1)
        for k in range(4):
            d[11 + k] = cd[2 * k:2 * k + 2]
        lab = f"qkv_hs_{len(out)}_{fs}"
        d[16] = [f"s_cmp_lg_u32 s{S_W}, 0", f"s_cbranch_scc1 {lab}"] + row_dots(c.XF[fs] + 8, vH1, vH2) + [f"{lab}:"]
        return d

    c.stats = qkv_stats
    k1_mainloop(c, "qkv")
    for ct in range(4):
        r = 208 + 4 * ct
        I(f"ds_read_b64_tr_b16 v[{r}:{r+1}], v{vRt+ct}")
        I(f"ds_read_b64_tr_b16 v[{r+2}:{r+3}], v{vRt+ct} offset:512")
    I("v_lshlrev_b32 v1, 4, v2")
    for ct in range(4):
        r = 208 + 4 * ct
        I(f"s_waitcnt lgkmcnt({2*(3-ct)})")
        I(f"buffer_store_dwordx4 v[{r}:{r+3}], v1, s[{SRD_A2}:{SRD_A2+3}], s{sD+ct} offen")
    reduce_groups([vS1, vS2, vH1, vH2, vC, vC + 1], 8)
    I(f"s_lshr_b32 s{S_T2}, s{S_ROT}, 4")
    I("v_lshlrev_b32 v5, 3, v3")
    I(f"v_add_u32 v5, {ST_ROW}, v5")
    I(f"v_add_u32 v7, s{S_T2}, v5")
    I("v_lshlrev_b32 v6, 2, v3")
    I(f"v_add_u32 v6, {ST_COL}, v6")
    I(f"s_lshl_b32 s{S_T2}, s{S_ET}, 6")
    I(f"v_add_u32 v9, s{S_T2}, v6")
    I(f"s_lshl_b32 s{S_T2}, s{S_ET+1}, 6")
    I(f"v_add_u32 v10, s{S_T2}, v6")
    I("s_mov_b64 exec, 0xffff")
    I(f"ds_write_b64 v7, v[{vS1}:{vS2}]")
    I(f"ds_write_b32 v9, v{vC}")
    I(f"ds_write_b32 v10, v{vC+1}")
    I(f"s_cmp_lg_u32 s{S_W}, 0")
    I("s_cbranch_scc1 qkv_nohalo")
    I(f"ds_write_b64 v5, v[{vH1}:{vH2}]")
    L("qkv_nohalo")
    I("s_mov_b64 exec, -1")
    I("s_waitcnt lgkmcnt(0)")
    I("s_barrier")
    for i in range(2):
        I(f"s_lshr_b32 s{S_T2}, s{S_ROT+i}, 4")
        I(f"v_add_u32 v6, s{S_T2}, v5")
        I(f"ds_read_b64 v[{8+2*i}:{9+2*i}], v6")
    I(f"ds_read_b64 v[12:13], v5")
    I("v_lshlrev_b32 v6, 4, v4")
    I(f"v_add_u32 v6, {ST_COL}, v6")
    I(f"s_and_b32 s{S_T1}, s{S_W}, 1")
    I(f"s_lshl_b32 s{S_T2}, s{S_T1}, 9")
    I(f"v_add_u32 v7, s{S_T2}, v6")
    CSV = 32
    for q in range(8):
        I(f"ds_read_b128 v[{CSV+4*q}:{CSV+4*q+3}], v7 offset:{64*q}")
    for q in range(2):
        I(f"s_lshl_b32 s{S_T2}, s{S_ET+q}, 6")
        I(f"v_add_u32 v7, s{S_T2}, v6")
        I(f"ds_read_b128 v[{CSV+32+4*q}:{CSV+35+4*q}], v7")
    I("s_waitcnt lgkmcnt(0)")
    for i in range(3):
        finish_row_stats(8 + 2 * i, 16 + i, 20 + i, 7)
    I("v_mul_u32_u24 v5, 168, v3")
    I("v_lshl_add_u32 v5, v4, 3, v5")
    for i in range(2):
        I(f"s_lshr_b32 s{S_T2}, s{S_ROT+i}, 11")
        I(f"s_mul_i32 s{S_T2}, s{S_T2}, {16*168}")
        I(f"v_add_u32 v{24+i}, s{S_T2}, v5")
    for q in range(8):
        for rt in range(2):
            a = c.acc0 + (q * 2 + rt) * 4
            for r in range(4):
                I(f"v_fma_f32 v{a+r}, -v{16+rt}, v{CSV+4*q+r}, v{a+r}")
            for r in range(4):
                I(f"v_mul_f32 v{a+r}, v{a+r}, v{20+rt}")
            I(f"v_cvt_pk_bf16_f32 v{a}, v{a}, v{a+1}")
            I(f"v_cvt_pk_bf16_f32 v{a+1}, v{a+2}, v{a+3}")
            I(f"v_add_u32 v7, s{S_SLOT+q}, v{24+rt}")
            I(f"ds_write_b64 v7, v[{a}:{a+1}]")
    for q in range(2):
        a = c.acc0 + (16 + q) * 4
        for r in range(4):
            I(f"v_fma_f32 v{a+r}, -v18, v{CSV+32+4*q+r}, v{a+r}")
        for r in range(4):
            I(f"v_mul_f32 v{a+r}, v{a+r}, v22")
        I(f"v_cvt_pk_bf16_f32 v{a}, v{a}, v{a+1}")
        I(f"v_cvt_pk_bf16_f32 v{a+1}, v{a+2}, v{a+3}")
        I(f"v_add_u32 v7, s{S_SLOT+8+q}, v5")
        I(f"ds_write_b64 v7, v[{a}:{a+1}]")
    I("s_waitcnt lgkmcnt(0)")
    I("s_barrier")
    KOFF, VOFF = 21504, 45696
    I(f"s_and_b32 s{S_T0}, s{S_W}, 1")
    I(f"s_lshl_b32 s{S_T0}, s{S_T0}, 6")
    I(f"v_add_u32 v5, s{S_T0}, v2")
    I(f"v_add_u32 v6, s{S_M0}, v5")
    I("v_mul_u32_u24 v5, 168, v5")
    I(f"s_lshr_b32 s{S_T1}, s{S_W}, 1")
    I(f"s_mul_i32 s{S_T2}, s{S_T1}, 40")
    I(f"v_add_u32 v5, s{S_T2}, v5")
    Q = 8
    KV = 20
    LG = 100
    O = 110
    for i in range(5):
        I(f"ds_read_b64 v[{Q+2*i}:{Q+2*i+1}], v5 offset:{8*i}")
    for wi in range(8):
        for i in range(5):
            off = KOFF + (16 - 2 * wi) * 168 + 8 * i
            I(f"ds_read_b64 v[{KV+10*wi+2*i}:{KV+10*wi+2*i+1}], v5 offset:{off}")
    I(f"s_mov_b32 s{S_SCALE}, 0x3e64f92e")
    I(f"s_mov_b32 s{S_L2E}, 0x3fb8aa3b")
    I(f"s_mov_b32 s{S_SEL_LO}, 0x05040100")
    I(f"s_mov_b32 s{S_SEL_HI}, 0x07060302")
    I("s_waitcnt lgkmcnt(0)")
    for i in range(10):
        for wi in range(8):
            src = "0" if i == 0 else f"v{LG+wi}"
            I(f"v_dot2_f32_bf16 v{LG+wi}, v{Q+i}, v{KV+10*wi+i}, {src}")
    I("s_nop 3")
    for wi in range(8):
        for i in range(5):
            off = VOFF + (16 - 2 * wi) * 168 + 8 * i
            I(f"ds_read_b64 v[{KV+10*wi+2*i}:{KV+10*wi+2*i+1}], v5 offset:{off}")
    for p in range(4):
        a, b = LG + 2 * p, LG + 2 * p + 1
        bf16_round_pair(a, b, 7)
        I(f"v_mul_f32 v{a}, s{S_SCALE}, v{a}")
        I(f"v_mul_f32 v{b}, s{S_SCALE}, v{b}")
        bf16_round_pair(a, b, 7)
    I("v_mov_b32 v7, 0xce6e6b28")
    for wi in range(1, 8):
        I(f"v_cmp_le_u32 vcc, {2*wi}, v6")
        I("s_nop 1")
        I(f"v_cndmask_b32 v{LG+wi}, v7, v{LG+wi}, vcc")
    I(f"v_max3_f32 v7, v{LG}, v{LG+1}, v{LG+2}")
    I(f"v_max3_f32 v7, v7, v{LG+3}, v{LG+4}")
    I(f"v_max3_f32 v7, v7, v{LG+5}, v{LG+6}")
    I(f"v_max_f32 v7, v7, v{LG+7}")
    for wi in range(8):
        I(f"v_sub_f32 v{LG+wi}, v{LG+wi}, v7")
        I(f"v_mul_f32 v{LG+wi}, s{S_L2E}, v{LG+wi}")
    for wi in range(8):
        I(f"v_exp_f32 v{LG+wi}, v{LG+wi}")
    I("s_nop 0")
    I(f"v_add_f32 v7, v{LG}, v{LG+1}")
    for wi in range(2, 8):
        I(f"v_add_f32 v7, v7, v{LG+wi}")
    I("v_rcp_f32 v7, v7")
    I("s_nop 0")
    for wi in range(8):
        I(f"v_mul_f32 v{LG+wi}, v{LG+wi}, v7")
    for p in range(4):
        I(f"v_cvt_pk_bf16_f32 v{LG+p}, v{LG+2*p}, v{LG+2*p+1}")
    I("s_waitcnt lgkmcnt(0)")
    T = 130
    for p in range(4):
        for i in range(10):
            A_ = KV + 10 * (2 * p) + i
            B_ = KV + 10 * (2 * p + 1) + i
            t0 = T + 2 * (i % 4)
            I(f"v_perm_b32 v{t0}, v{B_}, v{A_}, s{S_SEL_LO}")
            I(f"v_perm_b32 v{t0+1}, v{B_}, v{A_}, s{S_SEL_HI}")
            s0 = "0" if p == 0 else f"v{O+2*i}"
            s1 = "0" if p == 0 else f"v{O+2*i+1}"
            I(f"v_dot2_f32_bf16 v{O+2*i}, v{t0}, v{LG+p}, {s0}")
            I(f"v_dot2_f32_bf16 v{O+2*i+1}, v{t0+1}, v{LG+p}, {s1}")
    I("s_nop 3")
    for i in range(10):
        I(f"v_cvt_pk_bf16_f32 v{Q+i}, v{O+2*i}, v{O+2*i+1}")
    I("v_lshrrev_b32 v5, 4, v6")
    I("v_mul_u32_u24 v5, 69632, v5")
    I("v_and_b32 v7, 15, v6")
    I("v_lshl_add_u32 v5, v7, 4, v5")
    I(f"s_lshl_b32 s{S_T0}, s{S_CB}, 2")
    I(f"s_add_u32 s{S_T0}, s{S_T0}, s{S_T1}")
    I(f"s_mul_i32 s{S_T0}, s{S_T0}, 5")
    for i in range(5):
        I(f"s_add_u32 s{S_T2}, s{S_T0}, {i}")
        I(f"s_lshr_b32 s{S_T3}, s{S_T2}, 1")
        I(f"s_lshl_b32 s{S_T3}, s{S_T3}, 8")
        I(f"s_and_b32 s{S_T2}, s{S_T2}, 1")
        I(f"s_lshl_b32 s{S_T2}, s{S_T2}, 3")
        I(f"s_add_u32 s{S_T2}, s{S_T2}, s{S_T3}")
        I(f"buffer_store_dwordx2 v[{Q+2*i}:{Q+2*i+1}], v5, s[{SRD_A2}:{SRD_A2+3}], s{S_T2} offen")
    rt_flush(0x4000000)
    L("k1_done")
    I("s_endpgm")
    kd(name, 256, 96)


def gen_k2():
    name = "gemm2_kernel"
    kstart(name)
    I("s_cmp_ge_u32 s2, 256")
    I("s_cbranch_scc1 k2_done")
    load_kernargs()
    S_RB_, S_CB_, S_M0_, S_N0B, S_W_ = 4, 5, 6, 7, 8
    S_KS, S_STEP, S_AG_, S_BG_ = 9, 10, 12, 13
    SRD_A, SRD_B, SRD_XX, SRD_O = 40, 44, 48, 52
    T0, T1, T2 = 56, 57, 58
    I(f"s_and_b32 s{T0}, s2, 7")
    I(f"s_lshr_b32 s{T1}, s2, 3")
    I(f"s_lshr_b32 s{S_RB_}, s{T0}, 1")
    I(f"s_lshl_b32 s{S_RB_}, s{S_RB_}, 3")
    I(f"s_lshr_b32 s{T2}, s{T1}, 2")
    I(f"s_add_u32 s{S_RB_}, s{S_RB_}, s{T2}")
    I(f"s_and_b32 s{S_CB_}, s{T0}, 1")
    I(f"s_lshl_b32 s{S_CB_}, s{S_CB_}, 2")
    I(f"s_and_b32 s{T2}, s{T1}, 3")
    I(f"s_add_u32 s{S_CB_}, s{S_CB_}, s{T2}")
    I(f"s_lshl_b32 s{S_M0_}, s{S_RB_}, 6")
    I(f"s_mul_i32 s{S_N0B}, s{S_CB_}, 160")
    I("v_lshrrev_b32 v1, 6, v0")
    I("v_and_b32 v2, 63, v0")
    I(f"v_readfirstlane_b32 s{S_W_}, v1")
    I("v_and_b32 v3, 15, v2")
    I("v_lshrrev_b32 v4, 4, v2")
    ACC = 160
    FR = [8, 44, 80, 116]
    vA = 152
    vB = 156
    XR = 240
    I("v_lshlrev_b32 v5, 4, v2")
    I(f"s_mul_i32 s{T0}, s{S_RB_}, {4*69632}")
    I(f"v_add_u32 v{vA}, s{T0}, v5")
    for rt in range(1, 4):
        I(f"v_add_u32 v{vA+rt}, {69632*rt}, v{vA}")
    I(f"s_mul_i32 s{T0}, s{S_CB_}, {68*5120}")
    I(f"v_add_u32 v{vB}, s{T0}, v5")
    I(f"v_add_u32 v{vB+1}, 4096, v{vB}")
    I(f"s_cmp_lt_u32 s{S_W_}, 2")
    I(f"s_cselect_b32 s{S_STEP}, 2, 6")
    I(f"s_cselect_b32 s{T0}, 0, 18")
    I(f"s_add_u32 s{S_KS}, s{S_W_}, s{T0}")
    I(f"v_add_u32 v5, s{S_M0_}, v2")
    I("v_mul_u32_u24 v5, 1280, v5")
    I(f"s_lshl_b32 s{T0}, s{S_W_}, 3")
    I(f"s_add_u32 s{T0}, s{T0}, s{S_N0B}")
    I(f"v_add_u32 v{XR+6}, s{T0}, v5")
    I(f"s_cmp_lt_u32 s{S_W_}, 4")
    I(f"s_cselect_b32 s{T0}, 128, 0x40000000")
    I(f"v_add_u32 v{XR+7}, s{T0}, v{XR+6}")
    I("s_waitcnt lgkmcnt(0)")
    srd(SRD_A, P_WS, P_WS + 1, A2_BYTES)
    srd(SRD_B, P_WS, P_WS + 1, W2_BYTES, add=W2_OFF)
    srd(SRD_XX, P_X, P_X + 1, X_BYTES)
    srd(SRD_O, P_OUT, P_OUT + 1, X_BYTES)

    def issue(fs):
        I(f"s_lshl_b32 s{S_AG_}, s{S_KS}, 10")
        I(f"s_mul_i32 s{S_BG_}, s{S_KS}, 5120")
        for rt in range(4):
            r = FR[fs] + 4 * rt
            I(f"buffer_load_dwordx4 v[{r}:{r+3}], v{vA+rt}, s[{SRD_A}:{SRD_A+3}], s{S_AG_} offen")
        for ct in range(5):
            r = FR[fs] + 16 + 4 * ct
            if ct < 4:
                I(f"buffer_load_dwordx4 v[{r}:{r+3}], v{vB}, s[{SRD_B}:{SRD_B+3}], s{S_BG_} offen offset:{ct*1024}")
            else:
                I(f"buffer_load_dwordx4 v[{r}:{r+3}], v{vB+1}, s[{SRD_B}:{SRD_B+3}], s{S_BG_} offen")
        I(f"s_add_u32 s{S_KS}, s{S_KS}, s{S_STEP}")

    I(f"buffer_load_dwordx2 v[{XR}:{XR+1}], v{XR+6}, s[{SRD_XX}:{SRD_XX+3}], 0 offen")
    I(f"buffer_load_dwordx2 v[{XR+2}:{XR+3}], v{XR+6}, s[{SRD_XX}:{SRD_XX+3}], 0 offen offset:64")
    I(f"buffer_load_dwordx2 v[{XR+4}:{XR+5}], v{XR+7}, s[{SRD_XX}:{SRD_XX+3}], 0 offen")
    for fs in range(4):
        issue(fs)
    for r in range(ACC, ACC + 80):
        I(f"v_mov_b32 v{r}, 0")

    def compute(fs):
        for ct in range(5):
            for rt in range(4):
                a = ACC + (rt * 5 + ct) * 4
                w = FR[fs] + 16 + 4 * ct
                x = FR[fs] + 4 * rt
                I(f"v_mfma_f32_16x16x32_bf16 v[{a}:{a+3}], v[{w}:{w+3}], v[{x}:{x+3}], v[{a}:{a+3}]")

    def body(n):
        for j in range(n):
            left = min(n - 1 - j, 3)
            I(f"s_waitcnt vmcnt({9*left})")
            compute(j % 4)
            if j + 4 < n:
                issue(j % 4)

    I(f"s_cmp_lt_u32 s{S_W_}, 2")
    I("s_cbranch_scc0 k2_h")
    body(10)
    I("s_branch k2_join")
    L("k2_h")
    body(8)
    L("k2_join")
    I(f"s_mul_i32 s{T0}, s{S_W_}, 20480")
    I("v_lshlrev_b32 v5, 10, v4")
    I("v_lshl_add_u32 v5, v3, 4, v5")
    I(f"v_add_u32 v5, s{T0}, v5")
    I("s_nop 4")
    for rt in range(4):
        for ct in range(5):
            a = ACC + (rt * 5 + ct) * 4
            I(f"ds_write_b128 v5, v[{a}:{a+3}] offset:{ct*4096 + rt*256}")
    I("s_waitcnt lgkmcnt(0)")
    I("s_barrier")
    I(f"s_lshl_b32 s{T0}, s{S_W_}, 10")
    I("v_lshlrev_b32 v5, 4, v2")
    I(f"v_add_u32 v5, s{T0}, v5")
    for i in range(1, 4):
        I(f"v_add_u32 v{248+i}, {2*20480*i}, v5")
    I("v_mov_b32 v248, v5")
    for j in range(3):
        for p in range(8):
            r = 8 + (j * 8 + p) * 4
            I(f"ds_read_b128 v[{r}:{r+3}], v{248 + p // 2} offset:{(p % 2) * 20480 + j * 8192}")
    I("s_waitcnt vmcnt(0) lgkmcnt(0)")
    for j in range(3):
        b = 8 + j * 32
        for r in range(4):
            I(f"v_add_f32 v{b+r}, v{b+r}, v{b+4+r}")
            I(f"v_add_f32 v{b+8+r}, v{b+8+r}, v{b+12+r}")
            I(f"v_add_f32 v{b+16+r}, v{b+16+r}, v{b+20+r}")
            I(f"v_add_f32 v{b+24+r}, v{b+24+r}, v{b+28+r}")
            I(f"v_add_f32 v{b+8+r}, v{b+8+r}, v{b+16+r}")
            I(f"v_add_f32 v{b+8+r}, v{b+8+r}, v{b+24+r}")
        bf16_round_pair(b, b + 1, 7)
        bf16_round_pair(b + 2, b + 3, 7)
        bf16_round_pair(b + 8, b + 9, 7)
        bf16_round_pair(b + 10, b + 11, 7)
        xr = XR + 2 * j
        I(f"v_lshlrev_b32 v{b+4}, 16, v{xr}")
        I(f"v_and_b32 v{b+5}, 0xffff0000, v{xr}")
        I(f"v_lshlrev_b32 v{b+6}, 16, v{xr+1}")
        I(f"v_and_b32 v{b+7}, 0xffff0000, v{xr+1}")
        for r in range(4):
            I(f"v_add_f32 v{b+r}, v{b+r}, v{b+4+r}")
        bf16_round_pair(b, b + 1, 7)
        bf16_round_pair(b + 2, b + 3, 7)
        for r in range(4):
            I(f"v_add_f32 v{b+r}, v{b+r}, v{b+8+r}")
        I(f"v_cvt_pk_bf16_f32 v{xr}, v{b}, v{b+1}")
        I(f"v_cvt_pk_bf16_f32 v{xr+1}, v{b+2}, v{b+3}")
        if j < 2:
            I(f"buffer_store_dwordx2 v[{xr}:{xr+1}], v{XR+6}, s[{SRD_O}:{SRD_O+3}], 0 offen offset:{64*j}")
        else:
            I(f"buffer_store_dwordx2 v[{xr}:{xr+1}], v{XR+7}, s[{SRD_O}:{SRD_O+3}], 0 offen")
    L("k2_done")
    I("s_endpgm")
    kd(name, 256, 64)


def header():
    ref = open(f"cdna_kernels/{NAME}.s.ref").read().splitlines()
    for line in ref:
        if line.startswith("; @launch"):
            break
        e(line)
    e("; @launch kernel=gemm1_kernel grid=(256,1,1) block=(512,1,1) lds=153600")
    e("; @launch kernel=gemm2_kernel grid=(256,1,1) block=(512,1,1) lds=163840")
    e('.amdgcn_target "amdgcn-amd-amdhsa--gfx950"')
    e(".text")


def selfcheck():
    for p_ in range(1024):
        assert (p_ * 1058) >> 18 == p_ // 248
    for p_ in range(248):
        assert (p_ * 2185) >> 16 == p_ // 30
    for p_ in range(768):
        assert (p_ * 2731) >> 16 == p_ // 24
    for p_ in range(680):
        assert (p_ * 6554) >> 16 == p_ // 10
    for t in range(40):
        assert (t * 52) >> 8 == t // 5
    for t in range(30):
        assert (t * 26) >> 8 == t // 10


selfcheck()
header()
gen_k1()
gen_k2()
path = f"cdna_kernels/{NAME}.s"
for a in sys.argv[1:]:
    if a.startswith("-o"):
        path = a[2:]
open(path, "w").write("\n".join(out) + "\n")
print("wrote", path, len(out), "lines")
```

```python
import sys

NAME = "parallel_sum__sliding_local_dilated__glu_gated_glu__prompt"

S = 2048
D = 640
F = 1536
X_BYTES = S * D * 2
A2_OFF = 0
A2_BYTES = 128 * 68 * 1024
W2_OFF = A2_OFF + A2_BYTES
W2_BYTES = 8 * 68 * 5 * 1024
RST_OFF = W2_OFF + W2_BYTES
RST_BYTES = S * 16

OPT = dict(stamp=0, stagger=1, rpm=2, exact=0, tagwin=1500, retry_max=20000, k2rot=1, k2lin=0, k2d=4, staged=0)
for a in sys.argv[1:]:
    if "=" in a:
        k, v = a.split("=")
        OPT[k] = int(v)

out = []


def e(s=""):
    out.append(s)


def I(s):
    out.append("    " + s)


def L(s):
    out.append(s + ":")


def srd(dst, lo, hi, nbytes, add=0):
    if add:
        I(f"s_add_u32 s{dst}, s{lo}, {add}")
        I(f"s_addc_u32 s{dst+1}, s{hi}, 0")
        I(f"s_and_b32 s{dst+1}, s{dst+1}, 0xffff")
    else:
        I(f"s_mov_b32 s{dst}, s{lo}")
        I(f"s_and_b32 s{dst+1}, s{hi}, 0xffff")
    I(f"s_mov_b32 s{dst+2}, {nbytes}")
    I(f"s_mov_b32 s{dst+3}, 0x20000")


P_X, P_WQKV, P_WO, P_BX, P_WG, P_WU, P_WD, P_OUT, P_DBG, P_WS = 16, 18, 20, 22, 24, 26, 28, 30, 32, 34

RT = 0


RT_ON = 4
def rt_stamp(idx):
    if OPT["stamp"] == RT_ON:
        I("s_memrealtime s[96:97]")
        I("s_waitcnt lgkmcnt(0)")
        I(f"v_writelane_b32 v252, s96, {idx}")


def rt_flush(off):
    if OPT["stamp"] != RT_ON:
        return
    I("s_waitcnt vmcnt(0)")
    rt_stamp(3)
    I("s_getreg_b32 s3, hwreg(HW_REG_XCC_ID)")
    I("v_writelane_b32 v252, s3, 7")
    lab = f"rt_skip_{len(out)}"
    I("v_cmp_gt_u32 vcc, 8, v0")
    I("s_and_saveexec_b64 s[100:101], vcc")
    I(f"s_cbranch_execz {lab}")
    srd(96, P_WS, P_WS + 1, 0x8000000)
    I("s_lshl_b32 s3, s2, 5")
    I(f"s_add_u32 s3, s3, {off}")
    I("v_lshlrev_b32 v1, 2, v0")
    I("buffer_store_dword v252, v1, s[96:99], s3 offen")
    L(lab)


def kd(name, vgpr, sgpr):
    if OPT["stamp"]:
        sgpr = 102
    acc = (vgpr + 3) // 4 * 4
    e('.section .rodata,"a"')
    e(".p2align 6")
    e(f".amdhsa_kernel {name}")
    e(f"  .amdhsa_next_free_vgpr {vgpr}")
    e(f"  .amdhsa_next_free_sgpr {sgpr}")
    e(f"  .amdhsa_accum_offset {acc}")
    e("  .amdhsa_group_segment_fixed_size 0")
    e("  .amdhsa_kernarg_size 80")
    e("  .amdhsa_user_sgpr_count 2")
    e("  .amdhsa_user_sgpr_kernarg_segment_ptr 1")
    e("  .amdhsa_system_sgpr_workgroup_id_x 1")
    e(".end_amdhsa_kernel")
    e(".text")


def kstart(name):
    e(f".globl {name}")
    e(".p2align 8")
    e(f".type {name},@function")
    L(name)


def load_kernargs():
    I("s_load_dwordx16 s[16:31], s[0:1], 0")
    I("s_load_dwordx4 s[32:35], s[0:1], 64")


def bf16_round_pair(a, b, t):
    I(f"v_cvt_pk_bf16_f32 v{t}, v{a}, v{b}")
    I(f"v_lshlrev_b32 v{a}, 16, v{t}")
    I(f"v_and_b32 v{b}, 0xffff0000, v{t}")


S_CB, S_RB, S_TYPE, S_M0, S_W = 4, 5, 6, 7, 8
S_AR, S_ARN, S_BR, S_BW = 9, 10, 11, 12
S_AG, S_BG = 13, 14
S_IT = 15
S_ROT = 36
SRD_X, SRD_A2, SRD_W = 40, 44, 48
S_T0, S_T1, S_T2, S_T3 = 52, 53, 54, 55
S_MA, S_MB, S_MH = 56, 57, 58
S_SLOT = 60
S_SEL_LO, S_SEL_HI, S_SCALE, S_L2E = 70, 71, 72, 73
ST_ROW, ST_COL = 153600, 154880
K1_LDS = 156672
V_ONE = 248
ST_FLAG = 156416
SRD_R = 92
S_TMIN, S_LNROW, S_LNCNT, S_RETRY = 90, 91, 74, 59


class Cfg:
    pass


def k1_mainloop(c, tag):
    a = len(c.a_dma)
    b = len(c.b_dma)

    def dma_list(kind, slot_sreg):
        res = []
        lst = c.a_dma if kind == "A" else c.b_dma
        for (v, sm, off) in lst:
            setup = f"s_add_u32 m0, s{slot_sreg}, s{sm}"
            if kind == "A":
                ins = f"buffer_load_dwordx4 v{v}, s[{SRD_X}:{SRD_X+3}], s{S_AG} offen offset:{off} lds"
            else:
                ins = f"buffer_load_dwordx4 v{v}, s[{SRD_W}:{SRD_W+3}], s{S_BG} offen offset:{off} lds"
            res.append((setup, ins))
        return res

    def emit_dma_now(kind, slot_sreg):
        last = None
        for (setup, ins) in dma_list(kind, slot_sreg):
            if setup != last:
                I(setup)
                I("s_nop 0")
                last = setup
            I(ins)

    adv_a = [f"s_add_u32 s{S_AG}, s{S_AG}, 128"]
    adv_b = [f"s_add_u32 s{S_BG}, s{S_BG}, {c.bstage_g}"]

    def ring_next(sreg, size, n, base):
        I(f"s_add_u32 s{sreg}, s{sreg}, {size}")
        I(f"s_cmp_ge_u32 s{sreg}, {base + size * n}")
        I(f"s_cselect_b32 s{sreg}, {base}, s{sreg}")

    def frag_reads(fs, khalf, s_a, s_b):
        pre = []
        for (dyn, srot) in c.xaddr:
            st = c.vX1 if khalf else c.vX0
            if srot is None:
                pre.append(f"v_add_u32 v{dyn}, s{s_a}, v{st}")
            else:
                pre.append(f"s_add_u32 s3, s{s_a}, s{srot}")
                pre.append(f"v_add_u32 v{dyn}, s3, v{st}")
        for (dyn, st) in c.waddr:
            pre.append(f"v_add_u32 v{dyn}, s{s_b}, v{st}")
        rd = []
        for i, (dyn, srot) in enumerate(c.xaddr):
            r = c.XF[fs] + 4 * i
            rd.append(f"ds_read_b128 v[{r}:{r+3}], v{dyn}")
        for i, (ai, off) in enumerate(c.wfrag):
            r = c.WF[fs] + 4 * i
            rd.append(f"ds_read_b64_tr_b16 v[{r}:{r+1}], v{c.waddr[ai][0]} offset:{off}")
            rd.append(f"ds_read_b64_tr_b16 v[{r+2}:{r+3}], v{c.waddr[ai][0]} offset:{off + c.wrow4}")
        return pre, rd

    def mfmas(fs):
        res = []
        for (acc, xi, wi) in c.tiles:
            x = c.XF[fs] + 4 * xi
            w = c.WF[fs] + 4 * wi
            res.append(f"v_mfma_f32_16x16x32_bf16 v[{acc}:{acc+3}], v[{w}:{w+3}], v[{x}:{x+3}], v[{acc}:{acc+3}]")
        return res

    I(f"s_mov_b32 s{S_AG}, 0")
    I(f"s_mov_b32 s{S_BG}, 0")

    def pro(items):
        for it in items:
            n = int(it[1])
            if it[0] == "A":
                I(f"s_mov_b32 s{S_T3}, {c.abase + n * c.asz}")
                emit_dma_now("A", S_T3)
                for x in adv_a:
                    I(x)
            else:
                I(f"s_mov_b32 s{S_T3}, {c.bbase + n * c.bsz}")
                emit_dma_now("B", S_T3)
                for x in adv_b:
                    I(x)

    pro(["A0", "B0", "A1", "B1"])
    I(f"s_and_b32 s{S_LNROW}, s2, 1")
    I(f"s_lshl_b32 s{S_LNROW}, s{S_LNROW}, 3")
    I("s_lshr_b32 s3, s2, 5")
    I(f"s_add_u32 s{S_LNROW}, s{S_LNROW}, s3")
    I(f"s_lshl_b32 s{S_LNROW}, s{S_LNROW}, 3")
    I(f"s_add_u32 s{S_LNROW}, s{S_LNROW}, s{S_M0}")
    I(f"s_add_u32 s{S_LNROW}, s{S_LNROW}, s{S_W}")
    I("v_mul_u32_u24 v13, 20, v2")
    I(f"s_mul_i32 s3, s{S_LNROW}, 1280")
    I("v_add_u32 v27, s3, v13")
    I(f"buffer_load_dwordx4 v[240:243], v27, s[{SRD_X}:{SRD_X+3}], 0 offen")
    I(f"buffer_load_dword v244, v27, s[{SRD_X}:{SRD_X+3}], 0 offen offset:16")
    srd(SRD_R, P_WS, P_WS + 1, RST_BYTES, add=RST_OFF)
    c.frag_setup()
    for j in range(4):
        I(f"v_mov_b32 v{V_ONE+j}, 0x3f803f80")
    for r in range(c.acc0, c.acc0 + c.nacc):
        I(f"v_mov_b32 v{r}, 0")
    for r in c.stat_regs:
        I(f"v_mov_b32 v{r}, 0")
    pro(["B2", "A2", "B3"])
    I(f"s_mov_b32 s{S_AR}, {c.abase}")
    I(f"s_mov_b32 s{S_ARN}, {c.abase + c.asz}")
    I(f"s_mov_b32 s{S_BW}, {c.bbase}")
    I(f"s_mov_b32 s{S_BR}, {c.bbase + c.bsz}")
    I(f"s_mov_b32 s{S_IT}, 0")
    I(f"s_cmp_lt_u32 s{S_W}, 4")
    I("s_cselect_b64 vcc, -1, 0")
    I(f"s_waitcnt vmcnt({3*b + 2*a + 2})")
    I("s_barrier")
    rt_stamp(1)
    pre, rd = frag_reads(0, 0, S_AR, S_BW)
    for x in pre + rd:
        I(x)
    I("s_waitcnt lgkmcnt(0)")

    def late_setup():
        B = c.XF[1] + 4
        I("s_memrealtime s[96:97]")
        for i in range(5):
            I(f"v_mov_b32 v{B+i}, v{240+i}")
        one_row_stats(B)
        I(f"s_lshl_b32 s3, s{S_LNROW}, 4")
        I(f"v_mov_b32 v{B+18}, v{B+17}")
        I(f"v_mov_b32 v{B+20}, s3")
        I("s_waitcnt lgkmcnt(0)")
        I(f"v_mov_b32 v{B+17}, s96")
        I(f"v_mov_b32 v{B+19}, s96")
        I("s_mov_b64 exec, 1")
        I(f"buffer_store_dwordx4 v[{B+16}:{B+19}], v{B+20}, s[{SRD_R}:{SRD_R+3}], 0 offen sc1")
        I("s_mov_b64 exec, -1")
        c.late()

    def step(half, wait, with_dma, with_reads):
        if wait is not None:
            I(f"s_waitcnt vmcnt({wait})")
        I("s_barrier")
        if not with_reads:
            I(f"s_sub_u32 s3, s{S_M0}, 16")
            I("v_add_u32 v244, s3, v0")
            I("v_lshlrev_b32 v244, 4, v244")
            I(f"buffer_load_dwordx4 v[240:243], v244, s[{SRD_R}:{SRD_R+3}], 0 offen sc1")
        pre, rd = [], []
        if with_reads:
            if half == 0:
                pre, rd = frag_reads(1, 1, S_AR, S_BR)
            else:
                pre, rd = frag_reads(0, 0, S_ARN, S_BR)
        for x in pre:
            I(x)
        dm = []
        if with_dma:
            if half == 1:
                dl = dma_list("A", S_AR)
                dm += [(s_, i_, adv_a if k == len(dl) - 1 else [], True) for k, (s_, i_) in enumerate(dl)]
            dl = dma_list("B", S_BW)
            dm += [(s_, i_, adv_b if k == len(dl) - 1 else [], False) for k, (s_, i_) in enumerate(dl)]
        mf = mfmas(half)
        nm = len(mf)
        nd = len(dm)
        slots = []
        if dm:
            if OPT["stagger"]:
                pos_e = [int((k + 0.5) * (nm // 2) / nd) for k in range(nd)]
                pos_l = [nm // 2 + int((k + 0.5) * (nm - nm // 2 - 1) / nd) for k in range(nd)]
                slots = [(p_, k, "e") for k, p_ in enumerate(pos_e)] + [(p_, k, "l") for k, p_ in enumerate(pos_l)]
            else:
                slots = [(int((k + 0.5) * nm / nd), k, "a") for k in range(nd)]
        stat = c.stats(half)
        rdi = 0
        for i, m in enumerate(mf):
            I(m)
            for (p_, k, kind) in slots:
                if p_ != i:
                    continue
                lab = f"{tag}_sk_{len(out)}"
                if kind == "e":
                    I(f"s_cbranch_vccz {lab}")
                elif kind == "l":
                    I(f"s_cbranch_vccnz {lab}")
                if dm[k][3]:
                    I(f"s_cmp_ge_u32 s{S_IT}, 7")
                    I(f"s_cbranch_scc1 {lab}")
                I(dm[k][0])
                I("s_nop 0")
                I(dm[k][1])
                for x in dm[k][2]:
                    I(x)
                L(lab)
            for _ in range(OPT["rpm"]):
                if rdi < len(rd):
                    I(rd[rdi])
                    rdi += 1
            for x in stat.get(i, []):
                if x.endswith(":"):
                    e(x)
                else:
                    I(x)
        for x in rd[rdi:]:
            I(x)
        if with_reads:
            I(f"s_mov_b32 s{S_BW}, s{S_BR}")
            ring_next(S_BR, c.bsz, 4, c.bbase)
            if half == 1:
                I(f"s_mov_b32 s{S_AR}, s{S_ARN}")
                ring_next(S_ARN, c.asz, 3, c.abase)
            I("s_waitcnt lgkmcnt(0)")

    L(f"{tag}_loop")
    step(0, 2 * b + a, True, True)
    step(1, 2 * b + a, True, True)
    I(f"s_cmp_lg_u32 s{S_IT}, 0")
    I(f"s_cbranch_scc1 {tag}_nolate")
    late_setup()
    L(f"{tag}_nolate")
    I(f"s_add_u32 s{S_IT}, s{S_IT}, 1")
    I(f"s_cmp_lt_u32 s{S_IT}, 8")
    I(f"s_cbranch_scc1 {tag}_loop")
    step(0, 2 * b, False, True)
    step(1, b, False, True)
    step(0, 0, False, True)
    step(1, None, False, False)
    rt_stamp(2)
    I("s_waitcnt vmcnt(0)")
    I("s_barrier")


def row_dots(xreg, s1, s2):
    r = []
    for j in range(4):
        r.append(f"v_dot2_f32_bf16 v{s1}, v{xreg+j}, v{V_ONE}, v{s1}")
        r.append(f"v_dot2_f32_bf16 v{s2}, v{xreg+j}, v{xreg+j}, v{s2}")
    return r


def col_dots(wreg, cs):
    return [f"v_dot2_f32_bf16 v{cs}, v{wreg+j}, v{V_ONE}, v{cs}" for j in range(4)]


def reduce_groups(regs, t):
    I("s_nop 3")
    for op in ("v_permlane16_swap_b32", "v_permlane32_swap_b32"):
        for r in regs:
            I(f"v_mov_b32 v{t}, v{r}")
            I("s_nop 1")
            I(f"{op} v{r}, v{t}")
            I("s_nop 1")
            I(f"v_add_f32 v{r}, v{r}, v{t}")


def wave_allreduce(v, sbase):
    for ctrl in ("quad_perm:[1,0,3,2]", "quad_perm:[2,3,0,1]", "row_half_mirror", "row_mirror"):
        I("s_nop 1")
        I(f"v_add_f32_dpp v{v}, v{v}, v{v} {ctrl} row_mask:0xf bank_mask:0xf")
    I("s_nop 1")
    for i in range(4):
        I(f"v_readlane_b32 s{sbase+i}, v{v}, {16*i}")
    I("s_nop 1")
    I(f"v_mov_b32 v{v}, s{sbase}")
    I(f"v_add_f32 v{v}, s{sbase+1}, v{v}")
    I(f"v_add_f32 v{v}, s{sbase+2}, v{v}")
    I(f"v_add_f32 v{v}, s{sbase+3}, v{v}")


def one_row_stats(B=8):
    U, M, R, T = B + 6, B + 16, B + 17, B + 18
    for i in range(5):
        I(f"v_lshlrev_b32 v{U+2*i}, 16, v{B+i}")
        I(f"v_and_b32 v{U+1+2*i}, 0xffff0000, v{B+i}")
    I(f"v_add_f32 v{M}, v{U}, v{U+1}")
    for i in range(2, 10):
        I(f"v_add_f32 v{M}, v{M}, v{U+i}")
    wave_allreduce(M, 75)
    I(f"v_mul_f32 v{M}, 0x3acccccd, v{M}")
    I(f"v_sub_f32 v{T}, v{U}, v{M}")
    I(f"v_mul_f32 v{R}, v{T}, v{T}")
    for i in range(1, 10):
        I(f"v_sub_f32 v{T}, v{U+i}, v{M}")
        I(f"v_fmac_f32 v{R}, v{T}, v{T}")
    wave_allreduce(R, 75)
    I(f"v_mul_f32 v{R}, 0x3acccccd, v{R}")
    I(f"v_cvt_pk_bf16_f32 v{T}, v{M}, v{R}")
    I(f"v_lshlrev_b32 v{M}, 16, v{T}")
    I(f"v_and_b32 v{R}, 0xffff0000, v{T}")
    I(f"v_add_f32 v{R}, 0x3727c5ac, v{R}")
    I(f"v_cvt_pk_bf16_f32 v{R}, v{R}, v{R}")
    I(f"v_lshlrev_b32 v{R}, 16, v{R}")
    I(f"v_sqrt_f32 v{R}, v{R}")
    I("s_nop 0")
    I(f"v_cvt_pk_bf16_f32 v{R}, v{R}, v{R}")
    I(f"v_lshlrev_b32 v{R}, 16, v{R}")
    I(f"v_rcp_f32 v{R}, v{R}")
    I("s_nop 0")


def gather_row_stats(tag):
    I(f"s_mov_b32 s{S_RETRY}, 0")
    I(f"s_sub_u32 s3, s{S_M0}, 16")
    I("v_add_u32 v5, s3, v0")
    I("v_lshlrev_b32 v6, 4, v5")
    I("v_lshlrev_b32 v7, 3, v0")
    I(f"v_add_u32 v7, {ST_ROW}, v7")
    I(f"v_mov_b32 v13, {ST_FLAG}")
    for i in range(4):
        I(f"v_mov_b32 v{8+i}, v{240+i}")
    I(f"s_branch {tag}_g_first")
    L(f"{tag}_g_retry")
    I(f"buffer_load_dwordx4 v[8:11], v6, s[{SRD_R}:{SRD_R+3}], 0 offen sc1")
    L(f"{tag}_g_first")
    I("v_mov_b32 v14, 0")
    I("ds_write_b32 v13, v14")
    I("s_waitcnt vmcnt(0) lgkmcnt(0)")
    I("s_barrier")
    I(f"v_subrev_u32 v9, s{S_TMIN}, v9")
    I(f"v_subrev_u32 v11, s{S_TMIN}, v11")
    I("v_or_b32 v9, v9, v11")
    I("v_lshrrev_b32 v9, 16, v9")
    I("v_cmp_gt_u32 vcc, 144, v0")
    I("s_nop 1")
    I("v_cndmask_b32 v9, 0, v9, vcc")
    I(f"v_cmp_gt_u32 vcc, {S}, v5")
    I("s_nop 1")
    I("v_cndmask_b32 v9, 0, v9, vcc")
    I("v_mov_b32 v11, v10")
    I("v_mov_b32 v10, v8")
    I("v_cmp_gt_u32 vcc, 144, v0")
    I("s_and_saveexec_b64 s[76:77], vcc")
    I("ds_write_b64 v7, v[10:11]")
    I("s_mov_b64 exec, s[76:77]")
    I("v_cmp_ne_u32 vcc, 0, v9")
    I("s_and_saveexec_b64 s[76:77], vcc")
    I("v_mov_b32 v14, 1")
    I("ds_write_b32 v13, v14")
    I("s_mov_b64 exec, s[76:77]")
    I("s_waitcnt lgkmcnt(0)")
    I("s_barrier")
    I("ds_read_b32 v14, v13")
    I("s_waitcnt lgkmcnt(0)")
    I("v_readfirstlane_b32 s3, v14")
    I("s_nop 3")
    I("s_cmp_eq_u32 s3, 0")
    I(f"s_cbranch_scc1 {tag}_g_done")
    I("s_barrier")
    I(f"s_add_u32 s{S_RETRY}, s{S_RETRY}, 1")
    I(f"s_cmp_lt_u32 s{S_RETRY}, {OPT['retry_max']}")
    I(f"s_cbranch_scc1 {tag}_g_retry")
    I(f"s_mov_b32 s{S_LNROW}, s{S_W}")
    I("v_mul_u32_u24 v13, 20, v2")
    L(f"{tag}_g_fb")
    I(f"s_add_u32 s3, s{S_LNROW}, s{S_M0}")
    I("s_sub_u32 s3, s3, 16")
    I("s_mul_i32 s3, s3, 1280")
    I("v_add_u32 v27, s3, v13")
    I(f"buffer_load_dwordx4 v[8:11], v27, s[{SRD_X}:{SRD_X+3}], 0 offen")
    I(f"buffer_load_dword v12, v27, s[{SRD_X}:{SRD_X+3}], 0 offen offset:16")
    I("s_waitcnt vmcnt(0)")
    one_row_stats()
    I(f"s_lshl_b32 s3, s{S_LNROW}, 3")
    I(f"s_add_u32 s3, s3, {ST_ROW}")
    I("v_mov_b32 v26, s3")
    I("ds_write_b64 v26, v[24:25]")
    I(f"s_add_u32 s{S_LNROW}, s{S_LNROW}, 8")
    I(f"s_cmp_lt_u32 s{S_LNROW}, 144")
    I(f"s_cbranch_scc1 {tag}_g_fb")
    I("s_waitcnt lgkmcnt(0)")
    I("s_barrier")
    L(f"{tag}_g_done")


def finish_row_stats(p, mu, rs, t):
    I(f"v_mul_f32 v{mu}, 0x3acccccd, v{p}")
    I(f"v_mul_f32 v{rs}, 0x3acccccd, v{p+1}")
    I(f"v_fma_f32 v{rs}, -v{mu}, v{mu}, v{rs}")
    I(f"v_max_f32 v{rs}, 0, v{rs}")
    I(f"v_cvt_pk_bf16_f32 v{t}, v{mu}, v{rs}")
    I(f"v_lshlrev_b32 v{mu}, 16, v{t}")
    I(f"v_and_b32 v{rs}, 0xffff0000, v{t}")
    I(f"v_add_f32 v{rs}, 0x3727c5ac, v{rs}")
    I(f"v_cvt_pk_bf16_f32 v{rs}, v{rs}, v{rs}")
    I(f"v_lshlrev_b32 v{rs}, 16, v{rs}")
    I(f"v_sqrt_f32 v{rs}, v{rs}")
    I("s_nop 0")
    I(f"v_cvt_pk_bf16_f32 v{rs}, v{rs}, v{rs}")
    I(f"v_lshlrev_b32 v{rs}, 16, v{rs}")
    I(f"v_rcp_f32 v{rs}, v{rs}")
    I("s_nop 0")


def gen_k1():
    name = "gemm1_kernel"
    kstart(name)
    I("s_cmp_ge_u32 s2, 256")
    I("s_cbranch_scc1 k1_done")
    rt_stamp(0)
    load_kernargs()
    I("s_memrealtime s[90:91]")
    I(f"s_and_b32 s{S_T0}, s2, 7")
    I(f"s_lshr_b32 s{S_T1}, s2, 3")
    I(f"s_lshr_b32 s{S_RB}, s{S_T0}, 1")
    I(f"s_lshl_b32 s{S_RB}, s{S_RB}, 2")
    I(f"s_and_b32 s{S_T2}, s{S_T1}, 3")
    I(f"s_add_u32 s{S_RB}, s{S_RB}, s{S_T2}")
    I(f"s_lshr_b32 s{S_T1}, s{S_T1}, 2")
    I(f"s_and_b32 s{S_TYPE}, s{S_T1}, 1")
    I(f"s_lshr_b32 s{S_T1}, s{S_T1}, 1")
    I(f"s_and_b32 s{S_CB}, s{S_T0}, 1")
    I(f"s_lshl_b32 s{S_CB}, s{S_CB}, 2")
    I(f"s_add_u32 s{S_CB}, s{S_CB}, s{S_T1}")
    I(f"s_lshl_b32 s{S_M0}, s{S_RB}, 7")
    I("v_lshrrev_b32 v1, 6, v0")
    I("v_and_b32 v2, 63, v0")
    I(f"v_readfirstlane_b32 s{S_W}, v1")
    I("v_and_b32 v3, 15, v2")
    I("v_lshrrev_b32 v4, 4, v2")
    I(f"s_cmp_eq_u32 s{S_TYPE}, 0")
    I("s_cbranch_scc1 k1_qkv")

    def build_srds():
        I("s_waitcnt lgkmcnt(0)")
        I(f"s_sub_u32 s{S_TMIN}, s{S_TMIN}, {OPT['tagwin']}")
        srd(SRD_X, P_X, P_X + 1, X_BYTES)
        srd(SRD_A2, P_WS, P_WS + 1, A2_BYTES + W2_BYTES)

    def a_dma_main(vAd):
        I(f"s_lshl_b32 s{S_T0}, s{S_W}, 4")
        I(f"s_add_u32 s{S_T0}, s{S_T0}, s{S_M0}")
        I("v_lshrrev_b32 v1, 3, v2")
        I(f"v_add_u32 v5, s{S_T0}, v1")
        I("v_mul_u32_u24 v5, 1280, v5")
        I("v_and_b32 v6, 7, v2")
        I("v_xor_b32 v7, v6, v4")
        I(f"v_lshl_add_u32 v{vAd}, v7, 4, v5")
        I("v_or_b32 v7, 4, v4")
        I("v_xor_b32 v7, v6, v7")
        I(f"v_lshl_add_u32 v{vAd+1}, v7, 4, v5")
        I(f"v_add_u32 v{vAd+1}, {8*1280 - 1024}, v{vAd+1}")

    def x_base(vX0, vX1):
        I("v_lshrrev_b32 v6, 1, v3")
        I("v_xor_b32 v6, v6, v4")
        I("v_lshlrev_b32 v6, 4, v6")
        I(f"v_lshl_add_u32 v{vX0}, v3, 7, v6")
        I(f"v_xor_b32 v{vX1}, 64, v{vX0}")

    c = Cfg()
    c.asz, c.bsz, c.abase, c.bbase = 16384, 24576, 0, 49152
    c.bstage_g = 32 * F * 2
    c.wrow4 = 4 * 24 * 16
    c.acc0, c.nacc = 128, 96
    c.XF = [8, 48]
    c.WF = [24, 64]
    c.vX0, c.vX1 = 88, 89
    vW, vXa, vWa, vAd, vBd = 90, 93, 97, 100, 102
    vC = 224
    c.stat_regs = list(range(vC, vC + 12))
    a_dma_main(vAd)
    I(f"s_lshl_b32 s{S_MA}, s{S_W}, 11")
    c.a_dma = [(vAd, S_MA, 0), (vAd + 1, S_MA, 1024)]
    I(f"s_and_b32 s{S_T0}, s{S_W}, 3")
    I(f"s_mul_i32 s{S_T1}, s{S_T0}, 192")
    I(f"s_mul_i32 s{S_T2}, s{S_CB}, 384")
    for ii in range(3):
        I(f"v_add_u32 v5, s{S_T1}, v2")
        if ii:
            I(f"v_add_u32 v5, {64*ii}, v5")
        I("v_mul_u32_u24 v6, 2731, v5")
        I("v_lshrrev_b32 v6, 16, v6")
        I("v_mul_u32_u24 v7, 24, v6")
        I("v_sub_u32 v7, v5, v7")
        I("v_and_b32 v1, 2, v6")
        I("v_lshrrev_b32 v5, 1, v6")
        I("v_and_b32 v5, 4, v5")
        I("v_or_b32 v1, v1, v5")
        I("v_xor_b32 v7, v7, v1")
        I("v_mul_u32_u24 v6, 3072, v6")
        I("v_lshl_add_u32 v6, v7, 4, v6")
        I(f"v_add_u32 v{vBd+ii}, s{S_T2}, v6")
        if ii:
            I(f"v_subrev_u32 v{vBd+ii}, {1024*ii}, v{vBd+ii}")
    I(f"s_lshr_b32 s{S_T1}, s{S_W}, 2")
    I(f"s_mul_i32 s{S_MB}, s{S_T1}, 12288")
    I(f"s_mul_i32 s{S_T1}, s{S_T0}, 3072")
    I(f"s_add_u32 s{S_MB}, s{S_MB}, s{S_T1}")
    c.b_dma = [(vBd + ii, S_MB, 1024 * ii) for ii in range(3)]
    build_srds()
    I(f"s_cmp_lt_u32 s{S_W}, 4")
    I(f"s_cselect_b32 s{SRD_W}, s{P_WG}, s{P_WU}")
    I(f"s_cselect_b32 s{SRD_W+1}, s{P_WG+1}, s{P_WU+1}")
    I(f"s_and_b32 s{SRD_W+1}, s{SRD_W+1}, 0xffff")
    I(f"s_mov_b32 s{SRD_W+2}, {D*F*2}")
    I(f"s_mov_b32 s{SRD_W+3}, 0x20000")

    def glu_after():
        x_base(c.vX0, c.vX1)
        I(f"s_lshr_b32 s{S_T1}, s{S_W}, 2")
        I(f"s_lshl_b32 s{S_T1}, s{S_T1}, 2")
        for i in range(4):
            I(f"s_add_u32 s{S_T2}, s{S_T0}, {i}")
            I(f"s_and_b32 s{S_T2}, s{S_T2}, 3")
            I(f"s_add_u32 s{S_T2}, s{S_T2}, s{S_T1}")
            I(f"s_lshl_b32 s{S_ROT+i}, s{S_T2}, 11")
        I("v_lshrrev_b32 v5, 2, v3")
        I("v_and_b32 v6, 3, v2")
        I("v_lshl_add_u32 v7, v4, 3, v5")
        I("v_mul_u32_u24 v7, 384, v7")
        I("v_and_b32 v1, 1, v6")
        I("v_lshl_add_u32 v7, v1, 3, v7")
        I("v_and_b32 v5, 2, v5")
        I("v_and_b32 v1, 1, v4")
        I("v_lshl_or_b32 v5, v1, 2, v5")
        I("v_lshrrev_b32 v6, 1, v6")
        I(f"s_mul_i32 s{S_T1}, s{S_T0}, 6")
        I(f"v_add_u32 v6, s{S_T1}, v6")
        for ct in range(3):
            I(f"v_add_u32 v1, {2*ct}, v6")
            I("v_xor_b32 v1, v1, v5")
            I(f"v_lshl_add_u32 v{vW+ct}, v1, 4, v7")
        return 0

    c.frag_setup = glu_after
    c.late = lambda: None
    c.xaddr = [(vXa + i, S_ROT + i) for i in range(4)]
    c.waddr = [(vWa + ct, vW + ct) for ct in range(3)]
    c.wfrag = [(ct, 0) for ct in range(3)] + [(ct, 12288) for ct in range(3)]
    c.tiles = [(c.acc0 + (rt * 6 + ct) * 4, rt, ct) for rt in range(4) for ct in range(6)]

    def ones_mfma(acc, w):
        return f"v_mfma_f32_16x16x32_bf16 v[{acc}:{acc+3}], v[{w}:{w+3}], v[{V_ONE}:{V_ONE+3}], v[{acc}:{acc+3}]"

    def glu_stats(fs):
        la, lj = f"glu_cb_{len(out)}_{fs}", f"glu_cj_{len(out)}_{fs}"
        blk = [f"s_cbranch_vccz {la}"]
        blk += [ones_mfma(vC + 4 * ct, c.WF[fs] + 4 * ct) for ct in range(3)]
        blk += [f"s_branch {lj}", f"{la}:"]
        blk += [ones_mfma(vC + 4 * ct, c.WF[fs] + 12 + 4 * ct) for ct in range(3)]
        blk += [f"{lj}:"]
        return {23: blk}

    c.stats = glu_stats
    k1_mainloop(c, "glu")
    I(f"s_lshr_b32 s{S_T1}, s{S_W}, 2")
    I(f"s_mul_i32 s{S_T1}, s{S_T1}, 768")
    I(f"s_mul_i32 s{S_T2}, s{S_T0}, 192")
    I(f"s_add_u32 s{S_T2}, s{S_T2}, {ST_COL}")
    I("v_lshlrev_b32 v6, 4, v4")
    I(f"v_add_u32 v6, s{S_T2}, v6")
    I(f"v_add_u32 v7, s{S_T1}, v6")
    I("s_nop 4")
    I("s_mov_b32 exec_lo, 0x00010001")
    I("s_mov_b32 exec_hi, 0x00010001")
    for ct in range(3):
        I(f"ds_write_b128 v7, v[{vC+4*ct}:{vC+4*ct+3}] offset:{64*ct}")
    I("s_mov_b64 exec, -1")
    I("v_mov_b32 v30, v6")
    gather_row_stats("glu")
    I("v_mov_b32 v6, v30")
    I("v_lshlrev_b32 v5, 3, v3")
    I(f"v_add_u32 v5, {ST_ROW + 128}, v5")
    for i in range(4):
        I(f"s_lshr_b32 s{S_T1}, s{S_ROT+i}, 4")
        I(f"v_add_u32 v7, s{S_T1}, v5")
        I(f"ds_read_b64 v[{8+2*i}:{9+2*i}], v7")
    for ct in range(3):
        I(f"ds_read_b128 v[{32+4*ct}:{35+4*ct}], v6 offset:{64*ct}")
        I(f"ds_read_b128 v[{44+4*ct}:{47+4*ct}], v6 offset:{768 + 64*ct}")
    I(f"s_mov_b32 s{S_L2E}, 0xbfb8aa3b")
    I("s_waitcnt lgkmcnt(0)")
    for i in range(4):
        I(f"v_mov_b32 v{16+i}, v{8+2*i}")
        I(f"v_mov_b32 v{20+i}, v{9+2*i}")
        I(f"v_mul_f32 v{24+i}, s{S_L2E}, v{9+2*i}")
    I(f"s_mul_i32 s{S_T1}, s{S_RB}, {8*69632}")
    I(f"s_mul_i32 s{S_T2}, s{S_CB}, 12")
    I(f"s_mul_i32 s{S_T3}, s{S_T0}, 3")
    I(f"s_add_u32 s{S_T2}, s{S_T2}, s{S_T3}")
    I(f"s_add_u32 s{S_T2}, s{S_T2}, 40")
    I(f"s_lshl_b32 s{S_T2}, s{S_T2}, 9")
    I(f"s_add_u32 s{S_T1}, s{S_T1}, s{S_T2}")
    I("v_lshrrev_b32 v5, 1, v4")
    I("v_lshlrev_b32 v5, 8, v5")
    I("v_lshl_add_u32 v5, v3, 4, v5")
    I("v_and_b32 v6, 1, v4")
    I("v_lshl_add_u32 v5, v6, 3, v5")
    I(f"v_add_u32 v5, s{S_T1}, v5")
    for rt in range(4):
        I(f"s_mul_i32 s{S_T2}, s{S_ROT+rt}, 34")
        for ct in range(3):
            g = c.acc0 + (rt * 6 + ct) * 4
            u = c.acc0 + (rt * 6 + 3 + ct) * 4
            for r in range(4):
                I(f"v_fma_f32 v{g+r}, -v{16+rt}, v{32+4*ct+r}, v{g+r}")
                I(f"v_fma_f32 v{u+r}, -v{16+rt}, v{44+4*ct+r}, v{u+r}")
            if OPT["exact"]:
                for r in range(4):
                    I(f"v_mul_f32 v{g+r}, v{g+r}, v{20+rt}")
                    I(f"v_mul_f32 v{u+r}, v{u+r}, v{20+rt}")
                bf16_round_pair(g, g + 1, 7)
                bf16_round_pair(g + 2, g + 3, 7)
                bf16_round_pair(u, u + 1, 7)
                bf16_round_pair(u + 2, u + 3, 7)
                for r in range(4):
                    I(f"v_mul_f32 v{g+r}, s{S_L2E}, v{g+r}")
            else:
                for r in range(4):
                    I(f"v_mul_f32 v{g+r}, v{g+r}, v{24+rt}")
                    I(f"v_mul_f32 v{u+r}, v{u+r}, v{20+rt}")
            for r in range(4):
                I(f"v_exp_f32 v{g+r}, v{g+r}")
            I("s_nop 0")
            for r in range(4):
                I(f"v_add_f32 v{g+r}, 1.0, v{g+r}")
            for r in range(4):
                I(f"v_rcp_f32 v{g+r}, v{g+r}")
            I("s_nop 0")
            if OPT["exact"]:
                bf16_round_pair(g, g + 1, 7)
                bf16_round_pair(g + 2, g + 3, 7)
            for r in range(4):
                I(f"v_mul_f32 v{g+r}, v{g+r}, v{u+r}")
            I(f"v_cvt_pk_bf16_f32 v{u}, v{g}, v{g+1}")
            I(f"v_cvt_pk_bf16_f32 v{u+1}, v{g+2}, v{g+3}")
            I(f"buffer_store_dwordx2 v[{u}:{u+1}], v5, s[{SRD_A2}:{SRD_A2+3}], s{S_T2} offen offset:{ct*512}")
    rt_flush(0x4000000)
    I("s_endpgm")

    L("k1_qkv")
    c = Cfg()
    c.asz, c.bsz, c.abase, c.bbase = 18432, 16384, 0, 55296
    c.bstage_g = 32 * 3 * D * 2
    c.wrow4 = 4 * 30 * 16
    c.acc0, c.nacc = 128, 72
    c.XF = [8, 60]
    c.WF = [20, 72]
    c.vX0, c.vX1 = 112, 113
    vW, vXa, vWa, vAd, vBd = 114, 117, 120, 123, 126
    vC = 224
    c.stat_regs = list(range(vC, vC + 8))
    extra_t = {0: (5, 0), 2: (6, 1), 4: (7, 2), 6: (3, 4), 1: (8, 9), 3: (10, 11), 5: (12, 13), 7: (14, 14)}
    a_dma_main(vAd)
    I(f"s_and_b32 s{S_T1}, s{S_W}, 1")
    I(f"s_lshl_b32 s{S_T2}, s{S_T1}, 3")
    I(f"s_add_u32 s{S_T2}, s{S_T2}, s{S_M0}")
    I(f"s_sub_u32 s{S_T2}, s{S_T2}, 16")
    I(f"v_add_u32 v5, s{S_T2}, v1")
    I(f"s_mov_b32 s{S_T2}, 1280")
    I(f"v_mul_lo_u32 v5, v5, s{S_T2}")
    I(f"s_lshl_b32 s{S_T2}, s{S_T1}, 2")
    I(f"v_or_b32 v7, s{S_T2}, v4")
    I("v_xor_b32 v7, v6, v7")
    I(f"v_lshl_add_u32 v{vAd+2}, v7, 4, v5")
    I(f"s_lshl_b32 s{S_MA}, s{S_W}, 11")
    I(f"s_add_u32 s{S_MA}, s{S_MA}, 2048")
    I(f"s_lshl_b32 s{S_MH}, s{S_T1}, 10")
    c.a_dma = [(vAd, S_MA, 0), (vAd + 1, S_MA, 1024), (vAd + 2, S_MH, 0)]
    I(f"s_mul_i32 s{S_T2}, s{S_CB}, 160")
    I(f"s_lshl_b32 s{S_T0}, s{S_W}, 7")
    for ii in range(2):
        I(f"v_add_u32 v5, s{S_T0}, v2")
        if ii:
            I("v_add_u32 v5, 64, v5")
        I("v_mul_u32_u24 v6, 1058, v5")
        I("v_lshrrev_b32 v6, 18, v6")
        I("v_mul_u32_u24 v7, 248, v6")
        I("v_sub_u32 v5, v5, v7")
        I("v_mul_u32_u24 v7, 2185, v5")
        I("v_lshrrev_b32 v7, 16, v7")
        I("v_lshl_add_u32 v6, v6, 3, v7")
        I("v_mul_u32_u24 v7, 30, v7")
        I("v_sub_u32 v7, v5, v7")
        I("v_mul_u32_u24 v1, 26, v7")
        I("v_lshrrev_b32 v1, 8, v1")
        I("v_mul_u32_u24 v1, 1120, v1")
        I("v_lshl_add_u32 v1, v7, 4, v1")
        I("v_cmp_gt_u32 vcc, 240, v5")
        I("v_mul_u32_u24 v7, 3840, v6")
        I("v_add_u32 v1, v1, v7")
        I(f"v_add_u32 v1, s{S_T2}, v1")
        if ii:
            I("v_subrev_u32 v1, 1024, v1")
        I("v_mov_b32 v7, 0x7f000000")
        I("v_cndmask_b32 v1, v7, v1, vcc")
        I("v_cmp_gt_u32 vcc, 32, v6")
        I("s_nop 1")
        I(f"v_cndmask_b32 v{vBd+ii}, v7, v1, vcc")
    I(f"s_lshl_b32 s{S_MB}, s{S_W}, 11")
    c.b_dma = [(vBd + ii, S_MB, 1024 * ii) for ii in range(2)]
    build_srds()
    srd(SRD_W, P_WQKV, P_WQKV + 1, D * 3 * D * 2)
    RL_LDS = 120832
    sI, sKS, sCG, sV, sT, sD = 75, 76, 77, 78, 79, 80
    SRD_S = 84
    S_ET = 88
    vRa, vRt = 232, 234

    def qkv_late():
        I(f"s_lshr_b32 s{sT}, s2, 3")
        I(f"s_and_b32 s{sV}, s{sT}, 3")
        I(f"s_lshr_b32 s{sT}, s{sT}, 3")
        I(f"s_lshl_b32 s{sT}, s{sT}, 2")
        I(f"s_add_u32 s{sV}, s{sV}, s{sT}")
        I(f"s_and_b32 s{sT}, s2, 7")
        I(f"s_lshl_b32 s{sT}, s{sT}, 4")
        I(f"s_add_u32 s{sV}, s{sV}, s{sT}")
        I(f"s_lshl_b32 s{sI}, s{sV}, 3")
        I(f"s_add_u32 s{sI}, s{sI}, s{S_W}")
        I(f"s_min_u32 s{sT}, s{sI}, 679")
        I(f"s_mul_i32 s{sKS}, s{sT}, 6554")
        I(f"s_lshr_b32 s{sKS}, s{sKS}, 16")
        I(f"s_mul_i32 s{sV}, s{sKS}, 10")
        I(f"s_sub_u32 s{sCG}, s{sT}, s{sV}")
        I(f"s_cmp_lt_u32 s{sKS}, 20")
        I(f"s_cselect_b32 s{SRD_S}, s{P_WO}, s{P_WD}")
        I(f"s_cselect_b32 s{SRD_S+1}, s{P_WO+1}, s{P_WD+1}")
        I(f"s_mov_b32 s{SRD_S+2}, {F*D*2}")
        I(f"s_cselect_b32 s{SRD_S+2}, {D*D*2}, s{SRD_S+2}")
        I(f"s_cselect_b32 s{sT}, 0, 20")
        I(f"s_and_b32 s{SRD_S+1}, s{SRD_S+1}, 0xffff")
        I(f"s_mov_b32 s{SRD_S+3}, 0x20000")
        I(f"s_sub_u32 s{sT}, s{sKS}, s{sT}")
        I(f"s_mul_i32 s{sT}, s{sT}, {32*1280}")
        I(f"s_lshl_b32 s{sV}, s{sCG}, 7")
        I(f"s_add_u32 s{sT}, s{sT}, s{sV}")
        I("v_lshrrev_b32 v5, 3, v2")
        I("v_and_b32 v6, 7, v2")
        I("v_and_b32 v7, 2, v5")
        I("v_xor_b32 v6, v6, v7")
        I("v_mul_u32_u24 v5, 1280, v5")
        I(f"v_lshl_add_u32 v{vRa}, v6, 4, v5")
        I("v_xor_b32 v6, 4, v6")
        I(f"v_lshl_add_u32 v{vRa+1}, v6, 4, v5")
        I(f"s_lshl_b32 s{sV}, s{S_W}, 12")
        I(f"s_add_u32 s{sV}, s{sV}, {RL_LDS}")
        for a_ in range(4):
            I(f"s_add_u32 m0, s{sV}, {1024*a_}")
            I("s_nop 0")
            I(f"buffer_load_dwordx4 v{vRa + (a_ & 1)}, s[{SRD_S}:{SRD_S+3}], s{sT} offen lds")
            if a_ < 3:
                I(f"s_add_u32 s{sT}, s{sT}, {8*1280}")
        I("v_lshrrev_b32 v5, 2, v3")
        I("v_lshl_add_u32 v6, v4, 3, v5")
        I("v_lshlrev_b32 v6, 7, v6")
        I("v_and_b32 v7, 1, v2")
        I("v_lshl_add_u32 v6, v7, 3, v6")
        I(f"v_add_u32 v6, s{sV}, v6")
        I("v_and_b32 v5, 2, v5")
        I("v_and_b32 v7, 1, v4")
        I("v_lshl_or_b32 v5, v7, 2, v5")
        I("v_lshrrev_b32 v7, 1, v2")
        I("v_and_b32 v7, 1, v7")
        for ct in range(4):
            I(f"v_add_u32 v1, {2*ct}, v7")
            I("v_xor_b32 v1, v1, v5")
            I(f"v_lshl_add_u32 v{vRt+ct}, v1, 4, v6")
        for ct in range(4):
            I(f"s_lshl_b32 s{sT}, s{sCG}, 2")
            I(f"s_add_u32 s{sT}, s{sT}, {ct}")
            I(f"s_mul_i32 s{sV}, s{sT}, 52")
            I(f"s_lshr_b32 s{sV}, s{sV}, 8")
            I(f"s_mul_i32 s{sD+ct}, s{sV}, 5")
            I(f"s_sub_u32 s{sT}, s{sT}, s{sD+ct}")
            I(f"s_mul_i32 s{sV}, s{sV}, 68")
            I(f"s_add_u32 s{sV}, s{sV}, s{sKS}")
            I(f"s_mul_i32 s{sV}, s{sV}, 5")
            I(f"s_add_u32 s{sV}, s{sV}, s{sT}")
            I(f"s_lshl_b32 s{sV}, s{sV}, 10")
            I(f"s_add_u32 s{sD+ct}, s{sV}, {W2_OFF}")

    def qkv_after():
        x_base(c.vX0, c.vX1)
        I(f"s_and_b32 s{S_T2}, s{S_W}, 6")
        I(f"s_add_u32 s{S_T3}, s{S_T2}, s{S_T1}")
        I(f"s_add_u32 s{S_T3}, s{S_T3}, 1")
        I(f"s_lshl_b32 s{S_ROT}, s{S_T3}, 11")
        I(f"s_sub_u32 s{S_T3}, s{S_T2}, s{S_T1}")
        I(f"s_add_u32 s{S_T3}, s{S_T3}, 2")
        I(f"s_lshl_b32 s{S_ROT+1}, s{S_T3}, 11")
        I("v_lshrrev_b32 v5, 2, v3")
        I("v_mul_u32_u24 v5, 30, v5")
        I("v_mul_u32_u24 v6, 248, v4")
        I("v_add_u32 v5, v5, v6")
        I("v_lshrrev_b32 v6, 1, v2")
        I("v_and_b32 v6, 1, v6")
        I("v_add_u32 v5, v5, v6")
        I("v_lshlrev_b32 v5, 4, v5")
        I("v_and_b32 v6, 1, v2")
        I("v_lshl_add_u32 v5, v6, 3, v5")
        I(f"s_lshl_b32 s{S_T2}, s{S_T1}, 8")
        I(f"v_add_u32 v{vW}, s{S_T2}, v5")
        packed_lo = sum((extra_t[w][0] | (extra_t[w][1] << 4)) << (8 * w) for w in range(4))
        packed_hi = sum((extra_t[w][0] | (extra_t[w][1] << 4)) << (8 * (w - 4)) for w in range(4, 8))
        I(f"s_mov_b32 s{S_T2}, {packed_hi:#x}")
        I(f"s_cmp_lt_u32 s{S_W}, 4")
        I(f"s_cselect_b32 s{S_T2}, {packed_lo:#x}, s{S_T2}")
        I(f"s_and_b32 s{S_T3}, s{S_W}, 3")
        I(f"s_lshl_b32 s{S_T3}, s{S_T3}, 3")
        I(f"s_lshr_b32 s{S_T2}, s{S_T2}, s{S_T3}")
        for q in range(2):
            I(f"s_lshr_b32 s{S_T3}, s{S_T2}, {4*q}")
            I(f"s_and_b32 s{S_ET+q}, s{S_T3}, 15")
            I(f"s_lshl_b32 s{S_T0}, s{S_ET+q}, 5")
            I(f"v_add_u32 v{vW+1+q}, s{S_T0}, v5")
            I(f"s_mul_i32 s{S_T0}, s{S_ET+q}, 52")
            I(f"s_lshr_b32 s{S_T0}, s{S_T0}, 8")
            I(f"s_mul_i32 s{S_T3}, s{S_T0}, 5")
            I(f"s_sub_u32 s{S_T3}, s{S_ET+q}, s{S_T3}")
            I(f"s_lshl_b32 s{S_T3}, s{S_T3}, 5")
            I(f"s_mul_i32 s{S_T0}, s{S_T0}, 24192")
            I(f"s_add_u32 s{S_T0}, s{S_T0}, s{S_T3}")
            I(f"s_sub_u32 s{S_T0}, s{S_T0}, 2688")
            I(f"s_cmp_ge_u32 s{S_ET+q}, 5")
            I(f"s_cselect_b32 s{S_SLOT+8+q}, s{S_T0}, 70656")

    def qkv_late2():
        qkv_late()
        I(f"s_and_b32 s{S_T1}, s{S_W}, 1")
        for q in range(8):
            def base(t):
                if t >= 15:
                    return 70656 - 2688
                return (t // 5) * 24192 - 2688 + (t % 5) * 32
            b0, b1 = base(q) & 0xffffffff, base(8 + q) & 0xffffffff
            I(f"s_mov_b32 s{S_SLOT+q}, {b1:#x}")
            I(f"s_cmp_eq_u32 s{S_T1}, 0")
            I(f"s_cselect_b32 s{S_SLOT+q}, {b0:#x}, s{S_SLOT+q}")

    c.frag_setup = qkv_after
    c.late = qkv_late2
    c.xaddr = [(vXa, S_ROT), (vXa + 1, S_ROT + 1), (vXa + 2, None)]
    c.waddr = [(vWa, vW), (vWa + 1, vW + 1), (vWa + 2, vW + 2)]
    c.wfrag = [(0, q * 32) for q in range(8)] + [(1, 0), (2, 0)]
    c.tiles = [(c.acc0 + (q * 2 + rt) * 4, rt, q) for q in range(8) for rt in range(2)]
    c.tiles += [(c.acc0 + (16 + q) * 4, 2, 8 + q) for q in range(2)]

    def qkv_stats(fs):
        return {17: [ones_mfma(vC, c.WF[fs] + 32), ones_mfma(vC + 4, c.WF[fs] + 36)]}

    c.stats = qkv_stats
    k1_mainloop(c, "qkv")
    for ct in range(4):
        r = 208 + 4 * ct
        I(f"ds_read_b64_tr_b16 v[{r}:{r+1}], v{vRt+ct}")
        I(f"ds_read_b64_tr_b16 v[{r+2}:{r+3}], v{vRt+ct} offset:512")
    I("v_lshlrev_b32 v1, 4, v2")
    for ct in range(4):
        r = 208 + 4 * ct
        I(f"s_waitcnt lgkmcnt({2*(3-ct)})")
        I(f"buffer_store_dwordx4 v[{r}:{r+3}], v1, s[{SRD_A2}:{SRD_A2+3}], s{sD+ct} offen")
    I("v_lshlrev_b32 v6, 4, v4")
    I(f"v_add_u32 v6, {ST_COL}, v6")
    I(f"s_lshl_b32 s{S_T2}, s{S_ET}, 6")
    I(f"v_add_u32 v9, s{S_T2}, v6")
    I(f"s_lshl_b32 s{S_T2}, s{S_ET+1}, 6")
    I(f"v_add_u32 v10, s{S_T2}, v6")
    I("s_mov_b32 exec_lo, 0x00010001")
    I("s_mov_b32 exec_hi, 0x00010001")
    I(f"ds_write_b128 v9, v[{vC}:{vC+3}]")
    I(f"ds_write_b128 v10, v[{vC+4}:{vC+7}]")
    I("s_mov_b64 exec, -1")
    gather_row_stats("qkv")
    I("v_lshlrev_b32 v5, 3, v3")
    I(f"v_add_u32 v5, {ST_ROW}, v5")
    for i in range(2):
        I(f"s_lshr_b32 s{S_T2}, s{S_ROT+i}, 4")
        I(f"v_add_u32 v6, s{S_T2}, v5")
        I(f"ds_read_b64 v[{8+2*i}:{9+2*i}], v6")
    I(f"ds_read_b64 v[12:13], v5")
    I("v_lshlrev_b32 v6, 4, v4")
    I(f"v_add_u32 v6, {ST_COL}, v6")
    I(f"s_and_b32 s{S_T1}, s{S_W}, 1")
    I(f"s_lshl_b32 s{S_T2}, s{S_T1}, 9")
    I(f"v_add_u32 v7, s{S_T2}, v6")
    CSV = 32
    for q in range(8):
        I(f"ds_read_b128 v[{CSV+4*q}:{CSV+4*q+3}], v7 offset:{64*q}")
    for q in range(2):
        I(f"s_lshl_b32 s{S_T2}, s{S_ET+q}, 6")
        I(f"v_add_u32 v7, s{S_T2}, v6")
        I(f"ds_read_b128 v[{CSV+32+4*q}:{CSV+35+4*q}], v7")
    I("s_waitcnt lgkmcnt(0)")
    for i in range(3):
        I(f"v_mov_b32 v{16+i}, v{8+2*i}")
        I(f"v_mov_b32 v{20+i}, v{9+2*i}")
    I("v_mul_u32_u24 v5, 168, v3")
    I("v_lshl_add_u32 v5, v4, 3, v5")
    for i in range(2):
        I(f"s_lshr_b32 s{S_T2}, s{S_ROT+i}, 11")
        I(f"s_mul_i32 s{S_T2}, s{S_T2}, {16*168}")
        I(f"v_add_u32 v{24+i}, s{S_T2}, v5")
    for q in range(8):
        for rt in range(2):
            a = c.acc0 + (q * 2 + rt) * 4
            for r in range(4):
                I(f"v_fma_f32 v{a+r}, -v{16+rt}, v{CSV+4*q+r}, v{a+r}")
            for r in range(4):
                I(f"v_mul_f32 v{a+r}, v{a+r}, v{20+rt}")
            I(f"v_cvt_pk_bf16_f32 v{a}, v{a}, v{a+1}")
            I(f"v_cvt_pk_bf16_f32 v{a+1}, v{a+2}, v{a+3}")
            I(f"v_add_u32 v7, s{S_SLOT+q}, v{24+rt}")
            I(f"ds_write_b64 v7, v[{a}:{a+1}]")
    for q in range(2):
        a = c.acc0 + (16 + q) * 4
        for r in range(4):
            I(f"v_fma_f32 v{a+r}, -v18, v{CSV+32+4*q+r}, v{a+r}")
        for r in range(4):
            I(f"v_mul_f32 v{a+r}, v{a+r}, v22")
        I(f"v_cvt_pk_bf16_f32 v{a}, v{a}, v{a+1}")
        I(f"v_cvt_pk_bf16_f32 v{a+1}, v{a+2}, v{a+3}")
        I(f"v_add_u32 v7, s{S_SLOT+8+q}, v5")
        I(f"ds_write_b64 v7, v[{a}:{a+1}]")
    I("s_waitcnt lgkmcnt(0)")
    I("s_barrier")
    KOFF, VOFF = 21504, 45696
    I(f"s_and_b32 s{S_T0}, s{S_W}, 1")
    I(f"s_lshl_b32 s{S_T0}, s{S_T0}, 6")
    I(f"v_add_u32 v5, s{S_T0}, v2")
    I(f"v_add_u32 v6, s{S_M0}, v5")
    I("v_mul_u32_u24 v5, 168, v5")
    I(f"s_lshr_b32 s{S_T1}, s{S_W}, 1")
    I(f"s_mul_i32 s{S_T2}, s{S_T1}, 40")
    I(f"v_add_u32 v5, s{S_T2}, v5")
    Q = 8
    KV = 20
    LG = 100
    O = 110
    for i in range(5):
        I(f"ds_read_b64 v[{Q+2*i}:{Q+2*i+1}], v5 offset:{8*i}")
    for wi in range(8):
        for i in range(5):
            off = KOFF + (16 - 2 * wi) * 168 + 8 * i
            I(f"ds_read_b64 v[{KV+10*wi+2*i}:{KV+10*wi+2*i+1}], v5 offset:{off}")
    I(f"s_mov_b32 s{S_SCALE}, 0x3e64f92e")
    I(f"s_mov_b32 s{S_L2E}, 0x3fb8aa3b")
    I(f"s_mov_b32 s{S_SEL_LO}, 0x05040100")
    I(f"s_mov_b32 s{S_SEL_HI}, 0x07060302")
    I("s_waitcnt lgkmcnt(0)")
    for i in range(10):
        for wi in range(8):
            src = "0" if i == 0 else f"v{LG+wi}"
            I(f"v_dot2_f32_bf16 v{LG+wi}, v{Q+i}, v{KV+10*wi+i}, {src}")
    I("s_nop 3")
    for wi in range(8):
        for i in range(5):
            off = VOFF + (16 - 2 * wi) * 168 + 8 * i
            I(f"ds_read_b64 v[{KV+10*wi+2*i}:{KV+10*wi+2*i+1}], v5 offset:{off}")
    for p in range(4):
        a, b = LG + 2 * p, LG + 2 * p + 1
        bf16_round_pair(a, b, 7)
        I(f"v_mul_f32 v{a}, s{S_SCALE}, v{a}")
        I(f"v_mul_f32 v{b}, s{S_SCALE}, v{b}")
        bf16_round_pair(a, b, 7)
    I("v_mov_b32 v7, 0xce6e6b28")
    for wi in range(1, 8):
        I(f"v_cmp_le_u32 vcc, {2*wi}, v6")
        I("s_nop 1")
        I(f"v_cndmask_b32 v{LG+wi}, v7, v{LG+wi}, vcc")
    I(f"v_max3_f32 v7, v{LG}, v{LG+1}, v{LG+2}")
    I(f"v_max3_f32 v7, v7, v{LG+3}, v{LG+4}")
    I(f"v_max3_f32 v7, v7, v{LG+5}, v{LG+6}")
    I(f"v_max_f32 v7, v7, v{LG+7}")
    for wi in range(8):
        I(f"v_sub_f32 v{LG+wi}, v{LG+wi}, v7")
        I(f"v_mul_f32 v{LG+wi}, s{S_L2E}, v{LG+wi}")
    for wi in range(8):
        I(f"v_exp_f32 v{LG+wi}, v{LG+wi}")
    I("s_nop 0")
    I(f"v_add_f32 v7, v{LG}, v{LG+1}")
    for wi in range(2, 8):
        I(f"v_add_f32 v7, v7, v{LG+wi}")
    I("v_rcp_f32 v7, v7")
    I("s_nop 0")
    for wi in range(8):
        I(f"v_mul_f32 v{LG+wi}, v{LG+wi}, v7")
    for p in range(4):
        I(f"v_cvt_pk_bf16_f32 v{LG+p}, v{LG+2*p}, v{LG+2*p+1}")
    I("s_waitcnt lgkmcnt(0)")
    T = 130
    for p in range(4):
        for i in range(10):
            A_ = KV + 10 * (2 * p) + i
            B_ = KV + 10 * (2 * p + 1) + i
            t0 = T + 2 * (i % 4)
            I(f"v_perm_b32 v{t0}, v{B_}, v{A_}, s{S_SEL_LO}")
            I(f"v_perm_b32 v{t0+1}, v{B_}, v{A_}, s{S_SEL_HI}")
            s0 = "0" if p == 0 else f"v{O+2*i}"
            s1 = "0" if p == 0 else f"v{O+2*i+1}"
            I(f"v_dot2_f32_bf16 v{O+2*i}, v{t0}, v{LG+p}, {s0}")
            I(f"v_dot2_f32_bf16 v{O+2*i+1}, v{t0+1}, v{LG+p}, {s1}")
    I("s_nop 3")
    for i in range(10):
        I(f"v_cvt_pk_bf16_f32 v{Q+i}, v{O+2*i}, v{O+2*i+1}")
    I("v_lshrrev_b32 v5, 4, v6")
    I("v_mul_u32_u24 v5, 69632, v5")
    I("v_and_b32 v7, 15, v6")
    I("v_lshl_add_u32 v5, v7, 4, v5")
    I(f"s_lshl_b32 s{S_T0}, s{S_CB}, 2")
    I(f"s_add_u32 s{S_T0}, s{S_T0}, s{S_T1}")
    I(f"s_mul_i32 s{S_T0}, s{S_T0}, 5")
    for i in range(5):
        I(f"s_add_u32 s{S_T2}, s{S_T0}, {i}")
        I(f"s_lshr_b32 s{S_T3}, s{S_T2}, 1")
        I(f"s_lshl_b32 s{S_T3}, s{S_T3}, 8")
        I(f"s_and_b32 s{S_T2}, s{S_T2}, 1")
        I(f"s_lshl_b32 s{S_T2}, s{S_T2}, 3")
        I(f"s_add_u32 s{S_T2}, s{S_T2}, s{S_T3}")
        I(f"buffer_store_dwordx2 v[{Q+2*i}:{Q+2*i+1}], v5, s[{SRD_A2}:{SRD_A2+3}], s{S_T2} offen")
    rt_flush(0x4000000)
    L("k1_done")
    I("s_endpgm")
    kd(name, 256, 98)


def gen_k2():
    name = "gemm2_kernel"
    kstart(name)
    I("s_cmp_ge_u32 s2, 256")
    I("s_cbranch_scc1 k2_done")
    global RT_ON
    RT_ON = 5
    rt_stamp(0)
    load_kernargs()
    S_RB_, S_CB_, S_M0_, S_N0B, S_W_ = 4, 5, 6, 7, 8
    S_AG_, S_BG_ = 12, 13
    SRD_A, SRD_B, SRD_XX, SRD_O = 40, 44, 48, 52
    T0, T1, T2 = 56, 57, 58
    I(f"s_and_b32 s{T0}, s2, 7")
    I(f"s_lshr_b32 s{T1}, s2, 3")
    I(f"s_lshr_b32 s{S_RB_}, s{T0}, 1")
    I(f"s_lshl_b32 s{S_RB_}, s{S_RB_}, 3")
    I(f"s_lshr_b32 s{T2}, s{T1}, 2")
    I(f"s_add_u32 s{S_RB_}, s{S_RB_}, s{T2}")
    I(f"s_and_b32 s{S_CB_}, s{T0}, 1")
    I(f"s_lshl_b32 s{S_CB_}, s{S_CB_}, 2")
    I(f"s_and_b32 s{T2}, s{T1}, 3")
    I(f"s_add_u32 s{S_CB_}, s{S_CB_}, s{T2}")
    I(f"s_lshl_b32 s{S_M0_}, s{S_RB_}, 6")
    I(f"s_mul_i32 s{S_N0B}, s{S_CB_}, 160")
    I("v_lshrrev_b32 v1, 6, v0")
    I("v_and_b32 v2, 63, v0")
    I(f"v_readfirstlane_b32 s{S_W_}, v1")
    I("v_and_b32 v3, 15, v2")
    I("v_lshrrev_b32 v4, 4, v2")
    DEP = OPT["k2d"]
    NST = 17
    FR = [8 + 36 * i for i in range(DEP)]
    vA = 228
    vB = 232
    XR = 236
    I("v_lshlrev_b32 v5, 4, v2")
    I(f"s_mul_i32 s{T0}, s{S_RB_}, {4*69632}")
    I(f"v_add_u32 v{vA}, s{T0}, v5")
    for rt in range(1, 4):
        I(f"v_add_u32 v{vA+rt}, {69632*rt}, v{vA}")
    I(f"s_mul_i32 s{T0}, s{S_CB_}, {68*5120}")
    I(f"v_add_u32 v{vB}, s{T0}, v5")
    I(f"v_add_u32 v{vB+1}, 4096, v{vB}")
    I(f"s_lshl_b32 s{S_AG_}, s{S_W_}, 10")
    I(f"s_mul_i32 s{S_BG_}, s{S_W_}, 5120")
    I(f"v_add_u32 v5, s{S_M0_}, v2")
    I("v_mul_u32_u24 v5, 1280, v5")
    I(f"s_lshl_b32 s{T0}, s{S_W_}, 3")
    I(f"s_add_u32 s{T0}, s{T0}, s{S_N0B}")
    I(f"v_add_u32 v{XR+10}, s{T0}, v5")
    I("s_waitcnt lgkmcnt(0)")
    srd(SRD_A, P_WS, P_WS + 1, A2_BYTES)
    srd(SRD_B, P_WS, P_WS + 1, W2_BYTES, add=W2_OFF)
    srd(SRD_XX, P_X, P_X + 1, X_BYTES)
    srd(SRD_O, P_OUT, P_OUT + 1, X_BYTES)

    def loads(fs):
        r_ = []
        for rt in range(4):
            r = FR[fs] + 4 * rt
            r_.append(f"buffer_load_dwordx4 v[{r}:{r+3}], v{vA+rt}, s[{SRD_A}:{SRD_A+3}], s{S_AG_} offen")
        for ct in range(5):
            r = FR[fs] + 16 + 4 * ct
            if ct < 4:
                r_.append(f"buffer_load_dwordx4 v[{r}:{r+3}], v{vB}, s[{SRD_B}:{SRD_B+3}], s{S_BG_} offen offset:{ct*1024}")
            else:
                r_.append(f"buffer_load_dwordx4 v[{r}:{r+3}], v{vB+1}, s[{SRD_B}:{SRD_B+3}], s{S_BG_} offen")
        return r_

    adv = [f"s_add_u32 s{S_AG_}, s{S_AG_}, 4096", f"s_add_u32 s{S_BG_}, s{S_BG_}, 20480"]
    for fs in range(DEP - 1):
        for x in loads(fs) + adv:
            I(x)
    for i in range(5):
        I(f"buffer_load_dwordx2 v[{XR+2*i}:{XR+2*i+1}], v{XR+10}, s[{SRD_XX}:{SRD_XX+3}], 0 offen offset:{32*i}")
    for r in range(80):
        I(f"v_accvgpr_write_b32 a{r}, 0")
    for j in range(NST):
        younger = min(j + DEP - 2, NST - 1) - j
        extra = 5 if j < DEP - 1 else 0
        I(f"s_waitcnt vmcnt({9*younger + extra})")
        if j == 0:
            rt_stamp(1)
        ld = loads((j - 1) % DEP) if j + DEP - 1 < NST else []
        fs = j % DEP
        k = 0
        for ct in range(5):
            for rt in range(4):
                a_ = (rt * 5 + ct) * 4
                w = FR[fs] + 16 + 4 * ct
                x = FR[fs] + 4 * rt
                I(f"v_mfma_f32_16x16x32_bf16 a[{a_}:{a_+3}], v[{w}:{w+3}], v[{x}:{x+3}], a[{a_}:{a_+3}]")
                if k % 2 == 1 and ld:
                    I(ld.pop(0))
                k += 1
        if j + DEP - 1 < NST:
            for x in adv:
                I(x)
    rt_stamp(4)
    I(f"s_mul_i32 s{T0}, s{S_W_}, 20480")
    I("v_lshlrev_b32 v5, 10, v4")
    I("v_lshl_add_u32 v5, v3, 4, v5")
    I(f"v_add_u32 v5, s{T0}, v5")
    I("s_nop 7")
    for rt in range(4):
        for ct in range(5):
            a_ = (rt * 5 + ct) * 4
            I(f"ds_write_b128 v5, a[{a_}:{a_+3}] offset:{ct*4096 + rt*256}")
    I("s_waitcnt lgkmcnt(0)")
    I("s_barrier")
    rt_stamp(2)
    I(f"s_lshl_b32 s{T0}, s{S_W_}, 10")
    I("v_lshlrev_b32 v5, 4, v2")
    I(f"v_add_u32 v5, s{T0}, v5")
    I(f"v_add_u32 v6, {2*20480}, v5")
    for i in range(5):
        for p in range(4):
            r = 8 + (i * 4 + p) * 4
            I(f"ds_read_b128 v[{r}:{r+3}], v{5 + p // 2} offset:{(p % 2) * 20480 + i * 4096}")
    for i in range(5):
        b_ = 8 + i * 16
        xr = XR + 2 * i
        I(f"s_waitcnt lgkmcnt({min(15, 4*(4-i))})")
        for r in range(4):
            I(f"v_add_f32 v{b_+r}, v{b_+r}, v{b_+4+r}")
            I(f"v_add_f32 v{b_+8+r}, v{b_+8+r}, v{b_+12+r}")
        I(f"v_lshlrev_b32 v{b_+4}, 16, v{xr}")
        I(f"v_and_b32 v{b_+5}, 0xffff0000, v{xr}")
        I(f"v_lshlrev_b32 v{b_+6}, 16, v{xr+1}")
        I(f"v_and_b32 v{b_+7}, 0xffff0000, v{xr+1}")
        for r in range(4):
            I(f"v_add_f32 v{b_+r}, v{b_+r}, v{b_+8+r}")
        for r in range(4):
            I(f"v_add_f32 v{b_+r}, v{b_+r}, v{b_+4+r}")
        I(f"v_cvt_pk_bf16_f32 v{xr}, v{b_}, v{b_+1}")
        I(f"v_cvt_pk_bf16_f32 v{xr+1}, v{b_+2}, v{b_+3}")
        I(f"buffer_store_dwordx2 v[{xr}:{xr+1}], v{XR+10}, s[{SRD_O}:{SRD_O+3}], 0 offen offset:{32*i}")
    rt_flush(0x4000000)
    L("k2_done")
    I("s_endpgm")
    sg = 102 if OPT["stamp"] else 64
    e('.section .rodata,"a"')
    e(".p2align 6")
    e(f".amdhsa_kernel {name}")
    e("  .amdhsa_next_free_vgpr 336")
    e(f"  .amdhsa_next_free_sgpr {sg}")
    e("  .amdhsa_accum_offset 256")
    e("  .amdhsa_group_segment_fixed_size 0")
    e("  .amdhsa_kernarg_size 80")
    e("  .amdhsa_user_sgpr_count 2")
    e("  .amdhsa_user_sgpr_kernarg_segment_ptr 1")
    e("  .amdhsa_system_sgpr_workgroup_id_x 1")
    e(".end_amdhsa_kernel")
    e(".text")


def header():
    ref = open(f"cdna_kernels/{NAME}.s.ref").read().splitlines()
    for line in ref:
        if line.startswith("; @launch"):
            break
        e(line)
    e(f"; @launch kernel=gemm1_kernel grid=(256,1,1) block=(512,1,1) lds={K1_LDS}")
    e("; @launch kernel=gemm2_kernel grid=(256,1,1) block=(256,1,1) lds=81920")
    e('.amdgcn_target "amdgcn-amd-amdhsa--gfx950"')
    e(".text")


def selfcheck():
    for p_ in range(1024):
        assert (p_ * 1058) >> 18 == p_ // 248
    for p_ in range(248):
        assert (p_ * 2185) >> 16 == p_ // 30
    for p_ in range(768):
        assert (p_ * 2731) >> 16 == p_ // 24
    for p_ in range(680):
        assert (p_ * 6554) >> 16 == p_ // 10
    for t in range(40):
        assert (t * 52) >> 8 == t // 5
    for t in range(30):
        assert (t * 26) >> 8 == t // 10


selfcheck()
header()
gen_k1()
gen_k2()
path = f"cdna_kernels/{NAME}.s"
for a in sys.argv[1:]:
    if a.startswith("-o"):
        path = a[2:]
open(path, "w").write("\n".join(out) + "\n")
print("wrote", path, len(out), "lines")
```

```python
import sys

NAME = "parallel_sum__sliding_local_dilated__glu_gated_glu__prompt"

S = 2048
D = 640
F = 1536
X_BYTES = S * D * 2
A2_OFF = 0
A2_BYTES = 128 * 68 * 1024
W2_OFF = A2_OFF + A2_BYTES
W2_BYTES = 8 * 68 * 5 * 1024
RST_OFF = W2_OFF + W2_BYTES
RST_BYTES = S * 16

OPT = dict(stamp=0, stagger=0, early=0, pk=1, krot=1, rpm=2, exact=0, tagwin=1500, retry_max=20000, k2rot=1, k2lin=0, k2d=4, staged=0)
for a in sys.argv[1:]:
    if "=" in a:
        k, v = a.split("=")
        OPT[k] = int(v)

out = []


def e(s=""):
    out.append(s)


def I(s):
    out.append("    " + s)


def L(s):
    out.append(s + ":")


def srd(dst, lo, hi, nbytes, add=0):
    if add:
        I(f"s_add_u32 s{dst}, s{lo}, {add}")
        I(f"s_addc_u32 s{dst+1}, s{hi}, 0")
        I(f"s_and_b32 s{dst+1}, s{dst+1}, 0xffff")
    else:
        I(f"s_mov_b32 s{dst}, s{lo}")
        I(f"s_and_b32 s{dst+1}, s{hi}, 0xffff")
    I(f"s_mov_b32 s{dst+2}, {nbytes}")
    I(f"s_mov_b32 s{dst+3}, 0x20000")


P_X, P_WQKV, P_WO, P_BX, P_WG, P_WU, P_WD, P_OUT, P_DBG, P_WS = 16, 18, 20, 22, 24, 26, 28, 30, 32, 34

RT = 0


RT_ON = 4
def rt_stamp(idx):
    if OPT["stamp"] == RT_ON:
        I("s_memrealtime s[96:97]")
        I("s_waitcnt lgkmcnt(0)")
        I(f"v_writelane_b32 v254, s96, {idx}")


def ct_stamp(idx):
    if OPT["stamp"] == RT_ON:
        I("s_memtime s[96:97]")
        I("s_waitcnt lgkmcnt(0)")
        I(f"v_writelane_b32 v254, s96, {idx}")


def rt_flush(off):
    if OPT["stamp"] != RT_ON:
        return
    I("s_waitcnt vmcnt(0)")
    rt_stamp(3)
    I("s_getreg_b32 s3, hwreg(HW_REG_XCC_ID)")
    I("v_writelane_b32 v254, s3, 7")
    lab = f"rt_skip_{len(out)}"
    I("v_cmp_gt_u32 vcc, 8, v0")
    I("s_and_saveexec_b64 s[100:101], vcc")
    I(f"s_cbranch_execz {lab}")
    srd(96, P_WS, P_WS + 1, 0x8000000)
    I("s_lshl_b32 s3, s2, 5")
    I(f"s_add_u32 s3, s3, {off}")
    I("v_lshlrev_b32 v1, 2, v0")
    I("buffer_store_dword v254, v1, s[96:99], s3 offen")
    L(lab)


def kd(name, vgpr, sgpr):
    if OPT["stamp"]:
        sgpr = 102
    acc = (vgpr + 3) // 4 * 4
    e('.section .rodata,"a"')
    e(".p2align 6")
    e(f".amdhsa_kernel {name}")
    e(f"  .amdhsa_next_free_vgpr {vgpr}")
    e(f"  .amdhsa_next_free_sgpr {sgpr}")
    e(f"  .amdhsa_accum_offset {acc}")
    e("  .amdhsa_group_segment_fixed_size 0")
    e("  .amdhsa_kernarg_size 80")
    e("  .amdhsa_user_sgpr_count 2")
    e("  .amdhsa_user_sgpr_kernarg_segment_ptr 1")
    e("  .amdhsa_system_sgpr_workgroup_id_x 1")
    e(".end_amdhsa_kernel")
    e(".text")


def kstart(name):
    e(f".globl {name}")
    e(".p2align 8")
    e(f".type {name},@function")
    L(name)


def load_kernargs():
    I("s_load_dwordx16 s[16:31], s[0:1], 0")
    I("s_load_dwordx4 s[32:35], s[0:1], 64")


def bf16_round_pair(a, b, t):
    I(f"v_cvt_pk_bf16_f32 v{t}, v{a}, v{b}")
    I(f"v_lshlrev_b32 v{a}, 16, v{t}")
    I(f"v_and_b32 v{b}, 0xffff0000, v{t}")


S_CB, S_RB, S_TYPE, S_M0, S_W = 4, 5, 6, 7, 8
S_AR, S_ARN, S_BR, S_BW = 9, 10, 11, 12
S_AG, S_BG = 13, 14
S_IT = 15
S_ROT = 36
SRD_X, SRD_A2, SRD_W = 40, 44, 48
S_T0, S_T1, S_T2, S_T3 = 52, 53, 54, 55
S_MA, S_MB, S_MH = 56, 57, 58
S_SLOT = 60
S_SEL_LO, S_SEL_HI, S_SCALE, S_L2E = 70, 71, 72, 73
ST_ROW, ST_COL = 153600, 154880
K1_LDS = 156672
V_ONE = 248
ST_FLAG = 156416
SRD_R = 92
S_TMIN, S_LNROW, S_LNCNT, S_RETRY = 90, 91, 74, 59


class Cfg:
    pass


def k1_mainloop(c, tag):
    a = len(c.a_dma)
    b = len(c.b_dma)

    def dma_list(kind, slot_sreg):
        res = []
        lst = c.a_dma if kind == "A" else c.b_dma
        for (v, sm, off) in lst:
            setup = f"s_add_u32 m0, s{slot_sreg}, s{sm}"
            if kind == "A":
                ins = f"buffer_load_dwordx4 v{v}, s[{SRD_X}:{SRD_X+3}], s{S_AG} offen offset:{off} lds"
            else:
                ins = f"buffer_load_dwordx4 v{v}, s[{SRD_W}:{SRD_W+3}], s{S_BG} offen offset:{off} lds"
            res.append((setup, ins))
        return res

    def emit_dma_now(kind, slot_sreg):
        last = None
        for (setup, ins) in dma_list(kind, slot_sreg):
            if setup != last:
                I(setup)
                I("s_nop 0")
                last = setup
            I(ins)

    adv_a = [f"s_add_u32 s{S_AG}, s{S_AG}, 128", f"s_cmp_eq_u32 s{S_AG}, 1280", f"s_cselect_b32 s{S_AG}, 0, s{S_AG}"]
    adv_b = [f"s_add_u32 s{S_BG}, s{S_BG}, {c.bstage_g}", f"s_cmp_eq_u32 s{S_BG}, {20*c.bstage_g}",
             f"s_cselect_b32 s{S_BG}, 0, s{S_BG}"]

    def ring_next(sreg, size, n, base):
        I(f"s_add_u32 s{sreg}, s{sreg}, {size}")
        I(f"s_cmp_ge_u32 s{sreg}, {base + size * n}")
        I(f"s_cselect_b32 s{sreg}, {base}, s{sreg}")

    def frag_reads(fs, khalf, s_a, s_b):
        pre = []
        for (dyn, st0, st1) in c.xaddr:
            pre.append(f"v_add_u32 v{dyn}, s{s_a}, v{st1 if khalf else st0}")
        for (dyn, st) in c.waddr:
            pre.append(f"v_add_u32 v{dyn}, s{s_b}, v{st}")
        rd = []
        for i, (ai, off) in enumerate(c.xfrag):
            r = c.XF[fs] + 4 * i
            rd.append(f"ds_read_b128 v[{r}:{r+3}], v{c.xaddr[ai][0]} offset:{off}")
        for i, (ai, off) in enumerate(c.wfrag):
            r = c.WF[fs] + 4 * i
            rd.append(f"ds_read_b64_tr_b16 v[{r}:{r+1}], v{c.waddr[ai][0]} offset:{off}")
            rd.append(f"ds_read_b64_tr_b16 v[{r+2}:{r+3}], v{c.waddr[ai][0]} offset:{off + c.wrow4}")
        return pre, rd

    def mfmas(fs):
        res = []
        for (acc, xi, wi) in c.tiles:
            x = c.XF[fs] + 4 * xi
            w = c.WF[fs] + 4 * wi
            res.append(f"v_mfma_f32_16x16x32_bf16 v[{acc}:{acc+3}], v[{w}:{w+3}], v[{x}:{x+3}], v[{acc}:{acc+3}]")
        return res

    if OPT["krot"] == 1:
        I(f"s_lshr_b32 s3, s{S_RB}, 2")
        I("s_mul_i32 s3, s3, 5")
        I("s_lshr_b32 s3, s3, 1")
    elif OPT["krot"] == 2:
        I(f"s_mul_i32 s3, s{S_RB}, 5")
        I("s_lshr_b32 s3, s3, 3")
    else:
        I("s_mov_b32 s3, 0")
    I(f"s_lshl_b32 s{S_AG}, s3, 7")
    I(f"s_mul_i32 s{S_BG}, s3, {2*c.bstage_g}")

    def pro(items):
        for it in items:
            n = int(it[1])
            if it[0] == "A":
                I(f"s_mov_b32 s{S_T3}, {c.abase + n * c.asz}")
                emit_dma_now("A", S_T3)
                for x in adv_a:
                    I(x)
            else:
                I(f"s_mov_b32 s{S_T3}, {c.bbase + n * c.bsz}")
                emit_dma_now("B", S_T3)
                for x in adv_b:
                    I(x)

    pro(["A0", "B0", "A1", "B1"])
    I(f"s_and_b32 s{S_LNROW}, s2, 1")
    I(f"s_lshl_b32 s{S_LNROW}, s{S_LNROW}, 3")
    I("s_lshr_b32 s3, s2, 5")
    I(f"s_add_u32 s{S_LNROW}, s{S_LNROW}, s3")
    I(f"s_lshl_b32 s{S_LNROW}, s{S_LNROW}, 3")
    I(f"s_add_u32 s{S_LNROW}, s{S_LNROW}, s{S_M0}")
    I(f"s_add_u32 s{S_LNROW}, s{S_LNROW}, s{S_W}")
    I("v_mul_u32_u24 v13, 20, v2")
    I(f"s_mul_i32 s3, s{S_LNROW}, 1280")
    I("v_add_u32 v27, s3, v13")
    I(f"buffer_load_dwordx4 v[240:243], v27, s[{SRD_X}:{SRD_X+3}], 0 offen")
    I(f"buffer_load_dword v244, v27, s[{SRD_X}:{SRD_X+3}], 0 offen offset:16")
    srd(SRD_R, P_WS, P_WS + 1, RST_BYTES, add=RST_OFF)
    c.frag_setup()
    for j in range(4):
        I(f"v_mov_b32 v{V_ONE+j}, 0x3f803f80")
    for r in range(c.acc0, c.acc0 + c.nacc):
        I(f"v_mov_b32 v{r}, 0")
    for r in c.stat_regs:
        I(f"v_mov_b32 v{r}, 0")
    if not OPT["early"]:
        pro(["B2", "A2", "B3"])
    I(f"s_mov_b32 s{S_AR}, {c.abase}")
    I(f"s_mov_b32 s{S_ARN}, {c.abase + c.asz}")
    I(f"s_mov_b32 s{S_BW}, {c.bbase}")
    I(f"s_mov_b32 s{S_BR}, {c.bbase + c.bsz}")
    I(f"s_mov_b32 s{S_IT}, 0")
    I(f"s_cmp_lt_u32 s{S_W}, 4")
    I("s_cselect_b64 vcc, -1, 0")
    I(f"s_waitcnt vmcnt({2 if OPT['early'] else 3*b + 2*a + 2})")
    I("s_barrier")
    rt_stamp(1)
    ct_stamp(4)
    pre, rd = frag_reads(0, 0, S_AR, S_BW)
    for x in pre + rd:
        I(x)
    I("s_waitcnt lgkmcnt(0)")

    def late_setup():
        B = c.XF[1] + 4
        I("s_memrealtime s[96:97]")
        for i in range(5):
            I(f"v_mov_b32 v{B+i}, v{240+i}")
        one_row_stats(B)
        I(f"s_lshl_b32 s3, s{S_LNROW}, 4")
        I(f"v_mov_b32 v{B+18}, v{B+17}")
        I(f"v_mov_b32 v{B+20}, s3")
        I("s_waitcnt lgkmcnt(0)")
        I(f"v_mov_b32 v{B+17}, s96")
        I(f"v_mov_b32 v{B+19}, s96")
        I("s_mov_b64 exec, 1")
        I(f"buffer_store_dwordx4 v[{B+16}:{B+19}], v{B+20}, s[{SRD_R}:{SRD_R+3}], 0 offen sc1")
        I("s_mov_b64 exec, -1")
        c.late()

    def step(half, wait, with_dma, with_reads, fixed_t=None):
        if OPT["stamp"] == 3:
            I("s_memtime s[96:97]")
        if wait is not None:
            I(f"s_waitcnt vmcnt({wait})")
        if OPT["stamp"] == 3:
            I("s_memtime s[98:99]")
        I("s_barrier")
        if OPT["stamp"] == 3:
            I("s_memtime s[100:101]")
        if not with_reads:
            I(f"s_sub_u32 s3, s{S_M0}, 16")
            I("v_add_u32 v244, s3, v0")
            I("v_lshlrev_b32 v244, 4, v244")
            I(f"buffer_load_dwordx4 v[240:243], v244, s[{SRD_R}:{SRD_R+3}], 0 offen sc1")
        pre, rd = [], []
        if with_reads:
            if half == 0:
                pre, rd = frag_reads(1, 1, S_AR, S_BR)
            else:
                pre, rd = frag_reads(0, 0, S_ARN, S_BR)
        for x in pre:
            I(x)
        dm = []
        if with_dma:
            if half == 1:
                dl = dma_list("A", S_AR)
                dm += [(s_, i_, adv_a if k == len(dl) - 1 else [], True) for k, (s_, i_) in enumerate(dl)]
            dl = dma_list("B", S_BW)
            dm += [(s_, i_, adv_b if k == len(dl) - 1 else [], False) for k, (s_, i_) in enumerate(dl)]
        mf = mfmas(half)
        nm = len(mf)
        nd = len(dm)
        slots = []
        if dm:
            if OPT["stagger"]:
                pos_e = [int((k + 0.5) * (nm // 2) / nd) for k in range(nd)]
                pos_l = [nm // 2 + int((k + 0.5) * (nm - nm // 2 - 1) / nd) for k in range(nd)]
                slots = [(p_, k, "e") for k, p_ in enumerate(pos_e)] + [(p_, k, "l") for k, p_ in enumerate(pos_l)]
            else:
                slots = [(int((k + 0.5) * nm / nd), k, "a") for k in range(nd)]
        stat = c.stats(half)
        rdi = 0
        for i, m in enumerate(mf):
            I(m)
            if OPT["early"] and with_dma and half == 0 and i == 0:
                lab = f"{tag}_ea_{len(out)}"
                I(f"s_cmp_lg_u32 s{S_IT}, 0")
                I(f"s_cbranch_scc1 {lab}")
                pro(["B2", "A2", "B3"])
                L(lab)
            for (p_, k, kind) in slots:
                if p_ != i:
                    continue
                lab = f"{tag}_sk_{len(out)}"
                if kind == "e":
                    I(f"s_cbranch_vccz {lab}")
                elif kind == "l":
                    I(f"s_cbranch_vccnz {lab}")
                if dm[k][3]:
                    I(f"s_cmp_ge_u32 s{S_IT}, 7")
                    I(f"s_cbranch_scc1 {lab}")
                I(dm[k][0])
                I("s_nop 0")
                I(dm[k][1])
                for x in dm[k][2]:
                    I(x)
                L(lab)
            for _ in range(OPT["rpm"]):
                if rdi < len(rd):
                    I(rd[rdi])
                    rdi += 1
            for x in stat.get(i, []):
                if x.endswith(":"):
                    e(x)
                else:
                    I(x)
        for x in rd[rdi:]:
            I(x)
        if with_reads:
            I(f"s_mov_b32 s{S_BW}, s{S_BR}")
            ring_next(S_BR, c.bsz, 4, c.bbase)
            if half == 1:
                I(f"s_mov_b32 s{S_AR}, s{S_ARN}")
                ring_next(S_ARN, c.asz, 3, c.abase)
            I("s_waitcnt lgkmcnt(0)")
        if OPT["stamp"] == 3:
            I("s_waitcnt lgkmcnt(0)")
            if fixed_t is None:
                I(f"s_lshl_b32 s3, s{S_IT}, 1")
                I(f"s_add_u32 m0, s3, {half}")
            else:
                I(f"s_mov_b32 m0, {fixed_t}")
            I("s_nop 0")
            I("v_writelane_b32 v253, s96, m0")
            I("v_writelane_b32 v254, s98, m0")
            I("v_writelane_b32 v255, s100, m0")

    L(f"{tag}_loop")
    step(0, 2 * b + a, True, True)
    step(1, 2 * b + a, True, True)
    I(f"s_cmp_lg_u32 s{S_IT}, 0")
    I(f"s_cbranch_scc1 {tag}_nolate")
    late_setup()
    L(f"{tag}_nolate")
    if c.mid:
        I(f"s_cmp_lg_u32 s{S_IT}, 3")
        I(f"s_cbranch_scc1 {tag}_nomid")
        c.mid()
        L(f"{tag}_nomid")
    I(f"s_add_u32 s{S_IT}, s{S_IT}, 1")
    I(f"s_cmp_lt_u32 s{S_IT}, 8")
    I(f"s_cbranch_scc1 {tag}_loop")
    step(0, 2 * b, False, True, 16)
    step(1, b, False, True, 17)
    step(0, 0, False, True, 18)
    step(1, None, False, False, 19)
    if OPT["stamp"] == 3:
        lab = f"st3_{len(out)}"
        I(f"s_cmp_lg_u32 s2, {OPT.get('wg', 0)}")
        I(f"s_cbranch_scc1 {lab}")
        I(f"s_cmp_lg_u32 s{S_W}, {OPT.get('wave', 0)}")
        I(f"s_cbranch_scc1 {lab}")
        srd(96, P_DBG, P_DBG + 1, 256)
        I("v_lshlrev_b32 v1, 2, v2")
        I("v_cmp_gt_u32 vcc, 20, v2")
        I("s_and_saveexec_b64 s[100:101], vcc")
        I("buffer_store_dword v253, v1, s[96:99], 0 offen")
        I("buffer_store_dword v254, v1, s[96:99], 0 offen offset:80")
        I("buffer_store_dword v255, v1, s[96:99], 0 offen offset:160")
        I("s_mov_b64 exec, s[100:101]")
        L(lab)
    rt_stamp(2)
    ct_stamp(5)
    I("s_waitcnt vmcnt(0)")
    I("s_barrier")


def row_dots(xreg, s1, s2):
    r = []
    for j in range(4):
        r.append(f"v_dot2_f32_bf16 v{s1}, v{xreg+j}, v{V_ONE}, v{s1}")
        r.append(f"v_dot2_f32_bf16 v{s2}, v{xreg+j}, v{xreg+j}, v{s2}")
    return r


def col_dots(wreg, cs):
    return [f"v_dot2_f32_bf16 v{cs}, v{wreg+j}, v{V_ONE}, v{cs}" for j in range(4)]


def reduce_groups(regs, t):
    I("s_nop 3")
    for op in ("v_permlane16_swap_b32", "v_permlane32_swap_b32"):
        for r in regs:
            I(f"v_mov_b32 v{t}, v{r}")
            I("s_nop 1")
            I(f"{op} v{r}, v{t}")
            I("s_nop 1")
            I(f"v_add_f32 v{r}, v{r}, v{t}")


def wave_allreduce(v, sbase):
    for ctrl in ("quad_perm:[1,0,3,2]", "quad_perm:[2,3,0,1]", "row_half_mirror", "row_mirror"):
        I("s_nop 1")
        I(f"v_add_f32_dpp v{v}, v{v}, v{v} {ctrl} row_mask:0xf bank_mask:0xf")
    I("s_nop 1")
    for i in range(4):
        I(f"v_readlane_b32 s{sbase+i}, v{v}, {16*i}")
    I("s_nop 1")
    I(f"v_mov_b32 v{v}, s{sbase}")
    I(f"v_add_f32 v{v}, s{sbase+1}, v{v}")
    I(f"v_add_f32 v{v}, s{sbase+2}, v{v}")
    I(f"v_add_f32 v{v}, s{sbase+3}, v{v}")


def one_row_stats(B=8):
    U, M, R, T = B + 6, B + 16, B + 17, B + 18
    for i in range(5):
        I(f"v_lshlrev_b32 v{U+2*i}, 16, v{B+i}")
        I(f"v_and_b32 v{U+1+2*i}, 0xffff0000, v{B+i}")
    I(f"v_add_f32 v{M}, v{U}, v{U+1}")
    for i in range(2, 10):
        I(f"v_add_f32 v{M}, v{M}, v{U+i}")
    wave_allreduce(M, 75)
    I(f"v_mul_f32 v{M}, 0x3acccccd, v{M}")
    I(f"v_sub_f32 v{T}, v{U}, v{M}")
    I(f"v_mul_f32 v{R}, v{T}, v{T}")
    for i in range(1, 10):
        I(f"v_sub_f32 v{T}, v{U+i}, v{M}")
        I(f"v_fmac_f32 v{R}, v{T}, v{T}")
    wave_allreduce(R, 75)
    I(f"v_mul_f32 v{R}, 0x3acccccd, v{R}")
    I(f"v_cvt_pk_bf16_f32 v{T}, v{M}, v{R}")
    I(f"v_lshlrev_b32 v{M}, 16, v{T}")
    I(f"v_and_b32 v{R}, 0xffff0000, v{T}")
    I(f"v_add_f32 v{R}, 0x3727c5ac, v{R}")
    I(f"v_cvt_pk_bf16_f32 v{R}, v{R}, v{R}")
    I(f"v_lshlrev_b32 v{R}, 16, v{R}")
    I(f"v_sqrt_f32 v{R}, v{R}")
    I("s_nop 0")
    I(f"v_cvt_pk_bf16_f32 v{R}, v{R}, v{R}")
    I(f"v_lshlrev_b32 v{R}, 16, v{R}")
    I(f"v_rcp_f32 v{R}, v{R}")
    I("s_nop 0")


def gather_row_stats(tag):
    I(f"s_mov_b32 s{S_RETRY}, 0")
    I(f"s_sub_u32 s3, s{S_M0}, 16")
    I("v_add_u32 v5, s3, v0")
    I("v_lshlrev_b32 v6, 4, v5")
    I("v_lshlrev_b32 v7, 3, v0")
    I(f"v_add_u32 v7, {ST_ROW}, v7")
    I(f"v_mov_b32 v13, {ST_FLAG}")
    for i in range(4):
        I(f"v_mov_b32 v{8+i}, v{240+i}")
    I(f"s_branch {tag}_g_first")
    L(f"{tag}_g_retry")
    I(f"buffer_load_dwordx4 v[8:11], v6, s[{SRD_R}:{SRD_R+3}], 0 offen sc1")
    L(f"{tag}_g_first")
    I("v_mov_b32 v14, 0")
    I("ds_write_b32 v13, v14")
    I("s_waitcnt vmcnt(0) lgkmcnt(0)")
    I("s_barrier")
    I(f"v_subrev_u32 v9, s{S_TMIN}, v9")
    I(f"v_subrev_u32 v11, s{S_TMIN}, v11")
    I("v_or_b32 v9, v9, v11")
    I("v_lshrrev_b32 v9, 16, v9")
    I("v_cmp_gt_u32 vcc, 144, v0")
    I("s_nop 1")
    I("v_cndmask_b32 v9, 0, v9, vcc")
    I(f"v_cmp_gt_u32 vcc, {S}, v5")
    I("s_nop 1")
    I("v_cndmask_b32 v9, 0, v9, vcc")
    I("v_mov_b32 v11, v10")
    I("v_mov_b32 v10, v8")
    I("v_cmp_gt_u32 vcc, 144, v0")
    I("s_and_saveexec_b64 s[76:77], vcc")
    I("ds_write_b64 v7, v[10:11]")
    I("s_mov_b64 exec, s[76:77]")
    I("v_cmp_ne_u32 vcc, 0, v9")
    I("s_and_saveexec_b64 s[76:77], vcc")
    I("v_mov_b32 v14, 1")
    I("ds_write_b32 v13, v14")
    I("s_mov_b64 exec, s[76:77]")
    I("s_waitcnt lgkmcnt(0)")
    I("s_barrier")
    I("ds_read_b32 v14, v13")
    I("s_waitcnt lgkmcnt(0)")
    I("v_readfirstlane_b32 s3, v14")
    I("s_nop 3")
    I("s_cmp_eq_u32 s3, 0")
    I(f"s_cbranch_scc1 {tag}_g_done")
    I("s_barrier")
    I(f"s_add_u32 s{S_RETRY}, s{S_RETRY}, 1")
    I(f"s_cmp_lt_u32 s{S_RETRY}, {OPT['retry_max']}")
    I(f"s_cbranch_scc1 {tag}_g_retry")
    I(f"s_mov_b32 s{S_LNROW}, s{S_W}")
    I("v_mul_u32_u24 v13, 20, v2")
    L(f"{tag}_g_fb")
    I(f"s_add_u32 s3, s{S_LNROW}, s{S_M0}")
    I("s_sub_u32 s3, s3, 16")
    I("s_mul_i32 s3, s3, 1280")
    I("v_add_u32 v27, s3, v13")
    I(f"buffer_load_dwordx4 v[8:11], v27, s[{SRD_X}:{SRD_X+3}], 0 offen")
    I(f"buffer_load_dword v12, v27, s[{SRD_X}:{SRD_X+3}], 0 offen offset:16")
    I("s_waitcnt vmcnt(0)")
    one_row_stats()
    I(f"s_lshl_b32 s3, s{S_LNROW}, 3")
    I(f"s_add_u32 s3, s3, {ST_ROW}")
    I("v_mov_b32 v26, s3")
    I("ds_write_b64 v26, v[24:25]")
    I(f"s_add_u32 s{S_LNROW}, s{S_LNROW}, 8")
    I(f"s_cmp_lt_u32 s{S_LNROW}, 144")
    I(f"s_cbranch_scc1 {tag}_g_fb")
    I("s_waitcnt lgkmcnt(0)")
    I("s_barrier")
    L(f"{tag}_g_done")


def finish_row_stats(p, mu, rs, t):
    I(f"v_mul_f32 v{mu}, 0x3acccccd, v{p}")
    I(f"v_mul_f32 v{rs}, 0x3acccccd, v{p+1}")
    I(f"v_fma_f32 v{rs}, -v{mu}, v{mu}, v{rs}")
    I(f"v_max_f32 v{rs}, 0, v{rs}")
    I(f"v_cvt_pk_bf16_f32 v{t}, v{mu}, v{rs}")
    I(f"v_lshlrev_b32 v{mu}, 16, v{t}")
    I(f"v_and_b32 v{rs}, 0xffff0000, v{t}")
    I(f"v_add_f32 v{rs}, 0x3727c5ac, v{rs}")
    I(f"v_cvt_pk_bf16_f32 v{rs}, v{rs}, v{rs}")
    I(f"v_lshlrev_b32 v{rs}, 16, v{rs}")
    I(f"v_sqrt_f32 v{rs}, v{rs}")
    I("s_nop 0")
    I(f"v_cvt_pk_bf16_f32 v{rs}, v{rs}, v{rs}")
    I(f"v_lshlrev_b32 v{rs}, 16, v{rs}")
    I(f"v_rcp_f32 v{rs}, v{rs}")
    I("s_nop 0")


def gen_k1():
    name = "gemm1_kernel"
    kstart(name)
    I("s_cmp_ge_u32 s2, 256")
    I("s_cbranch_scc1 k1_done")
    rt_stamp(0)
    load_kernargs()
    I("s_memrealtime s[90:91]")
    I(f"s_and_b32 s{S_T0}, s2, 7")
    I(f"s_lshr_b32 s{S_T1}, s2, 3")
    I(f"s_lshr_b32 s{S_RB}, s{S_T0}, 1")
    I(f"s_lshl_b32 s{S_RB}, s{S_RB}, 2")
    I(f"s_and_b32 s{S_T2}, s{S_T1}, 3")
    I(f"s_add_u32 s{S_RB}, s{S_RB}, s{S_T2}")
    I(f"s_lshr_b32 s{S_T1}, s{S_T1}, 2")
    I(f"s_and_b32 s{S_TYPE}, s{S_T1}, 1")
    I(f"s_lshr_b32 s{S_T1}, s{S_T1}, 1")
    I(f"s_and_b32 s{S_CB}, s{S_T0}, 1")
    I(f"s_lshl_b32 s{S_CB}, s{S_CB}, 2")
    I(f"s_add_u32 s{S_CB}, s{S_CB}, s{S_T1}")
    I(f"s_lshl_b32 s{S_M0}, s{S_RB}, 7")
    I("v_lshrrev_b32 v1, 6, v0")
    I("v_and_b32 v2, 63, v0")
    I(f"v_readfirstlane_b32 s{S_W}, v1")
    I("v_and_b32 v3, 15, v2")
    I("v_lshrrev_b32 v4, 4, v2")
    I(f"s_cmp_eq_u32 s{S_TYPE}, 0")
    I("s_cbranch_scc1 k1_qkv")

    def build_srds():
        I("s_waitcnt lgkmcnt(0)")
        I(f"s_sub_u32 s{S_TMIN}, s{S_TMIN}, {OPT['tagwin']}")
        srd(SRD_X, P_X, P_X + 1, X_BYTES)
        srd(SRD_A2, P_WS, P_WS + 1, A2_BYTES + W2_BYTES)

    def a_dma_main(vAd):
        I(f"s_lshl_b32 s{S_T0}, s{S_W}, 4")
        I(f"s_add_u32 s{S_T0}, s{S_T0}, s{S_M0}")
        I("v_lshrrev_b32 v1, 3, v2")
        I(f"v_add_u32 v5, s{S_T0}, v1")
        I("v_mul_u32_u24 v5, 1280, v5")
        I("v_and_b32 v6, 7, v2")
        I("v_xor_b32 v7, v6, v4")
        I(f"v_lshl_add_u32 v{vAd}, v7, 4, v5")
        I("v_or_b32 v7, 4, v4")
        I("v_xor_b32 v7, v6, v7")
        I(f"v_lshl_add_u32 v{vAd+1}, v7, 4, v5")
        I(f"v_add_u32 v{vAd+1}, {8*1280 - 1024}, v{vAd+1}")

    def x_base(vX0, vX1):
        I("v_lshrrev_b32 v6, 1, v3")
        I("v_xor_b32 v6, v6, v4")
        I("v_lshlrev_b32 v6, 4, v6")
        I(f"v_lshl_add_u32 v{vX0}, v3, 7, v6")
        I(f"v_xor_b32 v{vX1}, 64, v{vX0}")

    c = Cfg()
    c.asz, c.bsz, c.abase, c.bbase = 16384, 24576, 0, 49152
    c.bstage_g = 32 * F * 2
    c.wrow4 = 4 * 24 * 16
    c.acc0, c.nacc = 128, 96
    c.XF = [8, 48]
    c.WF = [24, 64]
    c.vX0, c.vX1 = 88, 89
    vW, vXa, vWa, vAd, vBd = 90, 93, 97, 100, 102
    vC = 224
    c.stat_regs = list(range(vC, vC + 12))
    a_dma_main(vAd)
    I(f"s_lshl_b32 s{S_MA}, s{S_W}, 11")
    c.a_dma = [(vAd, S_MA, 0), (vAd + 1, S_MA, 1024)]
    I(f"s_and_b32 s{S_T0}, s{S_W}, 3")
    I(f"s_mul_i32 s{S_T1}, s{S_T0}, 192")
    I(f"s_mul_i32 s{S_T2}, s{S_CB}, 384")
    for ii in range(3):
        I(f"v_add_u32 v5, s{S_T1}, v2")
        if ii:
            I(f"v_add_u32 v5, {64*ii}, v5")
        I("v_mul_u32_u24 v6, 2731, v5")
        I("v_lshrrev_b32 v6, 16, v6")
        I("v_mul_u32_u24 v7, 24, v6")
        I("v_sub_u32 v7, v5, v7")
        I("v_and_b32 v1, 2, v6")
        I("v_lshrrev_b32 v5, 1, v6")
        I("v_and_b32 v5, 4, v5")
        I("v_or_b32 v1, v1, v5")
        I("v_xor_b32 v7, v7, v1")
        I("v_mul_u32_u24 v6, 3072, v6")
        I("v_lshl_add_u32 v6, v7, 4, v6")
        I(f"v_add_u32 v{vBd+ii}, s{S_T2}, v6")
        if ii:
            I(f"v_subrev_u32 v{vBd+ii}, {1024*ii}, v{vBd+ii}")
    I(f"s_lshr_b32 s{S_T1}, s{S_W}, 2")
    I(f"s_mul_i32 s{S_MB}, s{S_T1}, 12288")
    I(f"s_mul_i32 s{S_T1}, s{S_T0}, 3072")
    I(f"s_add_u32 s{S_MB}, s{S_MB}, s{S_T1}")
    c.b_dma = [(vBd + ii, S_MB, 1024 * ii) for ii in range(3)]
    build_srds()
    I(f"s_cmp_lt_u32 s{S_W}, 4")
    I(f"s_cselect_b32 s{SRD_W}, s{P_WG}, s{P_WU}")
    I(f"s_cselect_b32 s{SRD_W+1}, s{P_WG+1}, s{P_WU+1}")
    I(f"s_and_b32 s{SRD_W+1}, s{SRD_W+1}, 0xffff")
    I(f"s_mov_b32 s{SRD_W+2}, {D*F*2}")
    I(f"s_mov_b32 s{SRD_W+3}, 0x20000")

    def glu_after():
        x_base(c.vX0, c.vX1)
        I(f"s_lshr_b32 s{S_T1}, s{S_W}, 2")
        I(f"s_lshl_b32 s{S_T1}, s{S_T1}, 13")
        I(f"v_add_u32 v{c.vX0}, s{S_T1}, v{c.vX0}")
        I(f"v_add_u32 v{c.vX1}, s{S_T1}, v{c.vX1}")
        for i in range(4):
            I(f"s_add_u32 s{S_ROT+i}, s{S_T1}, {2048*i}")
        I("v_lshrrev_b32 v5, 2, v3")
        I("v_and_b32 v6, 3, v2")
        I("v_lshl_add_u32 v7, v4, 3, v5")
        I("v_mul_u32_u24 v7, 384, v7")
        I("v_and_b32 v1, 1, v6")
        I("v_lshl_add_u32 v7, v1, 3, v7")
        I("v_and_b32 v5, 2, v5")
        I("v_and_b32 v1, 1, v4")
        I("v_lshl_or_b32 v5, v1, 2, v5")
        I("v_lshrrev_b32 v6, 1, v6")
        I(f"s_mul_i32 s{S_T1}, s{S_T0}, 6")
        I(f"v_add_u32 v6, s{S_T1}, v6")
        for ct in range(3):
            I(f"v_add_u32 v1, {2*ct}, v6")
            I("v_xor_b32 v1, v1, v5")
            I(f"v_lshl_add_u32 v{vW+ct}, v1, 4, v7")
        return 0

    c.frag_setup = glu_after
    c.late = lambda: None
    c.mid = None
    c.xaddr = [(vXa, c.vX0, c.vX1)]
    c.xfrag = [(0, 2048 * i) for i in range(4)]
    c.waddr = [(vWa + ct, vW + ct) for ct in range(3)]
    c.wfrag = [(ct, 0) for ct in range(3)] + [(ct, 12288) for ct in range(3)]
    c.tiles = [(c.acc0 + (rt * 6 + ct) * 4, rt, ct) for rt in range(4) for ct in range(6)]

    def ones_mfma(acc, w):
        return f"v_mfma_f32_16x16x32_bf16 v[{acc}:{acc+3}], v[{w}:{w+3}], v[{V_ONE}:{V_ONE+3}], v[{acc}:{acc+3}]"

    def glu_stats(fs):
        la, lj = f"glu_cb_{len(out)}_{fs}", f"glu_cj_{len(out)}_{fs}"
        blk = [f"s_cbranch_vccz {la}"]
        blk += [ones_mfma(vC + 4 * ct, c.WF[fs] + 4 * ct) for ct in range(3)]
        blk += [f"s_branch {lj}", f"{la}:"]
        blk += [ones_mfma(vC + 4 * ct, c.WF[fs] + 12 + 4 * ct) for ct in range(3)]
        blk += [f"{lj}:"]
        return {23: blk}

    c.stats = glu_stats
    k1_mainloop(c, "glu")
    I(f"s_lshr_b32 s{S_T1}, s{S_W}, 2")
    I(f"s_mul_i32 s{S_T1}, s{S_T1}, 768")
    I(f"s_mul_i32 s{S_T2}, s{S_T0}, 192")
    I(f"s_add_u32 s{S_T2}, s{S_T2}, {ST_COL}")
    I("v_lshlrev_b32 v6, 4, v4")
    I(f"v_add_u32 v6, s{S_T2}, v6")
    I(f"v_add_u32 v7, s{S_T1}, v6")
    I("s_nop 4")
    I("s_mov_b32 exec_lo, 0x00010001")
    I("s_mov_b32 exec_hi, 0x00010001")
    for ct in range(3):
        I(f"ds_write_b128 v7, v[{vC+4*ct}:{vC+4*ct+3}] offset:{64*ct}")
    I("s_mov_b64 exec, -1")
    I("v_mov_b32 v30, v6")
    gather_row_stats("glu")
    I("v_mov_b32 v6, v30")
    I("v_lshlrev_b32 v5, 3, v3")
    I(f"v_add_u32 v5, {ST_ROW + 128}, v5")
    for i in range(4):
        I(f"s_lshr_b32 s{S_T1}, s{S_ROT+i}, 4")
        I(f"v_add_u32 v7, s{S_T1}, v5")
        I(f"ds_read_b64 v[{8+2*i}:{9+2*i}], v7")
    for ct in range(3):
        I(f"ds_read_b128 v[{32+4*ct}:{35+4*ct}], v6 offset:{64*ct}")
        I(f"ds_read_b128 v[{44+4*ct}:{47+4*ct}], v6 offset:{768 + 64*ct}")
    I(f"s_mov_b32 s{S_L2E}, 0xbfb8aa3b")
    I("s_waitcnt lgkmcnt(0)")
    for i in range(4):
        I(f"v_xor_b32 v{56+4*i}, 0x80000000, v{8+2*i}")
        I(f"v_mov_b32 v{57+4*i}, v{9+2*i}")
        I(f"v_mul_f32 v{58+4*i}, s{S_L2E}, v{9+2*i}")
    I("v_mov_b32 v72, 1.0")
    I("v_mov_b32 v73, 1.0")
    I(f"s_mul_i32 s{S_T1}, s{S_RB}, {8*69632}")
    I(f"s_mul_i32 s{S_T2}, s{S_CB}, 12")
    I(f"s_mul_i32 s{S_T3}, s{S_T0}, 3")
    I(f"s_add_u32 s{S_T2}, s{S_T2}, s{S_T3}")
    I(f"s_add_u32 s{S_T2}, s{S_T2}, 40")
    I(f"s_lshl_b32 s{S_T2}, s{S_T2}, 9")
    I(f"s_add_u32 s{S_T1}, s{S_T1}, s{S_T2}")
    I("v_lshrrev_b32 v5, 1, v4")
    I("v_lshlrev_b32 v5, 8, v5")
    I("v_lshl_add_u32 v5, v3, 4, v5")
    I("v_and_b32 v6, 1, v4")
    I("v_lshl_add_u32 v5, v6, 3, v5")
    I(f"v_add_u32 v5, s{S_T1}, v5")
    for rt in range(4):
        I(f"s_mul_i32 s{S_T2}, s{S_ROT+rt}, 34")
        for ct in range(3):
            g = c.acc0 + (rt * 6 + ct) * 4
            u = c.acc0 + (rt * 6 + 3 + ct) * 4
            K = 56 + 4 * rt
            for h_ in range(2):
                gg, uu = g + 2 * h_, u + 2 * h_
                cg_, cu_ = 32 + 4 * ct + 2 * h_, 44 + 4 * ct + 2 * h_
                I(f"v_pk_fma_f32 v[{gg}:{gg+1}], v[{cg_}:{cg_+1}], v[{K}:{K+1}], v[{gg}:{gg+1}] op_sel_hi:[1,0,1]")
                I(f"v_pk_fma_f32 v[{uu}:{uu+1}], v[{cu_}:{cu_+1}], v[{K}:{K+1}], v[{uu}:{uu+1}] op_sel_hi:[1,0,1]")
            for h_ in range(2):
                gg, uu = g + 2 * h_, u + 2 * h_
                I(f"v_pk_mul_f32 v[{gg}:{gg+1}], v[{gg}:{gg+1}], v[{K+2}:{K+3}] op_sel_hi:[1,0]")
                I(f"v_pk_mul_f32 v[{uu}:{uu+1}], v[{uu}:{uu+1}], v[{K}:{K+1}] op_sel:[0,1] op_sel_hi:[1,1]")
            for r in range(4):
                I(f"v_exp_f32 v{g+r}, v{g+r}")
            I("s_nop 0")
            for h_ in range(2):
                gg = g + 2 * h_
                I(f"v_pk_add_f32 v[{gg}:{gg+1}], v[{gg}:{gg+1}], v[72:73]")
            for r in range(4):
                I(f"v_rcp_f32 v{g+r}, v{g+r}")
            I("s_nop 0")
            for h_ in range(2):
                gg, uu = g + 2 * h_, u + 2 * h_
                I(f"v_pk_mul_f32 v[{gg}:{gg+1}], v[{gg}:{gg+1}], v[{uu}:{uu+1}]")
            I(f"v_cvt_pk_bf16_f32 v{u}, v{g}, v{g+1}")
            I(f"v_cvt_pk_bf16_f32 v{u+1}, v{g+2}, v{g+3}")
            I(f"buffer_store_dwordx2 v[{u}:{u+1}], v5, s[{SRD_A2}:{SRD_A2+3}], s{S_T2} offen offset:{ct*512}")
    rt_flush(0x4000000)
    I("s_endpgm")

    L("k1_qkv")
    c = Cfg()
    c.asz, c.bsz, c.abase, c.bbase = 18432, 16384, 0, 55296
    c.bstage_g = 32 * 3 * D * 2
    c.wrow4 = 4 * 30 * 16
    c.acc0, c.nacc = 128, 72
    c.XF = [8, 44]
    c.WF = [28, 64]
    c.vX0, c.vX1 = 112, 113
    vXm0, vXm1 = 110, 111
    vW, vXa, vWa, vAd, vBd = 114, 117, 120, 123, 126
    vC = 224
    c.stat_regs = list(range(vC, vC + 8))
    extra_t = {0: (5, 0), 2: (6, 1), 4: (7, 2), 6: (3, 4), 1: (8, 9), 3: (10, 11), 5: (12, 13), 7: (14, 14)}
    a_dma_main(vAd)
    I(f"s_and_b32 s{S_T1}, s{S_W}, 1")
    I(f"s_lshl_b32 s{S_T2}, s{S_T1}, 3")
    I(f"s_add_u32 s{S_T2}, s{S_T2}, s{S_M0}")
    I(f"s_sub_u32 s{S_T2}, s{S_T2}, 16")
    I(f"v_add_u32 v5, s{S_T2}, v1")
    I(f"s_mov_b32 s{S_T2}, 1280")
    I(f"v_mul_lo_u32 v5, v5, s{S_T2}")
    I(f"s_lshl_b32 s{S_T2}, s{S_T1}, 2")
    I(f"v_or_b32 v7, s{S_T2}, v4")
    I("v_xor_b32 v7, v6, v7")
    I(f"v_lshl_add_u32 v{vAd+2}, v7, 4, v5")
    I(f"s_lshl_b32 s{S_MA}, s{S_W}, 11")
    I(f"s_add_u32 s{S_MA}, s{S_MA}, 2048")
    I(f"s_lshl_b32 s{S_MH}, s{S_T1}, 10")
    c.a_dma = [(vAd, S_MA, 0), (vAd + 1, S_MA, 1024), (vAd + 2, S_MH, 0)]
    I(f"s_mul_i32 s{S_T2}, s{S_CB}, 160")
    I(f"s_lshl_b32 s{S_T0}, s{S_W}, 7")
    for ii in range(2):
        I(f"v_add_u32 v5, s{S_T0}, v2")
        if ii:
            I("v_add_u32 v5, 64, v5")
        I("v_mul_u32_u24 v6, 1058, v5")
        I("v_lshrrev_b32 v6, 18, v6")
        I("v_mul_u32_u24 v7, 248, v6")
        I("v_sub_u32 v5, v5, v7")
        I("v_mul_u32_u24 v7, 2185, v5")
        I("v_lshrrev_b32 v7, 16, v7")
        I("v_lshl_add_u32 v6, v6, 3, v7")
        I("v_mul_u32_u24 v7, 30, v7")
        I("v_sub_u32 v7, v5, v7")
        I("v_mul_u32_u24 v1, 26, v7")
        I("v_lshrrev_b32 v1, 8, v1")
        I("v_mul_u32_u24 v1, 1120, v1")
        I("v_lshl_add_u32 v1, v7, 4, v1")
        I("v_cmp_gt_u32 vcc, 240, v5")
        I("v_mul_u32_u24 v7, 3840, v6")
        I("v_add_u32 v1, v1, v7")
        I(f"v_add_u32 v1, s{S_T2}, v1")
        if ii:
            I("v_subrev_u32 v1, 1024, v1")
        I("v_mov_b32 v7, 0x7f000000")
        I("v_cndmask_b32 v1, v7, v1, vcc")
        I("v_cmp_gt_u32 vcc, 32, v6")
        I("s_nop 1")
        I(f"v_cndmask_b32 v{vBd+ii}, v7, v1, vcc")
    I(f"s_lshl_b32 s{S_MB}, s{S_W}, 11")
    c.b_dma = [(vBd + ii, S_MB, 1024 * ii) for ii in range(2)]
    build_srds()
    srd(SRD_W, P_WQKV, P_WQKV + 1, D * 3 * D * 2)
    RL_LDS = 120832
    sI, sKS, sCG, sV, sT, sD = 75, 76, 77, 78, 79, 80
    SRD_S = 84
    S_ET = 88
    vRa, vRt = 232, 234

    def qkv_late():
        I(f"s_lshr_b32 s{sT}, s2, 3")
        I(f"s_and_b32 s{sV}, s{sT}, 3")
        I(f"s_lshr_b32 s{sT}, s{sT}, 3")
        I(f"s_lshl_b32 s{sT}, s{sT}, 2")
        I(f"s_add_u32 s{sV}, s{sV}, s{sT}")
        I(f"s_and_b32 s{sT}, s2, 7")
        I(f"s_lshl_b32 s{sT}, s{sT}, 4")
        I(f"s_add_u32 s{sV}, s{sV}, s{sT}")
        I(f"s_lshl_b32 s{sI}, s{sV}, 3")
        I(f"s_add_u32 s{sI}, s{sI}, s{S_W}")
        I(f"s_min_u32 s{sT}, s{sI}, 679")
        I(f"s_mul_i32 s{sKS}, s{sT}, 6554")
        I(f"s_lshr_b32 s{sKS}, s{sKS}, 16")
        I(f"s_mul_i32 s{sV}, s{sKS}, 10")
        I(f"s_sub_u32 s{sCG}, s{sT}, s{sV}")
        I(f"s_cmp_lt_u32 s{sKS}, 20")
        I(f"s_cselect_b32 s{SRD_S}, s{P_WO}, s{P_WD}")
        I(f"s_cselect_b32 s{SRD_S+1}, s{P_WO+1}, s{P_WD+1}")
        I(f"s_mov_b32 s{SRD_S+2}, {F*D*2}")
        I(f"s_cselect_b32 s{SRD_S+2}, {D*D*2}, s{SRD_S+2}")
        I(f"s_cselect_b32 s{sT}, 0, 20")
        I(f"s_and_b32 s{SRD_S+1}, s{SRD_S+1}, 0xffff")
        I(f"s_mov_b32 s{SRD_S+3}, 0x20000")
        I(f"s_sub_u32 s{sT}, s{sKS}, s{sT}")
        I(f"s_mul_i32 s{sT}, s{sT}, {32*1280}")
        I(f"s_lshl_b32 s{sV}, s{sCG}, 7")
        I(f"s_add_u32 s{sT}, s{sT}, s{sV}")
        I("v_lshrrev_b32 v5, 3, v2")
        I("v_and_b32 v6, 7, v2")
        I("v_and_b32 v7, 2, v5")
        I("v_xor_b32 v6, v6, v7")
        I("v_mul_u32_u24 v5, 1280, v5")
        I(f"v_lshl_add_u32 v{vRa}, v6, 4, v5")
        I("v_xor_b32 v6, 4, v6")
        I(f"v_lshl_add_u32 v{vRa+1}, v6, 4, v5")
        I(f"s_lshl_b32 s{sV}, s{S_W}, 12")
        I(f"s_add_u32 s{sV}, s{sV}, {RL_LDS}")
        for a_ in range(4):
            I(f"s_add_u32 m0, s{sV}, {1024*a_}")
            I("s_nop 0")
            I(f"buffer_load_dwordx4 v{vRa + (a_ & 1)}, s[{SRD_S}:{SRD_S+3}], s{sT} offen lds")
            if a_ < 3:
                I(f"s_add_u32 s{sT}, s{sT}, {8*1280}")
        I("v_lshrrev_b32 v5, 2, v3")
        I("v_lshl_add_u32 v6, v4, 3, v5")
        I("v_lshlrev_b32 v6, 7, v6")
        I("v_and_b32 v7, 1, v2")
        I("v_lshl_add_u32 v6, v7, 3, v6")
        I(f"v_add_u32 v6, s{sV}, v6")
        I("v_and_b32 v5, 2, v5")
        I("v_and_b32 v7, 1, v4")
        I("v_lshl_or_b32 v5, v7, 2, v5")
        I("v_lshrrev_b32 v7, 1, v2")
        I("v_and_b32 v7, 1, v7")
        for ct in range(4):
            I(f"v_add_u32 v1, {2*ct}, v7")
            I("v_xor_b32 v1, v1, v5")
            I(f"v_lshl_add_u32 v{vRt+ct}, v1, 4, v6")
        for ct in range(4):
            I(f"s_lshl_b32 s{sT}, s{sCG}, 2")
            I(f"s_add_u32 s{sT}, s{sT}, {ct}")
            I(f"s_mul_i32 s{sV}, s{sT}, 52")
            I(f"s_lshr_b32 s{sV}, s{sV}, 8")
            I(f"s_mul_i32 s{sD+ct}, s{sV}, 5")
            I(f"s_sub_u32 s{sT}, s{sT}, s{sD+ct}")
            I(f"s_mul_i32 s{sV}, s{sV}, 68")
            I(f"s_add_u32 s{sV}, s{sV}, s{sKS}")
            I(f"s_mul_i32 s{sV}, s{sV}, 5")
            I(f"s_add_u32 s{sV}, s{sV}, s{sT}")
            I(f"s_lshl_b32 s{sV}, s{sV}, 10")
            I(f"s_add_u32 s{sD+ct}, s{sV}, {W2_OFF}")

    def tile_base(dst, t, halo):
        I(f"s_mul_i32 s{S_T0}, s{t}, 52")
        I(f"s_lshr_b32 s{S_T0}, s{S_T0}, 8")
        I(f"s_mul_i32 s{S_T3}, s{S_T0}, 5")
        I(f"s_sub_u32 s{S_T3}, s{t}, s{S_T3}")
        I(f"s_lshl_b32 s{S_T3}, s{S_T3}, 5")
        I(f"s_mul_i32 s{S_T0}, s{S_T0}, 24192")
        I(f"s_add_u32 s{S_T0}, s{S_T0}, s{S_T3}")
        I(f"s_sub_u32 s{dst}, s{S_T0}, 2688")
        I(f"s_cmp_ge_u32 s{t}, 15")
        I(f"s_cselect_b32 s{dst}, {70656 if halo else 70656 - 2688}, s{dst}")
        if halo:
            I(f"s_cmp_lt_u32 s{t}, 5")
            I(f"s_cselect_b32 s{dst}, 70656, s{dst}")

    def qkv_after():
        x_base(c.vX0, c.vX1)
        I(f"s_lshr_b32 s{S_T2}, s{S_W}, 2")
        I(f"s_lshl_b32 s{S_ROT}, s{S_T2}, 13")
        I(f"s_add_u32 s{S_ROT}, s{S_ROT}, 2048")
        I(f"v_add_u32 v{vXm0}, s{S_ROT}, v{c.vX0}")
        I(f"v_add_u32 v{vXm1}, s{S_ROT}, v{c.vX1}")
        I("v_lshrrev_b32 v5, 2, v3")
        I("v_mul_u32_u24 v5, 30, v5")
        I("v_mul_u32_u24 v6, 248, v4")
        I("v_add_u32 v5, v5, v6")
        I("v_lshrrev_b32 v6, 1, v2")
        I("v_and_b32 v6, 1, v6")
        I("v_add_u32 v5, v5, v6")
        I("v_lshlrev_b32 v5, 4, v5")
        I("v_and_b32 v6, 1, v2")
        I("v_lshl_add_u32 v5, v6, 3, v5")
        I(f"s_and_b32 s{S_T3}, s{S_W}, 3")
        I(f"s_lshl_b32 s{S_T3}, s{S_T3}, 7")
        I(f"v_add_u32 v{vW}, s{S_T3}, v5")

    def qkv_late2():
        qkv_late()
        I(f"s_and_b32 s{S_T1}, s{S_W}, 3")
        I(f"s_lshl_b32 s{S_T1}, s{S_T1}, 2")
        for q in range(4):
            I(f"s_add_u32 s{S_T2}, s{S_T1}, {q}")
            tile_base(S_SLOT + q, S_T2, False)
        I(f"s_lshr_b32 s{S_T2}, s{S_W}, 2")
        I(f"s_lshl_b32 s{S_T2}, s{S_T2}, 1")
        I(f"s_add_u32 s{S_ET}, s{S_T1}, s{S_T2}")
        I(f"s_add_u32 s{S_ET+1}, s{S_ET}, 1")
        for q in range(2):
            tile_base(S_SLOT + 8 + q, S_ET + q, True)

    c.frag_setup = qkv_after
    c.late = qkv_late2
    c.xaddr = [(vXa, vXm0, vXm1), (vXa + 1, c.vX0, c.vX1)]
    c.xfrag = [(0, 2048 * i) for i in range(4)] + [(1, 0)]
    c.waddr = [(vWa, vW)]
    c.wfrag = [(0, q * 32) for q in range(4)]
    c.tiles = [(c.acc0 + (q * 4 + i) * 4, i, q) for q in range(4) for i in range(4)]

    def qkv_stats(fs):
        la, lj = f"qkv_cb_{len(out)}_{fs}", f"qkv_cj_{len(out)}_{fs}"
        xh = c.XF[fs] + 16

        def blk(q0):
            r_ = []
            for q in range(2):
                w = c.WF[fs] + 4 * (q0 + q)
                a_ = c.acc0 + (16 + q) * 4
                r_.append(f"v_mfma_f32_16x16x32_bf16 v[{a_}:{a_+3}], v[{w}:{w+3}], v[{xh}:{xh+3}], v[{a_}:{a_+3}]")
                r_.append(ones_mfma(vC + 4 * q, w))
            return r_
        return {15: [f"s_cbranch_vccz {la}"] + blk(0) + [f"s_branch {lj}", f"{la}:"] + blk(2) + [f"{lj}:"]}

    def qkv_mid():
        for ct in range(4):
            r = 208 + 4 * ct
            I(f"ds_read_b64_tr_b16 v[{r}:{r+1}], v{vRt+ct}")
            I(f"ds_read_b64_tr_b16 v[{r+2}:{r+3}], v{vRt+ct} offset:512")
        I("v_lshlrev_b32 v1, 4, v2")
        for ct in range(4):
            r = 208 + 4 * ct
            I(f"s_waitcnt lgkmcnt({2*(3-ct)})")
            I(f"buffer_store_dwordx4 v[{r}:{r+3}], v1, s[{SRD_A2}:{SRD_A2+3}], s{sD+ct} offen")

    c.mid = qkv_mid
    c.stats = qkv_stats
    k1_mainloop(c, "qkv")
    I("v_lshlrev_b32 v6, 4, v4")
    I(f"v_add_u32 v6, {ST_COL}, v6")
    I(f"s_lshl_b32 s{S_T2}, s{S_ET}, 6")
    I(f"v_add_u32 v9, s{S_T2}, v6")
    I(f"s_lshl_b32 s{S_T2}, s{S_ET+1}, 6")
    I(f"v_add_u32 v10, s{S_T2}, v6")
    I("s_mov_b32 exec_lo, 0x00010001")
    I("s_mov_b32 exec_hi, 0x00010001")
    I(f"ds_write_b128 v9, v[{vC}:{vC+3}]")
    I(f"ds_write_b128 v10, v[{vC+4}:{vC+7}]")
    I("s_mov_b64 exec, -1")
    gather_row_stats("qkv")
    I("v_lshlrev_b32 v5, 3, v3")
    I(f"v_add_u32 v5, {ST_ROW}, v5")
    I(f"s_lshr_b32 s{S_T2}, s{S_ROT}, 4")
    I(f"v_add_u32 v6, s{S_T2}, v5")
    for i in range(4):
        I(f"ds_read_b64 v[{16+2*i}:{17+2*i}], v6 offset:{128*i}")
    I(f"ds_read_b64 v[24:25], v5")
    I("v_lshlrev_b32 v6, 4, v4")
    I(f"v_add_u32 v6, {ST_COL}, v6")
    I(f"s_and_b32 s{S_T1}, s{S_W}, 3")
    I(f"s_lshl_b32 s{S_T2}, s{S_T1}, 8")
    I(f"v_add_u32 v7, s{S_T2}, v6")
    CSV = 32
    for q in range(4):
        I(f"ds_read_b128 v[{CSV+4*q}:{CSV+4*q+3}], v7 offset:{64*q}")
    I("v_mul_u32_u24 v5, 168, v3")
    I("v_lshl_add_u32 v5, v4, 3, v5")
    I(f"s_lshr_b32 s{S_T2}, s{S_ROT}, 11")
    I(f"s_mul_i32 s{S_T2}, s{S_T2}, {16*168}")
    I(f"v_add_u32 v26, s{S_T2}, v5")
    I("s_waitcnt lgkmcnt(0)")
    for i in range(5):
        I(f"v_xor_b32 v{16+2*i}, 0x80000000, v{16+2*i}")

    def stage(a, cs, K):
        for h_ in range(2):
            I(f"v_pk_fma_f32 v[{a+2*h_}:{a+2*h_+1}], v[{cs+2*h_}:{cs+2*h_+1}], v[{K}:{K+1}], v[{a+2*h_}:{a+2*h_+1}] op_sel_hi:[1,0,1]")
        for h_ in range(2):
            I(f"v_pk_mul_f32 v[{a+2*h_}:{a+2*h_+1}], v[{a+2*h_}:{a+2*h_+1}], v[{K}:{K+1}] op_sel:[0,1] op_sel_hi:[1,1]")
        I(f"v_cvt_pk_bf16_f32 v{a}, v{a}, v{a+1}")
        I(f"v_cvt_pk_bf16_f32 v{a+1}, v{a+2}, v{a+3}")

    for q in range(4):
        I(f"v_add_u32 v7, s{S_SLOT+q}, v26")
        for i in range(4):
            a = c.acc0 + (q * 4 + i) * 4
            stage(a, CSV + 4 * q, 16 + 2 * i)
            I(f"ds_write_b64 v7, v[{a}:{a+1}] offset:{i*16*168}")
    for q in range(2):
        a = c.acc0 + (16 + q) * 4
        stage(a, vC + 4 * q, 24)
        I(f"v_add_u32 v7, s{S_SLOT+8+q}, v5")
        I(f"ds_write_b64 v7, v[{a}:{a+1}]")
    I("s_waitcnt lgkmcnt(0)")
    I("s_barrier")
    KOFF, VOFF = 21504, 45696
    I(f"s_and_b32 s{S_T0}, s{S_W}, 1")
    I(f"s_lshl_b32 s{S_T0}, s{S_T0}, 6")
    I(f"v_add_u32 v5, s{S_T0}, v2")
    I(f"v_add_u32 v6, s{S_M0}, v5")
    I("v_mul_u32_u24 v5, 168, v5")
    I(f"s_lshr_b32 s{S_T1}, s{S_W}, 1")
    I(f"s_mul_i32 s{S_T2}, s{S_T1}, 40")
    I(f"v_add_u32 v5, s{S_T2}, v5")
    Q = 8
    KV = 20
    LG = 100
    O = 110
    for i in range(5):
        I(f"ds_read_b64 v[{Q+2*i}:{Q+2*i+1}], v5 offset:{8*i}")
    for wi in range(8):
        for i in range(5):
            off = KOFF + (16 - 2 * wi) * 168 + 8 * i
            I(f"ds_read_b64 v[{KV+10*wi+2*i}:{KV+10*wi+2*i+1}], v5 offset:{off}")
    I(f"s_mov_b32 s{S_SCALE}, 0x3e64f92e")
    I(f"s_mov_b32 s{S_L2E}, 0x3ea52b5c")
    I(f"s_mov_b32 s{S_SEL_LO}, 0x05040100")
    I(f"s_mov_b32 s{S_SEL_HI}, 0x07060302")
    I("s_waitcnt lgkmcnt(0)")
    for i in range(10):
        for wi in range(8):
            src = "0" if i == 0 else f"v{LG+wi}"
            I(f"v_dot2_f32_bf16 v{LG+wi}, v{Q+i}, v{KV+10*wi+i}, {src}")
    I("s_nop 3")
    for wi in range(8):
        for i in range(5):
            off = VOFF + (16 - 2 * wi) * 168 + 8 * i
            I(f"ds_read_b64 v[{KV+10*wi+2*i}:{KV+10*wi+2*i+1}], v5 offset:{off}")
    I(f"s_cmp_lg_u32 s{S_RB}, 0")
    I("s_cbranch_scc1 qkv_nomask")
    I("v_mov_b32 v7, 0xcf8547b1")
    for wi in range(1, 8):
        I(f"v_cmp_le_u32 vcc, {2*wi}, v6")
        I("s_nop 1")
        I(f"v_cndmask_b32 v{LG+wi}, v7, v{LG+wi}, vcc")
    L("qkv_nomask")
    I(f"v_max3_f32 v7, v{LG}, v{LG+1}, v{LG+2}")
    I(f"v_max3_f32 v7, v7, v{LG+3}, v{LG+4}")
    I(f"v_max3_f32 v7, v7, v{LG+5}, v{LG+6}")
    I(f"v_max_f32 v7, v7, v{LG+7}")
    for wi in range(8):
        I(f"v_sub_f32 v{LG+wi}, v{LG+wi}, v7")
        I(f"v_mul_f32 v{LG+wi}, s{S_L2E}, v{LG+wi}")
    for wi in range(8):
        I(f"v_exp_f32 v{LG+wi}, v{LG+wi}")
    I("s_nop 0")
    I(f"v_add_f32 v7, v{LG}, v{LG+1}")
    for wi in range(2, 8):
        I(f"v_add_f32 v7, v7, v{LG+wi}")
    I("v_rcp_f32 v7, v7")
    I("s_nop 0")
    for wi in range(8):
        I(f"v_mul_f32 v{LG+wi}, v{LG+wi}, v7")
    for p in range(4):
        I(f"v_cvt_pk_bf16_f32 v{LG+p}, v{LG+2*p}, v{LG+2*p+1}")
    I("s_waitcnt lgkmcnt(0)")
    T = 130
    for p in range(4):
        for i in range(10):
            A_ = KV + 10 * (2 * p) + i
            B_ = KV + 10 * (2 * p + 1) + i
            t0 = T + 2 * (i % 4)
            I(f"v_perm_b32 v{t0}, v{B_}, v{A_}, s{S_SEL_LO}")
            I(f"v_perm_b32 v{t0+1}, v{B_}, v{A_}, s{S_SEL_HI}")
            s0 = "0" if p == 0 else f"v{O+2*i}"
            s1 = "0" if p == 0 else f"v{O+2*i+1}"
            I(f"v_dot2_f32_bf16 v{O+2*i}, v{t0}, v{LG+p}, {s0}")
            I(f"v_dot2_f32_bf16 v{O+2*i+1}, v{t0+1}, v{LG+p}, {s1}")
    I("s_nop 3")
    for i in range(10):
        I(f"v_cvt_pk_bf16_f32 v{Q+i}, v{O+2*i}, v{O+2*i+1}")
    I("v_lshrrev_b32 v5, 4, v6")
    I("v_mul_u32_u24 v5, 69632, v5")
    I("v_and_b32 v7, 15, v6")
    I("v_lshl_add_u32 v5, v7, 4, v5")
    I(f"s_lshl_b32 s{S_T0}, s{S_CB}, 2")
    I(f"s_add_u32 s{S_T0}, s{S_T0}, s{S_T1}")
    I(f"s_mul_i32 s{S_T0}, s{S_T0}, 5")
    I(f"s_lshr_b32 s{S_T3}, s{S_T0}, 1")
    I(f"s_lshl_b32 s{S_T3}, s{S_T3}, 8")
    I(f"s_and_b32 s{S_T2}, s{S_T0}, 1")
    I(f"s_cmp_lg_u32 s{S_T2}, 0")
    I("s_cbranch_scc1 qkv_odd")
    I(f"buffer_store_dwordx4 v[{Q}:{Q+3}], v5, s[{SRD_A2}:{SRD_A2+3}], s{S_T3} offen")
    I(f"buffer_store_dwordx4 v[{Q+4}:{Q+7}], v5, s[{SRD_A2}:{SRD_A2+3}], s{S_T3} offen offset:256")
    I(f"buffer_store_dwordx2 v[{Q+8}:{Q+9}], v5, s[{SRD_A2}:{SRD_A2+3}], s{S_T3} offen offset:512")
    I("s_branch qkv_stored")
    L("qkv_odd")
    I(f"buffer_store_dwordx2 v[{Q}:{Q+1}], v5, s[{SRD_A2}:{SRD_A2+3}], s{S_T3} offen offset:8")
    I(f"buffer_store_dwordx4 v[{Q+2}:{Q+5}], v5, s[{SRD_A2}:{SRD_A2+3}], s{S_T3} offen offset:256")
    I(f"buffer_store_dwordx4 v[{Q+6}:{Q+9}], v5, s[{SRD_A2}:{SRD_A2+3}], s{S_T3} offen offset:512")
    L("qkv_stored")
    rt_flush(0x4000000)
    L("k1_done")
    I("s_endpgm")
    kd(name, 256, 98)


def gen_k2():
    name = "gemm2_kernel"
    kstart(name)
    I("s_cmp_ge_u32 s2, 256")
    I("s_cbranch_scc1 k2_done")
    global RT_ON
    RT_ON = 5
    rt_stamp(0)
    load_kernargs()
    S_RB_, S_CB_, S_M0_, S_N0B, S_W_ = 4, 5, 6, 7, 8
    S_AG_, S_BG_ = 12, 13
    SRD_A, SRD_B, SRD_XX, SRD_O = 40, 44, 48, 52
    T0, T1, T2 = 56, 57, 58
    I(f"s_and_b32 s{T0}, s2, 7")
    I(f"s_lshr_b32 s{T1}, s2, 3")
    I(f"s_lshr_b32 s{S_RB_}, s{T0}, 1")
    I(f"s_lshl_b32 s{S_RB_}, s{S_RB_}, 3")
    I(f"s_lshr_b32 s{T2}, s{T1}, 2")
    I(f"s_add_u32 s{S_RB_}, s{S_RB_}, s{T2}")
    I(f"s_and_b32 s{S_CB_}, s{T0}, 1")
    I(f"s_lshl_b32 s{S_CB_}, s{S_CB_}, 2")
    I(f"s_and_b32 s{T2}, s{T1}, 3")
    I(f"s_add_u32 s{S_CB_}, s{S_CB_}, s{T2}")
    I(f"s_lshl_b32 s{S_M0_}, s{S_RB_}, 6")
    I(f"s_mul_i32 s{S_N0B}, s{S_CB_}, 160")
    I("v_lshrrev_b32 v1, 6, v0")
    I("v_and_b32 v2, 63, v0")
    I(f"v_readfirstlane_b32 s{S_W_}, v1")
    I("v_and_b32 v3, 15, v2")
    I("v_lshrrev_b32 v4, 4, v2")
    DEP = OPT["k2d"]
    NST = 17
    FR = [8 + 36 * i for i in range(DEP)]
    vA = 228
    vB = 232
    XR = 236
    I("v_lshlrev_b32 v5, 4, v2")
    I(f"s_mul_i32 s{T0}, s{S_RB_}, {4*69632}")
    I(f"v_add_u32 v{vA}, s{T0}, v5")
    for rt in range(1, 4):
        I(f"v_add_u32 v{vA+rt}, {69632*rt}, v{vA}")
    I(f"s_mul_i32 s{T0}, s{S_CB_}, {68*5120}")
    I(f"v_add_u32 v{vB}, s{T0}, v5")
    I(f"v_add_u32 v{vB+1}, 4096, v{vB}")
    I(f"s_lshl_b32 s{S_AG_}, s{S_W_}, 10")
    I(f"s_mul_i32 s{S_BG_}, s{S_W_}, 5120")
    I(f"s_lshl_b32 s{T0}, s{S_W_}, 4")
    I(f"s_add_u32 s{T2}, s{T0}, s{S_M0_}")
    for i in range(3):
        I(f"v_add_u32 v5, {64*i}, v2")
        I("v_mul_u32_u24 v6, 205, v5")
        I("v_lshrrev_b32 v6, 11, v6")
        I("v_mul_u32_u24 v7, 10, v6")
        I("v_sub_u32 v7, v5, v7")
        I(f"v_add_u32 v1, s{T2}, v6")
        I("v_mul_u32_u24 v1, 1280, v1")
        I("v_lshl_add_u32 v1, v7, 4, v1")
        I(f"v_add_u32 v{XR+12+i}, s{S_N0B}, v1")
        I(f"v_add_u32 v1, s{T0}, v6")
        I("v_mul_u32_u24 v1, 336, v1")
        I(f"v_lshl_add_u32 v{XR+15+i}, v7, 5, v1")
    I("v_cmp_gt_u32 vcc, 32, v2")
    I("v_mov_b32 v1, 0x7f000000")
    I("s_nop 1")
    I(f"v_cndmask_b32 v{XR+14}, v1, v{XR+14}, vcc")
    I(f"v_cndmask_b32 v{XR+17}, 0, v{XR+17}, vcc")
    I("s_waitcnt lgkmcnt(0)")
    srd(SRD_A, P_WS, P_WS + 1, A2_BYTES)
    srd(SRD_B, P_WS, P_WS + 1, W2_BYTES, add=W2_OFF)
    srd(SRD_XX, P_X, P_X + 1, X_BYTES)
    srd(SRD_O, P_OUT, P_OUT + 1, X_BYTES)

    def loads(fs):
        r_ = []
        for rt in range(4):
            r = FR[fs] + 4 * rt
            r_.append(f"buffer_load_dwordx4 v[{r}:{r+3}], v{vA+rt}, s[{SRD_A}:{SRD_A+3}], s{S_AG_} offen")
        for ct in range(5):
            r = FR[fs] + 16 + 4 * ct
            if ct < 4:
                r_.append(f"buffer_load_dwordx4 v[{r}:{r+3}], v{vB}, s[{SRD_B}:{SRD_B+3}], s{S_BG_} offen offset:{ct*1024}")
            else:
                r_.append(f"buffer_load_dwordx4 v[{r}:{r+3}], v{vB+1}, s[{SRD_B}:{SRD_B+3}], s{S_BG_} offen")
        return r_

    adv = [f"s_add_u32 s{S_AG_}, s{S_AG_}, 4096", f"s_add_u32 s{S_BG_}, s{S_BG_}, 20480"]
    for fs in range(DEP - 1):
        for x in loads(fs) + adv:
            I(x)
    for i in range(3):
        I(f"buffer_load_dwordx4 v[{XR+4*i}:{XR+4*i+3}], v{XR+12+i}, s[{SRD_XX}:{SRD_XX+3}], 0 offen")
    for r in range(80):
        I(f"v_accvgpr_write_b32 a{r}, 0")
    for j in range(NST):
        younger = min(j + DEP - 2, NST - 1) - j
        extra = 3 if j < DEP - 1 else 0
        I(f"s_waitcnt vmcnt({9*younger + extra})")
        if j == 0:
            rt_stamp(1)
        ld = loads((j - 1) % DEP) if j + DEP - 1 < NST else []
        fs = j % DEP
        k = 0
        for ct in range(5):
            for rt in range(4):
                a_ = (rt * 5 + ct) * 4
                w = FR[fs] + 16 + 4 * ct
                x = FR[fs] + 4 * rt
                I(f"v_mfma_f32_16x16x32_bf16 a[{a_}:{a_+3}], v[{w}:{w+3}], v[{x}:{x+3}], a[{a_}:{a_+3}]")
                if k % 2 == 1 and ld:
                    I(ld.pop(0))
                k += 1
        if j + DEP - 1 < NST:
            for x in adv:
                I(x)
    rt_stamp(4)
    PS = 64 * 336
    I(f"s_mul_i32 s{T0}, s{S_W_}, {PS}")
    I("v_mul_u32_u24 v5, 336, v3")
    I("v_lshl_add_u32 v5, v4, 4, v5")
    I(f"v_add_u32 v5, s{T0}, v5")
    I("s_nop 7")
    for rt in range(4):
        for ct in range(5):
            a_ = (rt * 5 + ct) * 4
            I(f"ds_write_b128 v5, a[{a_}:{a_+3}] offset:{rt*16*336 + ct*64}")
    I("s_waitcnt lgkmcnt(0)")
    I("s_barrier")
    rt_stamp(2)
    for i in range(3):
        I(f"v_add_u32 v{5+i}, {2*PS}, v{XR+15+i}")
    for i in range(3):
        for p in range(4):
            r = 8 + (i * 4 + p) * 8
            areg = (XR + 15 + i) if p < 2 else (5 + i)
            I(f"ds_read_b128 v[{r}:{r+3}], v{areg} offset:{(p % 2) * PS}")
            I(f"ds_read_b128 v[{r+4}:{r+7}], v{areg} offset:{(p % 2) * PS + 16}")
    for i in range(3):
        b_ = 8 + i * 32
        xr = XR + 4 * i
        I(f"s_waitcnt lgkmcnt({min(15, 8*(2-i))})")
        for r in range(8):
            I(f"v_add_f32 v{b_+r}, v{b_+r}, v{b_+8+r}")
            I(f"v_add_f32 v{b_+16+r}, v{b_+16+r}, v{b_+24+r}")
        for j in range(4):
            I(f"v_lshlrev_b32 v{b_+8+2*j}, 16, v{xr+j}")
            I(f"v_and_b32 v{b_+9+2*j}, 0xffff0000, v{xr+j}")
        for r in range(8):
            I(f"v_add_f32 v{b_+r}, v{b_+r}, v{b_+16+r}")
        for r in range(8):
            I(f"v_add_f32 v{b_+r}, v{b_+r}, v{b_+8+r}")
        for j in range(4):
            I(f"v_cvt_pk_bf16_f32 v{xr+j}, v{b_+2*j}, v{b_+2*j+1}")
        I(f"buffer_store_dwordx4 v[{xr}:{xr+3}], v{XR+12+i}, s[{SRD_O}:{SRD_O+3}], 0 offen")
    rt_flush(0x4000000)
    L("k2_done")
    I("s_endpgm")
    sg = 102 if OPT["stamp"] else 64
    e('.section .rodata,"a"')
    e(".p2align 6")
    e(f".amdhsa_kernel {name}")
    e("  .amdhsa_next_free_vgpr 336")
    e(f"  .amdhsa_next_free_sgpr {sg}")
    e("  .amdhsa_accum_offset 256")
    e("  .amdhsa_group_segment_fixed_size 0")
    e("  .amdhsa_kernarg_size 80")
    e("  .amdhsa_user_sgpr_count 2")
    e("  .amdhsa_user_sgpr_kernarg_segment_ptr 1")
    e("  .amdhsa_system_sgpr_workgroup_id_x 1")
    e(".end_amdhsa_kernel")
    e(".text")


def header():
    ref = open(f"cdna_kernels/{NAME}.s.ref").read().splitlines()
    for line in ref:
        if line.startswith("; @launch"):
            break
        e(line)
    e(f"; @launch kernel=gemm1_kernel grid=(256,1,1) block=(512,1,1) lds={K1_LDS}")
    e("; @launch kernel=gemm2_kernel grid=(256,1,1) block=(256,1,1) lds=86016")
    e('.amdgcn_target "amdgcn-amd-amdhsa--gfx950"')
    e(".text")


def selfcheck():
    for p_ in range(1024):
        assert (p_ * 1058) >> 18 == p_ // 248
    for p_ in range(248):
        assert (p_ * 2185) >> 16 == p_ // 30
    for p_ in range(768):
        assert (p_ * 2731) >> 16 == p_ // 24
    for p_ in range(680):
        assert (p_ * 6554) >> 16 == p_ // 10
    for t in range(40):
        assert (t * 52) >> 8 == t // 5
    for t in range(30):
        assert (t * 26) >> 8 == t // 10
    for t in range(192):
        assert (t * 205) >> 11 == t // 10


selfcheck()
header()
gen_k1()
gen_k2()
path = f"cdna_kernels/{NAME}.s"
for a in sys.argv[1:]:
    if a.startswith("-o"):
        path = a[2:]
open(path, "w").write("\n".join(out) + "\n")
print("wrote", path, len(out), "lines")
```

```python
import sys

NAME = "parallel_sum__sliding_local_dilated__glu_gated_glu__prompt"

S = 2048
D = 640
F = 1536
X_BYTES = S * D * 2
A2_OFF = 0
A2_BYTES = 128 * 68 * 1024
W2_OFF = A2_OFF + A2_BYTES
W2_BYTES = 8 * 68 * 5 * 1024
RST_OFF = W2_OFF + W2_BYTES
RST_BYTES = S * 16

OPT = dict(stamp=0, stagger=0, early=0, pk=1, krot=1, prio=0, rpm=1, rspread=3, dmapos=0, exact=0, tagwin=600, retry_max=300, k2rot=1, k2lin=0, k2d=4, staged=0)
for a in sys.argv[1:]:
    if "=" in a:
        k, v = a.split("=")
        OPT[k] = int(v)

out = []


def e(s=""):
    out.append(s)


def I(s):
    out.append("    " + s)


def L(s):
    out.append(s + ":")


def srd(dst, lo, hi, nbytes, add=0):
    if add:
        I(f"s_add_u32 s{dst}, s{lo}, {add}")
        I(f"s_addc_u32 s{dst+1}, s{hi}, 0")
        I(f"s_and_b32 s{dst+1}, s{dst+1}, 0xffff")
    else:
        I(f"s_mov_b32 s{dst}, s{lo}")
        I(f"s_and_b32 s{dst+1}, s{hi}, 0xffff")
    I(f"s_mov_b32 s{dst+2}, {nbytes}")
    I(f"s_mov_b32 s{dst+3}, 0x20000")


P_X, P_WQKV, P_WO, P_BX, P_WG, P_WU, P_WD, P_OUT, P_DBG, P_WS = 16, 18, 20, 22, 24, 26, 28, 30, 32, 34

RT = 0


RT_ON = 4
def rt_stamp(idx):
    if OPT["stamp"] == RT_ON:
        I("s_memrealtime s[96:97]")
        I("s_waitcnt lgkmcnt(0)")
        I(f"v_writelane_b32 v254, s96, {idx}")


def ct_stamp(idx):
    if OPT["stamp"] == RT_ON:
        I("s_memtime s[96:97]")
        I("s_waitcnt lgkmcnt(0)")
        I(f"v_writelane_b32 v254, s96, {idx}")


def rt_flush(off):
    if OPT["stamp"] != RT_ON:
        return
    I("s_waitcnt vmcnt(0)")
    rt_stamp(3)
    I("s_getreg_b32 s3, hwreg(HW_REG_XCC_ID)")
    I("v_writelane_b32 v254, s3, 7")
    lab = f"rt_skip_{len(out)}"
    I("v_cmp_gt_u32 vcc, 8, v0")
    I("s_and_saveexec_b64 s[100:101], vcc")
    I(f"s_cbranch_execz {lab}")
    srd(96, P_WS, P_WS + 1, 0x8000000)
    I("s_lshl_b32 s3, s2, 5")
    I(f"s_add_u32 s3, s3, {off}")
    I("v_lshlrev_b32 v1, 2, v0")
    I("buffer_store_dword v254, v1, s[96:99], s3 offen")
    L(lab)


def kd(name, vgpr, sgpr):
    if OPT["stamp"]:
        sgpr = 102
    acc = (vgpr + 3) // 4 * 4
    e('.section .rodata,"a"')
    e(".p2align 6")
    e(f".amdhsa_kernel {name}")
    e(f"  .amdhsa_next_free_vgpr {vgpr}")
    e(f"  .amdhsa_next_free_sgpr {sgpr}")
    e(f"  .amdhsa_accum_offset {acc}")
    e("  .amdhsa_group_segment_fixed_size 0")
    e("  .amdhsa_kernarg_size 80")
    e("  .amdhsa_user_sgpr_count 2")
    e("  .amdhsa_user_sgpr_kernarg_segment_ptr 1")
    e("  .amdhsa_system_sgpr_workgroup_id_x 1")
    e(".end_amdhsa_kernel")
    e(".text")


def kstart(name):
    e(f".globl {name}")
    e(".p2align 8")
    e(f".type {name},@function")
    L(name)


def load_kernargs():
    I("s_load_dwordx16 s[16:31], s[0:1], 0")
    I("s_load_dwordx4 s[32:35], s[0:1], 64")


def bf16_round_pair(a, b, t):
    I(f"v_cvt_pk_bf16_f32 v{t}, v{a}, v{b}")
    I(f"v_lshlrev_b32 v{a}, 16, v{t}")
    I(f"v_and_b32 v{b}, 0xffff0000, v{t}")


S_CB, S_RB, S_TYPE, S_M0, S_W = 4, 5, 6, 7, 8
S_AR, S_ARN, S_BR, S_BW = 9, 10, 11, 12
S_AG, S_BG = 13, 14
S_IT = 15
S_ROT = 36
SRD_X, SRD_A2, SRD_W = 40, 44, 48
S_T0, S_T1, S_T2, S_T3 = 52, 53, 54, 55
S_MA, S_MB, S_MH = 56, 57, 58
S_SLOT = 60
S_SEL_LO, S_SEL_HI, S_SCALE, S_L2E = 70, 71, 72, 73
ST_ROW, ST_COL = 153600, 154880
K1_LDS = 156672
V_ONE = 248
ST_FLAG = 156416
SRD_R = 92
S_TMIN, S_LNROW, S_LNCNT, S_RETRY = 90, 91, 74, 59


class Cfg:
    pass


def k1_mainloop(c, tag):
    a = len(c.a_dma)
    b = len(c.b_dma)

    def dma_list(kind, slot_sreg):
        res = []
        lst = c.a_dma if kind == "A" else c.b_dma
        for (v, sm, off) in lst:
            setup = f"s_add_u32 m0, s{slot_sreg}, s{sm}"
            if kind == "A":
                ins = f"buffer_load_dwordx4 v{v}, s[{SRD_X}:{SRD_X+3}], s{S_AG} offen offset:{off} lds"
            else:
                ins = f"buffer_load_dwordx4 v{v}, s[{SRD_W}:{SRD_W+3}], s{S_BG} offen offset:{off} lds"
            res.append((setup, ins))
        return res

    def emit_dma_now(kind, slot_sreg):
        last = None
        for (setup, ins) in dma_list(kind, slot_sreg):
            if setup != last:
                I(setup)
                I("s_nop 0")
                last = setup
            I(ins)

    adv_a = [f"s_add_u32 s{S_AG}, s{S_AG}, 128", f"s_cmp_eq_u32 s{S_AG}, 1280", f"s_cselect_b32 s{S_AG}, 0, s{S_AG}"]
    adv_b = [f"s_add_u32 s{S_BG}, s{S_BG}, {c.bstage_g}", f"s_cmp_eq_u32 s{S_BG}, {20*c.bstage_g}",
             f"s_cselect_b32 s{S_BG}, 0, s{S_BG}"]

    def ring_next(sreg, size, n, base):
        I(f"s_add_u32 s{sreg}, s{sreg}, {size}")
        I(f"s_cmp_ge_u32 s{sreg}, {base + size * n}")
        I(f"s_cselect_b32 s{sreg}, {base}, s{sreg}")

    def frag_reads(fs, khalf, s_a, s_b):
        pre = []
        for (dyn, st0, st1) in c.xaddr:
            pre.append(f"v_add_u32 v{dyn}, s{s_a}, v{st1 if khalf else st0}")
        for (dyn, st) in c.waddr:
            pre.append(f"v_add_u32 v{dyn}, s{s_b}, v{st}")
        rd = []
        for i, (ai, off) in enumerate(c.xfrag):
            r = c.XF[fs] + 4 * i
            rd.append(f"ds_read_b128 v[{r}:{r+3}], v{c.xaddr[ai][0]} offset:{off}")
        for i, (ai, off) in enumerate(c.wfrag):
            r = c.WF[fs] + 4 * i
            rd.append(f"ds_read_b64_tr_b16 v[{r}:{r+1}], v{c.waddr[ai][0]} offset:{off}")
            rd.append(f"ds_read_b64_tr_b16 v[{r+2}:{r+3}], v{c.waddr[ai][0]} offset:{off + c.wrow4}")
        return pre, rd

    def mfmas(fs):
        res = []
        for (acc, xi, wi) in c.tiles:
            x = c.XF[fs] + 4 * xi
            w = c.WF[fs] + 4 * wi
            res.append(f"v_mfma_f32_16x16x32_bf16 v[{acc}:{acc+3}], v[{w}:{w+3}], v[{x}:{x+3}], v[{acc}:{acc+3}]")
        return res

    if OPT["krot"] == 1:
        I(f"s_lshr_b32 s3, s{S_RB}, 2")
        I("s_mul_i32 s3, s3, 5")
        I("s_lshr_b32 s3, s3, 1")
    elif OPT["krot"] == 2:
        I(f"s_mul_i32 s3, s{S_RB}, 5")
        I("s_lshr_b32 s3, s3, 3")
    else:
        I("s_mov_b32 s3, 0")
    I(f"s_lshl_b32 s{S_AG}, s3, 7")
    I(f"s_mul_i32 s{S_BG}, s3, {2*c.bstage_g}")

    def pro(items):
        for it in items:
            n = int(it[1])
            if it[0] == "A":
                I(f"s_mov_b32 s{S_T3}, {c.abase + n * c.asz}")
                emit_dma_now("A", S_T3)
                for x in adv_a:
                    I(x)
            else:
                I(f"s_mov_b32 s{S_T3}, {c.bbase + n * c.bsz}")
                emit_dma_now("B", S_T3)
                for x in adv_b:
                    I(x)

    pro(["A0", "B0", "A1", "B1"])
    I(f"s_and_b32 s{S_LNROW}, s2, 1")
    I(f"s_lshl_b32 s{S_LNROW}, s{S_LNROW}, 3")
    I("s_lshr_b32 s3, s2, 5")
    I(f"s_add_u32 s{S_LNROW}, s{S_LNROW}, s3")
    I(f"s_lshl_b32 s{S_LNROW}, s{S_LNROW}, 3")
    I(f"s_add_u32 s{S_LNROW}, s{S_LNROW}, s{S_M0}")
    I(f"s_add_u32 s{S_LNROW}, s{S_LNROW}, s{S_W}")
    I("v_mul_u32_u24 v13, 20, v2")
    I(f"s_mul_i32 s3, s{S_LNROW}, 1280")
    I("v_add_u32 v27, s3, v13")
    I(f"buffer_load_dwordx4 v[240:243], v27, s[{SRD_X}:{SRD_X+3}], 0 offen")
    I(f"buffer_load_dword v244, v27, s[{SRD_X}:{SRD_X+3}], 0 offen offset:16")
    srd(SRD_R, P_WS, P_WS + 1, RST_BYTES, add=RST_OFF)
    c.frag_setup()
    for j in range(4):
        I(f"v_mov_b32 v{V_ONE+j}, 0x3f803f80")
    for r in range(c.acc0, c.acc0 + c.nacc):
        I(f"v_mov_b32 v{r}, 0")
    for r in c.stat_regs:
        I(f"v_mov_b32 v{r}, 0")
    if not OPT["early"]:
        pro(["B2", "A2", "B3"])
    I(f"s_mov_b32 s{S_AR}, {c.abase}")
    I(f"s_mov_b32 s{S_ARN}, {c.abase + c.asz}")
    I(f"s_mov_b32 s{S_BW}, {c.bbase}")
    I(f"s_mov_b32 s{S_BR}, {c.bbase + c.bsz}")
    I(f"s_mov_b32 s{S_IT}, 0")
    I(f"s_cmp_lt_u32 s{S_W}, 4")
    I("s_cselect_b64 vcc, -1, 0")
    if OPT["prio"]:
        lab = f"{tag}_prio"
        I(f"s_cmp_lt_u32 s{S_W}, 4")
        I(f"s_cbranch_scc{1 if OPT['prio'] == 1 else 0} {lab}")
        I("s_setprio 1")
        L(lab)
    I(f"s_waitcnt vmcnt({2 if OPT['early'] else 3*b + 2*a + 2})")
    I("s_barrier")
    rt_stamp(1)
    ct_stamp(4)
    pre, rd = frag_reads(0, 0, S_AR, S_BW)
    for x in pre + rd:
        I(x)
    I("s_waitcnt lgkmcnt(0)")

    def late_setup():
        B = c.XF[1] + 4
        I("s_memrealtime s[96:97]")
        for i in range(5):
            I(f"v_mov_b32 v{B+i}, v{240+i}")
        one_row_stats(B)
        I(f"s_lshl_b32 s3, s{S_LNROW}, 4")
        I(f"v_mov_b32 v{B+18}, v{B+17}")
        I(f"v_mov_b32 v{B+20}, s3")
        I("s_waitcnt lgkmcnt(0)")
        I(f"v_mov_b32 v{B+17}, s96")
        I(f"v_mov_b32 v{B+19}, s96")
        I("s_mov_b64 exec, 1")
        I(f"buffer_store_dwordx4 v[{B+16}:{B+19}], v{B+20}, s[{SRD_R}:{SRD_R+3}], 0 offen sc1")
        I("s_mov_b64 exec, -1")
        I(f"v_mov_b32 v{B}, {ST_FLAG}")
        I(f"v_mov_b32 v{B+1}, 0")
        I(f"ds_write_b32 v{B}, v{B+1}")
        I("s_waitcnt lgkmcnt(0)")
        c.late()

    def step(half, wait, with_dma, with_reads, fixed_t=None):
        if OPT["stamp"] == 3:
            I("s_memtime s[96:97]")
        if wait is not None:
            I(f"s_waitcnt vmcnt({wait})")
        if OPT["stamp"] == 3:
            I("s_memtime s[98:99]")
        I("s_barrier")
        if OPT["stamp"] == 3:
            I("s_memtime s[100:101]")
        if fixed_t == 17:
            I(f"s_sub_u32 s3, s{S_M0}, 16")
            I("v_add_u32 v245, s3, v0")
            I("v_lshlrev_b32 v244, 4, v245")
            I(f"buffer_load_dwordx4 v[240:243], v244, s[{SRD_R}:{SRD_R+3}], 0 offen sc1")
        if fixed_t == 18:
            I(f"v_subrev_u32 v241, s{S_TMIN}, v241")
            I(f"v_subrev_u32 v243, s{S_TMIN}, v243")
            I("v_or_b32 v241, v241, v243")
            I("v_lshrrev_b32 v241, 16, v241")
            I(f"s_mov_b32 s3, {S}")
            I("v_cmp_gt_u32_e64 s[76:77], s3, v245")
            I("v_mov_b32 v243, v242")
            I("v_mov_b32 v242, v240")
            I("v_cndmask_b32_e64 v241, 0, v241, s[76:77]")
            I("v_lshlrev_b32 v244, 3, v0")
            I(f"v_add_u32 v244, {ST_ROW}, v244")
            I("s_movk_i32 s3, 144")
            I("v_cmp_gt_u32_e64 s[76:77], s3, v0")
            I("s_and_saveexec_b64 s[78:79], s[76:77]")
            I("ds_write_b64 v244, v[242:243]")
            I("v_cmp_ne_u32_e64 s[76:77], 0, v241")
            I("s_and_b64 exec, exec, s[76:77]")
            I(f"v_mov_b32 v244, {ST_FLAG}")
            I("v_mov_b32 v245, 1")
            I("ds_write_b32 v244, v245")
            I("s_mov_b64 exec, s[78:79]")
        pre, rd = [], []
        if with_reads:
            if half == 0:
                pre, rd = frag_reads(1, 1, S_AR, S_BR)
            else:
                pre, rd = frag_reads(0, 0, S_ARN, S_BR)
        for x in pre:
            I(x)
        dm = []
        if with_dma:
            if half == 1:
                dl = dma_list("A", S_AR)
                dm += [(s_, i_, adv_a if k == len(dl) - 1 else [], True) for k, (s_, i_) in enumerate(dl)]
            dl = dma_list("B", S_BW)
            dm += [(s_, i_, adv_b if k == len(dl) - 1 else [], False) for k, (s_, i_) in enumerate(dl)]
        mf = mfmas(half)
        nm = len(mf)
        nd = len(dm)
        slots = []
        if dm:
            if OPT["stagger"]:
                pos_e = [int((k + 0.5) * (nm // 2) / nd) for k in range(nd)]
                pos_l = [nm // 2 + int((k + 0.5) * (nm - nm // 2 - 1) / nd) for k in range(nd)]
                slots = [(p_, k, "e") for k, p_ in enumerate(pos_e)] + [(p_, k, "l") for k, p_ in enumerate(pos_l)]
            elif OPT["dmapos"] == 1:
                h0 = (2 * nm) // 3
                slots = [(h0 + int((k + 0.5) * (nm - h0) / nd), k, "a") for k in range(nd)]
            elif OPT["dmapos"] == 2:
                slots = [(k, k, "a") for k in range(nd)]
            else:
                slots = [(int((k + 0.5) * nm / nd), k, "a") for k in range(nd)]
        stat = c.stats(half)
        rdi = 0
        for i, m in enumerate(mf):
            I(m)
            if OPT["early"] and with_dma and half == 0 and i == 0:
                lab = f"{tag}_ea_{len(out)}"
                I(f"s_cmp_lg_u32 s{S_IT}, 0")
                I(f"s_cbranch_scc1 {lab}")
                pro(["B2", "A2", "B3"])
                L(lab)
            for (p_, k, kind) in slots:
                if p_ != i:
                    continue
                lab = f"{tag}_sk_{len(out)}"
                if kind == "e":
                    I(f"s_cbranch_vccz {lab}")
                elif kind == "l":
                    I(f"s_cbranch_vccnz {lab}")
                if dm[k][3]:
                    I(f"s_cmp_ge_u32 s{S_IT}, 7")
                    I(f"s_cbranch_scc1 {lab}")
                I(dm[k][0])
                I("s_nop 0")
                I(dm[k][1])
                for x in dm[k][2]:
                    I(x)
                L(lab)
            if OPT["rspread"]:
                while rdi < len(rd) and int(rdi * (nm - OPT["rspread"]) / len(rd)) <= i:
                    I(rd[rdi])
                    rdi += 1
            else:
                for _ in range(OPT["rpm"]):
                    if rdi < len(rd):
                        I(rd[rdi])
                        rdi += 1
            for x in stat.get(i, []):
                if x.endswith(":"):
                    e(x)
                else:
                    I(x)
        for x in rd[rdi:]:
            I(x)
        if with_reads:
            I(f"s_mov_b32 s{S_BW}, s{S_BR}")
            ring_next(S_BR, c.bsz, 4, c.bbase)
            if half == 1:
                I(f"s_mov_b32 s{S_AR}, s{S_ARN}")
                ring_next(S_ARN, c.asz, 3, c.abase)
            I("s_waitcnt lgkmcnt(0)")
        if OPT["stamp"] == 3:
            I("s_waitcnt lgkmcnt(0)")
            if fixed_t is None:
                I(f"s_lshl_b32 s3, s{S_IT}, 1")
                I(f"s_add_u32 m0, s3, {half}")
            else:
                I(f"s_mov_b32 m0, {fixed_t}")
            I("s_nop 0")
            I("v_writelane_b32 v253, s96, m0")
            I("v_writelane_b32 v254, s98, m0")
            I("v_writelane_b32 v255, s100, m0")

    L(f"{tag}_loop")
    step(0, 2 * b + a, True, True)
    step(1, 2 * b + a, True, True)
    I(f"s_cmp_lg_u32 s{S_IT}, 0")
    I(f"s_cbranch_scc1 {tag}_nolate")
    late_setup()
    L(f"{tag}_nolate")
    if c.mid:
        I(f"s_cmp_lg_u32 s{S_IT}, 3")
        I(f"s_cbranch_scc1 {tag}_nomid")
        c.mid()
        L(f"{tag}_nomid")
    I(f"s_add_u32 s{S_IT}, s{S_IT}, 1")
    I(f"s_cmp_lt_u32 s{S_IT}, 8")
    I(f"s_cbranch_scc1 {tag}_loop")
    step(0, 2 * b, False, True, 16)
    step(1, b, False, True, 17)
    step(0, 0, False, True, 18)
    step(1, None, False, False, 19)
    if OPT["stamp"] == 3:
        lab = f"st3_{len(out)}"
        I(f"s_cmp_lg_u32 s2, {OPT.get('wg', 0)}")
        I(f"s_cbranch_scc1 {lab}")
        I(f"s_cmp_lg_u32 s{S_W}, {OPT.get('wave', 0)}")
        I(f"s_cbranch_scc1 {lab}")
        srd(96, P_DBG, P_DBG + 1, 256)
        I("v_lshlrev_b32 v1, 2, v2")
        I("v_cmp_gt_u32 vcc, 20, v2")
        I("s_and_saveexec_b64 s[100:101], vcc")
        I("buffer_store_dword v253, v1, s[96:99], 0 offen")
        I("buffer_store_dword v254, v1, s[96:99], 0 offen offset:80")
        I("buffer_store_dword v255, v1, s[96:99], 0 offen offset:160")
        I("s_mov_b64 exec, s[100:101]")
        L(lab)
    rt_stamp(2)
    ct_stamp(5)
    I("s_waitcnt vmcnt(0)")
    I("s_barrier")


def row_dots(xreg, s1, s2):
    r = []
    for j in range(4):
        r.append(f"v_dot2_f32_bf16 v{s1}, v{xreg+j}, v{V_ONE}, v{s1}")
        r.append(f"v_dot2_f32_bf16 v{s2}, v{xreg+j}, v{xreg+j}, v{s2}")
    return r


def col_dots(wreg, cs):
    return [f"v_dot2_f32_bf16 v{cs}, v{wreg+j}, v{V_ONE}, v{cs}" for j in range(4)]


def reduce_groups(regs, t):
    I("s_nop 3")
    for op in ("v_permlane16_swap_b32", "v_permlane32_swap_b32"):
        for r in regs:
            I(f"v_mov_b32 v{t}, v{r}")
            I("s_nop 1")
            I(f"{op} v{r}, v{t}")
            I("s_nop 1")
            I(f"v_add_f32 v{r}, v{r}, v{t}")


def wave_allreduce(v, sbase):
    for ctrl in ("quad_perm:[1,0,3,2]", "quad_perm:[2,3,0,1]", "row_half_mirror", "row_mirror"):
        I("s_nop 1")
        I(f"v_add_f32_dpp v{v}, v{v}, v{v} {ctrl} row_mask:0xf bank_mask:0xf")
    I("s_nop 1")
    for i in range(4):
        I(f"v_readlane_b32 s{sbase+i}, v{v}, {16*i}")
    I("s_nop 1")
    I(f"v_mov_b32 v{v}, s{sbase}")
    I(f"v_add_f32 v{v}, s{sbase+1}, v{v}")
    I(f"v_add_f32 v{v}, s{sbase+2}, v{v}")
    I(f"v_add_f32 v{v}, s{sbase+3}, v{v}")


def one_row_stats(B=8):
    U, M, R, T = B + 6, B + 16, B + 17, B + 18
    for i in range(5):
        I(f"v_lshlrev_b32 v{U+2*i}, 16, v{B+i}")
        I(f"v_and_b32 v{U+1+2*i}, 0xffff0000, v{B+i}")
    I(f"v_add_f32 v{M}, v{U}, v{U+1}")
    for i in range(2, 10):
        I(f"v_add_f32 v{M}, v{M}, v{U+i}")
    wave_allreduce(M, 75)
    I(f"v_mul_f32 v{M}, 0x3acccccd, v{M}")
    I(f"v_sub_f32 v{T}, v{U}, v{M}")
    I(f"v_mul_f32 v{R}, v{T}, v{T}")
    for i in range(1, 10):
        I(f"v_sub_f32 v{T}, v{U+i}, v{M}")
        I(f"v_fmac_f32 v{R}, v{T}, v{T}")
    wave_allreduce(R, 75)
    I(f"v_mul_f32 v{R}, 0x3acccccd, v{R}")
    I(f"v_cvt_pk_bf16_f32 v{T}, v{M}, v{R}")
    I(f"v_lshlrev_b32 v{M}, 16, v{T}")
    I(f"v_and_b32 v{R}, 0xffff0000, v{T}")
    I(f"v_add_f32 v{R}, 0x3727c5ac, v{R}")
    I(f"v_cvt_pk_bf16_f32 v{R}, v{R}, v{R}")
    I(f"v_lshlrev_b32 v{R}, 16, v{R}")
    I(f"v_sqrt_f32 v{R}, v{R}")
    I("s_nop 0")
    I(f"v_cvt_pk_bf16_f32 v{R}, v{R}, v{R}")
    I(f"v_lshlrev_b32 v{R}, 16, v{R}")
    I(f"v_rcp_f32 v{R}, v{R}")
    I("s_nop 0")


def gather_row_stats(tag):
    I(f"s_mov_b32 s{S_RETRY}, 0")
    I(f"s_sub_u32 s3, s{S_M0}, 16")
    I("v_add_u32 v5, s3, v0")
    I("v_lshlrev_b32 v6, 4, v5")
    I("v_lshlrev_b32 v7, 3, v0")
    I(f"v_add_u32 v7, {ST_ROW}, v7")
    I(f"v_mov_b32 v13, {ST_FLAG}")
    I(f"s_branch {tag}_g_check")
    L(f"{tag}_g_retry")
    I(f"buffer_load_dwordx4 v[8:11], v6, s[{SRD_R}:{SRD_R+3}], 0 offen sc1")
    I("v_mov_b32 v14, 0")
    I("ds_write_b32 v13, v14")
    I("s_waitcnt vmcnt(0) lgkmcnt(0)")
    I("s_barrier")
    I(f"v_subrev_u32 v9, s{S_TMIN}, v9")
    I(f"v_subrev_u32 v11, s{S_TMIN}, v11")
    I("v_or_b32 v9, v9, v11")
    I("v_lshrrev_b32 v9, 16, v9")
    I("v_cmp_gt_u32 vcc, 144, v0")
    I("s_nop 1")
    I("v_cndmask_b32 v9, 0, v9, vcc")
    I(f"v_cmp_gt_u32 vcc, {S}, v5")
    I("s_nop 1")
    I("v_cndmask_b32 v9, 0, v9, vcc")
    I("v_mov_b32 v11, v10")
    I("v_mov_b32 v10, v8")
    I("v_cmp_gt_u32 vcc, 144, v0")
    I("s_and_saveexec_b64 s[76:77], vcc")
    I("ds_write_b64 v7, v[10:11]")
    I("s_mov_b64 exec, s[76:77]")
    I("v_cmp_ne_u32 vcc, 0, v9")
    I("s_and_saveexec_b64 s[76:77], vcc")
    I("v_mov_b32 v14, 1")
    I("ds_write_b32 v13, v14")
    I("s_mov_b64 exec, s[76:77]")
    L(f"{tag}_g_check")
    I("s_waitcnt lgkmcnt(0)")
    I("s_barrier")
    I("ds_read_b32 v14, v13")
    I("s_waitcnt lgkmcnt(0)")
    I("v_readfirstlane_b32 s3, v14")
    I("s_nop 3")
    I("s_cmp_eq_u32 s3, 0")
    I(f"s_cbranch_scc1 {tag}_g_done")
    I("s_barrier")
    I(f"s_add_u32 s{S_RETRY}, s{S_RETRY}, 1")
    I(f"s_cmp_lt_u32 s{S_RETRY}, {OPT['retry_max']}")
    I(f"s_cbranch_scc1 {tag}_g_retry")
    I(f"s_mov_b32 s{S_LNROW}, s{S_W}")
    I("v_mul_u32_u24 v13, 20, v2")
    L(f"{tag}_g_fb")
    I(f"s_add_u32 s3, s{S_LNROW}, s{S_M0}")
    I("s_sub_u32 s3, s3, 16")
    I("s_mul_i32 s3, s3, 1280")
    I("v_add_u32 v27, s3, v13")
    I(f"buffer_load_dwordx4 v[8:11], v27, s[{SRD_X}:{SRD_X+3}], 0 offen")
    I(f"buffer_load_dword v12, v27, s[{SRD_X}:{SRD_X+3}], 0 offen offset:16")
    I("s_waitcnt vmcnt(0)")
    one_row_stats()
    I(f"s_lshl_b32 s3, s{S_LNROW}, 3")
    I(f"s_add_u32 s3, s3, {ST_ROW}")
    I("v_mov_b32 v26, s3")
    I("ds_write_b64 v26, v[24:25]")
    I(f"s_add_u32 s{S_LNROW}, s{S_LNROW}, 8")
    I(f"s_cmp_lt_u32 s{S_LNROW}, 144")
    I(f"s_cbranch_scc1 {tag}_g_fb")
    I("s_waitcnt lgkmcnt(0)")
    I("s_barrier")
    L(f"{tag}_g_done")


def finish_row_stats(p, mu, rs, t):
    I(f"v_mul_f32 v{mu}, 0x3acccccd, v{p}")
    I(f"v_mul_f32 v{rs}, 0x3acccccd, v{p+1}")
    I(f"v_fma_f32 v{rs}, -v{mu}, v{mu}, v{rs}")
    I(f"v_max_f32 v{rs}, 0, v{rs}")
    I(f"v_cvt_pk_bf16_f32 v{t}, v{mu}, v{rs}")
    I(f"v_lshlrev_b32 v{mu}, 16, v{t}")
    I(f"v_and_b32 v{rs}, 0xffff0000, v{t}")
    I(f"v_add_f32 v{rs}, 0x3727c5ac, v{rs}")
    I(f"v_cvt_pk_bf16_f32 v{rs}, v{rs}, v{rs}")
    I(f"v_lshlrev_b32 v{rs}, 16, v{rs}")
    I(f"v_sqrt_f32 v{rs}, v{rs}")
    I("s_nop 0")
    I(f"v_cvt_pk_bf16_f32 v{rs}, v{rs}, v{rs}")
    I(f"v_lshlrev_b32 v{rs}, 16, v{rs}")
    I(f"v_rcp_f32 v{rs}, v{rs}")
    I("s_nop 0")


def gen_k1():
    name = "gemm1_kernel"
    kstart(name)
    I("s_cmp_ge_u32 s2, 256")
    I("s_cbranch_scc1 k1_done")
    rt_stamp(0)
    load_kernargs()
    I("s_memrealtime s[90:91]")
    I(f"s_and_b32 s{S_T0}, s2, 7")
    I(f"s_lshr_b32 s{S_T1}, s2, 3")
    I(f"s_lshr_b32 s{S_RB}, s{S_T0}, 1")
    I(f"s_lshl_b32 s{S_RB}, s{S_RB}, 2")
    I(f"s_and_b32 s{S_T2}, s{S_T1}, 3")
    I(f"s_add_u32 s{S_RB}, s{S_RB}, s{S_T2}")
    I(f"s_lshr_b32 s{S_T1}, s{S_T1}, 2")
    I(f"s_and_b32 s{S_TYPE}, s{S_T1}, 1")
    I(f"s_lshr_b32 s{S_T1}, s{S_T1}, 1")
    I(f"s_and_b32 s{S_CB}, s{S_T0}, 1")
    I(f"s_lshl_b32 s{S_CB}, s{S_CB}, 2")
    I(f"s_add_u32 s{S_CB}, s{S_CB}, s{S_T1}")
    I(f"s_lshl_b32 s{S_M0}, s{S_RB}, 7")
    I("v_lshrrev_b32 v1, 6, v0")
    I("v_and_b32 v2, 63, v0")
    I(f"v_readfirstlane_b32 s{S_W}, v1")
    I("v_and_b32 v3, 15, v2")
    I("v_lshrrev_b32 v4, 4, v2")
    I(f"s_cmp_eq_u32 s{S_TYPE}, 0")
    I("s_cbranch_scc1 k1_qkv")

    def build_srds():
        I("s_waitcnt lgkmcnt(0)")
        I(f"s_sub_u32 s{S_TMIN}, s{S_TMIN}, {OPT['tagwin']}")
        srd(SRD_X, P_X, P_X + 1, X_BYTES)
        srd(SRD_A2, P_WS, P_WS + 1, A2_BYTES + W2_BYTES)

    def a_dma_main(vAd):
        I(f"s_lshl_b32 s{S_T0}, s{S_W}, 4")
        I(f"s_add_u32 s{S_T0}, s{S_T0}, s{S_M0}")
        I("v_lshrrev_b32 v1, 3, v2")
        I(f"v_add_u32 v5, s{S_T0}, v1")
        I("v_mul_u32_u24 v5, 1280, v5")
        I("v_and_b32 v6, 7, v2")
        I("v_xor_b32 v7, v6, v4")
        I(f"v_lshl_add_u32 v{vAd}, v7, 4, v5")
        I("v_or_b32 v7, 4, v4")
        I("v_xor_b32 v7, v6, v7")
        I(f"v_lshl_add_u32 v{vAd+1}, v7, 4, v5")
        I(f"v_add_u32 v{vAd+1}, {8*1280 - 1024}, v{vAd+1}")

    def x_base(vX0, vX1):
        I("v_lshrrev_b32 v6, 1, v3")
        I("v_xor_b32 v6, v6, v4")
        I("v_lshlrev_b32 v6, 4, v6")
        I(f"v_lshl_add_u32 v{vX0}, v3, 7, v6")
        I(f"v_xor_b32 v{vX1}, 64, v{vX0}")

    c = Cfg()
    c.asz, c.bsz, c.abase, c.bbase = 16384, 24576, 0, 49152
    c.bstage_g = 32 * F * 2
    c.wrow4 = 4 * 24 * 16
    c.acc0, c.nacc = 128, 96
    c.XF = [8, 48]
    c.WF = [24, 64]
    c.vX0, c.vX1 = 88, 89
    vW, vXa, vWa, vAd, vBd = 90, 93, 97, 100, 102
    vC = 224
    c.stat_regs = list(range(vC, vC + 12))
    a_dma_main(vAd)
    I(f"s_lshl_b32 s{S_MA}, s{S_W}, 11")
    c.a_dma = [(vAd, S_MA, 0), (vAd + 1, S_MA, 1024)]
    I(f"s_and_b32 s{S_T0}, s{S_W}, 3")
    I(f"s_mul_i32 s{S_T1}, s{S_T0}, 192")
    I(f"s_mul_i32 s{S_T2}, s{S_CB}, 384")
    for ii in range(3):
        I(f"v_add_u32 v5, s{S_T1}, v2")
        if ii:
            I(f"v_add_u32 v5, {64*ii}, v5")
        I("v_mul_u32_u24 v6, 2731, v5")
        I("v_lshrrev_b32 v6, 16, v6")
        I("v_mul_u32_u24 v7, 24, v6")
        I("v_sub_u32 v7, v5, v7")
        I("v_and_b32 v1, 2, v6")
        I("v_lshrrev_b32 v5, 1, v6")
        I("v_and_b32 v5, 4, v5")
        I("v_or_b32 v1, v1, v5")
        I("v_xor_b32 v7, v7, v1")
        I("v_mul_u32_u24 v6, 3072, v6")
        I("v_lshl_add_u32 v6, v7, 4, v6")
        I(f"v_add_u32 v{vBd+ii}, s{S_T2}, v6")
        if ii:
            I(f"v_subrev_u32 v{vBd+ii}, {1024*ii}, v{vBd+ii}")
    I(f"s_lshr_b32 s{S_T1}, s{S_W}, 2")
    I(f"s_mul_i32 s{S_MB}, s{S_T1}, 12288")
    I(f"s_mul_i32 s{S_T1}, s{S_T0}, 3072")
    I(f"s_add_u32 s{S_MB}, s{S_MB}, s{S_T1}")
    c.b_dma = [(vBd + ii, S_MB, 1024 * ii) for ii in range(3)]
    build_srds()
    I(f"s_cmp_lt_u32 s{S_W}, 4")
    I(f"s_cselect_b32 s{SRD_W}, s{P_WG}, s{P_WU}")
    I(f"s_cselect_b32 s{SRD_W+1}, s{P_WG+1}, s{P_WU+1}")
    I(f"s_and_b32 s{SRD_W+1}, s{SRD_W+1}, 0xffff")
    I(f"s_mov_b32 s{SRD_W+2}, {D*F*2}")
    I(f"s_mov_b32 s{SRD_W+3}, 0x20000")

    def glu_after():
        x_base(c.vX0, c.vX1)
        I(f"s_lshr_b32 s{S_T1}, s{S_W}, 2")
        I(f"s_lshl_b32 s{S_T1}, s{S_T1}, 13")
        I(f"v_add_u32 v{c.vX0}, s{S_T1}, v{c.vX0}")
        I(f"v_add_u32 v{c.vX1}, s{S_T1}, v{c.vX1}")
        for i in range(4):
            I(f"s_add_u32 s{S_ROT+i}, s{S_T1}, {2048*i}")
        I("v_lshrrev_b32 v5, 2, v3")
        I("v_and_b32 v6, 3, v2")
        I("v_lshl_add_u32 v7, v4, 3, v5")
        I("v_mul_u32_u24 v7, 384, v7")
        I("v_and_b32 v1, 1, v6")
        I("v_lshl_add_u32 v7, v1, 3, v7")
        I("v_and_b32 v5, 2, v5")
        I("v_and_b32 v1, 1, v4")
        I("v_lshl_or_b32 v5, v1, 2, v5")
        I("v_lshrrev_b32 v6, 1, v6")
        I(f"s_mul_i32 s{S_T1}, s{S_T0}, 6")
        I(f"v_add_u32 v6, s{S_T1}, v6")
        for ct in range(3):
            I(f"v_add_u32 v1, {2*ct}, v6")
            I("v_xor_b32 v1, v1, v5")
            I(f"v_lshl_add_u32 v{vW+ct}, v1, 4, v7")
        return 0

    c.frag_setup = glu_after
    c.late = lambda: None
    c.mid = None
    c.xaddr = [(vXa, c.vX0, c.vX1)]
    c.xfrag = [(0, 2048 * i) for i in range(4)]
    c.waddr = [(vWa + ct, vW + ct) for ct in range(3)]
    c.wfrag = [(ct, 0) for ct in range(3)] + [(ct, 12288) for ct in range(3)]
    c.tiles = [(c.acc0 + (rt * 6 + ct) * 4, rt, ct) for rt in range(4) for ct in range(6)]

    def ones_mfma(acc, w):
        return f"v_mfma_f32_16x16x32_bf16 v[{acc}:{acc+3}], v[{w}:{w+3}], v[{V_ONE}:{V_ONE+3}], v[{acc}:{acc+3}]"

    def glu_stats(fs):
        la, lj = f"glu_cb_{len(out)}_{fs}", f"glu_cj_{len(out)}_{fs}"
        blk = [f"s_cbranch_vccz {la}"]
        blk += [ones_mfma(vC + 4 * ct, c.WF[fs] + 4 * ct) for ct in range(3)]
        blk += [f"s_branch {lj}", f"{la}:"]
        blk += [ones_mfma(vC + 4 * ct, c.WF[fs] + 12 + 4 * ct) for ct in range(3)]
        blk += [f"{lj}:"]
        return {23: blk}

    c.stats = glu_stats
    k1_mainloop(c, "glu")
    I(f"s_lshr_b32 s{S_T1}, s{S_W}, 2")
    I(f"s_mul_i32 s{S_T1}, s{S_T1}, 768")
    I(f"s_mul_i32 s{S_T2}, s{S_T0}, 192")
    I(f"s_add_u32 s{S_T2}, s{S_T2}, {ST_COL}")
    I("v_lshlrev_b32 v6, 4, v4")
    I(f"v_add_u32 v6, s{S_T2}, v6")
    I(f"v_add_u32 v7, s{S_T1}, v6")
    I("s_nop 4")
    I("s_mov_b32 exec_lo, 0x00010001")
    I("s_mov_b32 exec_hi, 0x00010001")
    for ct in range(3):
        I(f"ds_write_b128 v7, v[{vC+4*ct}:{vC+4*ct+3}] offset:{64*ct}")
    I("s_mov_b64 exec, -1")
    I("v_mov_b32 v30, v6")
    gather_row_stats("glu")
    I("v_mov_b32 v6, v30")
    I("v_lshlrev_b32 v5, 3, v3")
    I(f"v_add_u32 v5, {ST_ROW + 128}, v5")
    for i in range(4):
        I(f"s_lshr_b32 s{S_T1}, s{S_ROT+i}, 4")
        I(f"v_add_u32 v7, s{S_T1}, v5")
        I(f"ds_read_b64 v[{8+2*i}:{9+2*i}], v7")
    for ct in range(3):
        I(f"ds_read_b128 v[{32+4*ct}:{35+4*ct}], v6 offset:{64*ct}")
        I(f"ds_read_b128 v[{44+4*ct}:{47+4*ct}], v6 offset:{768 + 64*ct}")
    I(f"s_mov_b32 s{S_L2E}, 0xbfb8aa3b")
    I("s_waitcnt lgkmcnt(0)")
    for i in range(4):
        I(f"v_xor_b32 v{56+4*i}, 0x80000000, v{8+2*i}")
        I(f"v_mov_b32 v{57+4*i}, v{9+2*i}")
        I(f"v_mul_f32 v{58+4*i}, s{S_L2E}, v{9+2*i}")
    I("v_mov_b32 v72, 1.0")
    I("v_mov_b32 v73, 1.0")
    I(f"s_mul_i32 s{S_T1}, s{S_RB}, {8*69632}")
    I(f"s_mul_i32 s{S_T2}, s{S_CB}, 12")
    I(f"s_mul_i32 s{S_T3}, s{S_T0}, 3")
    I(f"s_add_u32 s{S_T2}, s{S_T2}, s{S_T3}")
    I(f"s_add_u32 s{S_T2}, s{S_T2}, 40")
    I(f"s_lshl_b32 s{S_T2}, s{S_T2}, 9")
    I(f"s_add_u32 s{S_T1}, s{S_T1}, s{S_T2}")
    I("v_lshrrev_b32 v5, 1, v4")
    I("v_lshlrev_b32 v5, 8, v5")
    I("v_lshl_add_u32 v5, v3, 4, v5")
    I("v_and_b32 v6, 1, v4")
    I("v_lshl_add_u32 v5, v6, 3, v5")
    I(f"v_add_u32 v5, s{S_T1}, v5")
    for rt in range(4):
        I(f"s_mul_i32 s{S_T2}, s{S_ROT+rt}, 34")
        for ct in range(3):
            g = c.acc0 + (rt * 6 + ct) * 4
            u = c.acc0 + (rt * 6 + 3 + ct) * 4
            K = 56 + 4 * rt
            for h_ in range(2):
                gg, uu = g + 2 * h_, u + 2 * h_
                cg_, cu_ = 32 + 4 * ct + 2 * h_, 44 + 4 * ct + 2 * h_
                I(f"v_pk_fma_f32 v[{gg}:{gg+1}], v[{cg_}:{cg_+1}], v[{K}:{K+1}], v[{gg}:{gg+1}] op_sel_hi:[1,0,1]")
                I(f"v_pk_fma_f32 v[{uu}:{uu+1}], v[{cu_}:{cu_+1}], v[{K}:{K+1}], v[{uu}:{uu+1}] op_sel_hi:[1,0,1]")
            for h_ in range(2):
                gg, uu = g + 2 * h_, u + 2 * h_
                I(f"v_pk_mul_f32 v[{gg}:{gg+1}], v[{gg}:{gg+1}], v[{K+2}:{K+3}] op_sel_hi:[1,0]")
                I(f"v_pk_mul_f32 v[{uu}:{uu+1}], v[{uu}:{uu+1}], v[{K}:{K+1}] op_sel:[0,1] op_sel_hi:[1,1]")
            for r in range(4):
                I(f"v_exp_f32 v{g+r}, v{g+r}")
            I("s_nop 0")
            for h_ in range(2):
                gg = g + 2 * h_
                I(f"v_pk_add_f32 v[{gg}:{gg+1}], v[{gg}:{gg+1}], v[72:73]")
            for r in range(4):
                I(f"v_rcp_f32 v{g+r}, v{g+r}")
            I("s_nop 0")
            for h_ in range(2):
                gg, uu = g + 2 * h_, u + 2 * h_
                I(f"v_pk_mul_f32 v[{gg}:{gg+1}], v[{gg}:{gg+1}], v[{uu}:{uu+1}]")
            I(f"v_cvt_pk_bf16_f32 v{u}, v{g}, v{g+1}")
            I(f"v_cvt_pk_bf16_f32 v{u+1}, v{g+2}, v{g+3}")
            I(f"buffer_store_dwordx2 v[{u}:{u+1}], v5, s[{SRD_A2}:{SRD_A2+3}], s{S_T2} offen offset:{ct*512}")
    rt_flush(0x4000000)
    I("s_endpgm")

    L("k1_qkv")
    c = Cfg()
    c.asz, c.bsz, c.abase, c.bbase = 18432, 16384, 0, 55296
    c.bstage_g = 32 * 3 * D * 2
    c.wrow4 = 4 * 30 * 16
    c.acc0, c.nacc = 128, 72
    c.XF = [8, 44]
    c.WF = [28, 64]
    c.vX0, c.vX1 = 112, 113
    vXm0, vXm1 = 110, 111
    vW, vXa, vWa, vAd, vBd = 114, 117, 120, 123, 126
    vC = 224
    c.stat_regs = list(range(vC, vC + 8))
    extra_t = {0: (5, 0), 2: (6, 1), 4: (7, 2), 6: (3, 4), 1: (8, 9), 3: (10, 11), 5: (12, 13), 7: (14, 14)}
    a_dma_main(vAd)
    I(f"s_and_b32 s{S_T1}, s{S_W}, 1")
    I(f"s_lshl_b32 s{S_T2}, s{S_T1}, 3")
    I(f"s_add_u32 s{S_T2}, s{S_T2}, s{S_M0}")
    I(f"s_sub_u32 s{S_T2}, s{S_T2}, 16")
    I(f"v_add_u32 v5, s{S_T2}, v1")
    I(f"s_mov_b32 s{S_T2}, 1280")
    I(f"v_mul_lo_u32 v5, v5, s{S_T2}")
    I(f"s_lshl_b32 s{S_T2}, s{S_T1}, 2")
    I(f"v_or_b32 v7, s{S_T2}, v4")
    I("v_xor_b32 v7, v6, v7")
    I(f"v_lshl_add_u32 v{vAd+2}, v7, 4, v5")
    I(f"s_lshl_b32 s{S_MA}, s{S_W}, 11")
    I(f"s_add_u32 s{S_MA}, s{S_MA}, 2048")
    I(f"s_lshl_b32 s{S_MH}, s{S_T1}, 10")
    c.a_dma = [(vAd, S_MA, 0), (vAd + 1, S_MA, 1024), (vAd + 2, S_MH, 0)]
    I(f"s_mul_i32 s{S_T2}, s{S_CB}, 160")
    I(f"s_lshl_b32 s{S_T0}, s{S_W}, 7")
    for ii in range(2):
        I(f"v_add_u32 v5, s{S_T0}, v2")
        if ii:
            I("v_add_u32 v5, 64, v5")
        I("v_mul_u32_u24 v6, 1058, v5")
        I("v_lshrrev_b32 v6, 18, v6")
        I("v_mul_u32_u24 v7, 248, v6")
        I("v_sub_u32 v5, v5, v7")
        I("v_mul_u32_u24 v7, 2185, v5")
        I("v_lshrrev_b32 v7, 16, v7")
        I("v_lshl_add_u32 v6, v6, 3, v7")
        I("v_mul_u32_u24 v7, 30, v7")
        I("v_sub_u32 v7, v5, v7")
        I("v_mul_u32_u24 v1, 26, v7")
        I("v_lshrrev_b32 v1, 8, v1")
        I("v_mul_u32_u24 v1, 1120, v1")
        I("v_lshl_add_u32 v1, v7, 4, v1")
        I("v_cmp_gt_u32 vcc, 240, v5")
        I("v_mul_u32_u24 v7, 3840, v6")
        I("v_add_u32 v1, v1, v7")
        I(f"v_add_u32 v1, s{S_T2}, v1")
        if ii:
            I("v_subrev_u32 v1, 1024, v1")
        I("v_mov_b32 v7, 0x7f000000")
        I("v_cndmask_b32 v1, v7, v1, vcc")
        I("v_cmp_gt_u32 vcc, 32, v6")
        I("s_nop 1")
        I(f"v_cndmask_b32 v{vBd+ii}, v7, v1, vcc")
    I(f"s_lshl_b32 s{S_MB}, s{S_W}, 11")
    c.b_dma = [(vBd + ii, S_MB, 1024 * ii) for ii in range(2)]
    build_srds()
    srd(SRD_W, P_WQKV, P_WQKV + 1, D * 3 * D * 2)
    RL_LDS = 120832
    sI, sKS, sCG, sV, sT, sD = 75, 76, 77, 78, 79, 80
    SRD_S = 84
    S_ET = 88
    vRa, vRt = 232, 234

    def qkv_late():
        I(f"s_lshr_b32 s{sT}, s2, 3")
        I(f"s_and_b32 s{sV}, s{sT}, 3")
        I(f"s_lshr_b32 s{sT}, s{sT}, 3")
        I(f"s_lshl_b32 s{sT}, s{sT}, 2")
        I(f"s_add_u32 s{sV}, s{sV}, s{sT}")
        I(f"s_and_b32 s{sT}, s2, 7")
        I(f"s_lshl_b32 s{sT}, s{sT}, 4")
        I(f"s_add_u32 s{sV}, s{sV}, s{sT}")
        I(f"s_lshl_b32 s{sI}, s{sV}, 3")
        I(f"s_add_u32 s{sI}, s{sI}, s{S_W}")
        I(f"s_min_u32 s{sT}, s{sI}, 679")
        I(f"s_mul_i32 s{sKS}, s{sT}, 6554")
        I(f"s_lshr_b32 s{sKS}, s{sKS}, 16")
        I(f"s_mul_i32 s{sV}, s{sKS}, 10")
        I(f"s_sub_u32 s{sCG}, s{sT}, s{sV}")
        I(f"s_cmp_lt_u32 s{sKS}, 20")
        I(f"s_cselect_b32 s{SRD_S}, s{P_WO}, s{P_WD}")
        I(f"s_cselect_b32 s{SRD_S+1}, s{P_WO+1}, s{P_WD+1}")
        I(f"s_mov_b32 s{SRD_S+2}, {F*D*2}")
        I(f"s_cselect_b32 s{SRD_S+2}, {D*D*2}, s{SRD_S+2}")
        I(f"s_cselect_b32 s{sT}, 0, 20")
        I(f"s_and_b32 s{SRD_S+1}, s{SRD_S+1}, 0xffff")
        I(f"s_mov_b32 s{SRD_S+3}, 0x20000")
        I(f"s_sub_u32 s{sT}, s{sKS}, s{sT}")
        I(f"s_mul_i32 s{sT}, s{sT}, {32*1280}")
        I(f"s_lshl_b32 s{sV}, s{sCG}, 7")
        I(f"s_add_u32 s{sT}, s{sT}, s{sV}")
        I("v_lshrrev_b32 v5, 3, v2")
        I("v_and_b32 v6, 7, v2")
        I("v_and_b32 v7, 2, v5")
        I("v_xor_b32 v6, v6, v7")
        I("v_mul_u32_u24 v5, 1280, v5")
        I(f"v_lshl_add_u32 v{vRa}, v6, 4, v5")
        I("v_xor_b32 v6, 4, v6")
        I(f"v_lshl_add_u32 v{vRa+1}, v6, 4, v5")
        I(f"s_lshl_b32 s{sV}, s{S_W}, 12")
        I(f"s_add_u32 s{sV}, s{sV}, {RL_LDS}")
        for a_ in range(4):
            I(f"s_add_u32 m0, s{sV}, {1024*a_}")
            I("s_nop 0")
            I(f"buffer_load_dwordx4 v{vRa + (a_ & 1)}, s[{SRD_S}:{SRD_S+3}], s{sT} offen lds")
            if a_ < 3:
                I(f"s_add_u32 s{sT}, s{sT}, {8*1280}")
        I("v_lshrrev_b32 v5, 2, v3")
        I("v_lshl_add_u32 v6, v4, 3, v5")
        I("v_lshlrev_b32 v6, 7, v6")
        I("v_and_b32 v7, 1, v2")
        I("v_lshl_add_u32 v6, v7, 3, v6")
        I(f"v_add_u32 v6, s{sV}, v6")
        I("v_and_b32 v5, 2, v5")
        I("v_and_b32 v7, 1, v4")
        I("v_lshl_or_b32 v5, v7, 2, v5")
        I("v_lshrrev_b32 v7, 1, v2")
        I("v_and_b32 v7, 1, v7")
        for ct in range(4):
            I(f"v_add_u32 v1, {2*ct}, v7")
            I("v_xor_b32 v1, v1, v5")
            I(f"v_lshl_add_u32 v{vRt+ct}, v1, 4, v6")
        for ct in range(4):
            I(f"s_lshl_b32 s{sT}, s{sCG}, 2")
            I(f"s_add_u32 s{sT}, s{sT}, {ct}")
            I(f"s_mul_i32 s{sV}, s{sT}, 52")
            I(f"s_lshr_b32 s{sV}, s{sV}, 8")
            I(f"s_mul_i32 s{sD+ct}, s{sV}, 5")
            I(f"s_sub_u32 s{sT}, s{sT}, s{sD+ct}")
            I(f"s_mul_i32 s{sV}, s{sV}, 68")
            I(f"s_add_u32 s{sV}, s{sV}, s{sKS}")
            I(f"s_mul_i32 s{sV}, s{sV}, 5")
            I(f"s_add_u32 s{sV}, s{sV}, s{sT}")
            I(f"s_lshl_b32 s{sV}, s{sV}, 10")
            I(f"s_add_u32 s{sD+ct}, s{sV}, {W2_OFF}")

    def tile_base(dst, t, halo):
        I(f"s_mul_i32 s{S_T0}, s{t}, 52")
        I(f"s_lshr_b32 s{S_T0}, s{S_T0}, 8")
        I(f"s_mul_i32 s{S_T3}, s{S_T0}, 5")
        I(f"s_sub_u32 s{S_T3}, s{t}, s{S_T3}")
        I(f"s_lshl_b32 s{S_T3}, s{S_T3}, 5")
        I(f"s_mul_i32 s{S_T0}, s{S_T0}, 24192")
        I(f"s_add_u32 s{S_T0}, s{S_T0}, s{S_T3}")
        I(f"s_sub_u32 s{dst}, s{S_T0}, 2688")
        I(f"s_cmp_ge_u32 s{t}, 15")
        I(f"s_cselect_b32 s{dst}, {70656 if halo else 70656 - 2688}, s{dst}")
        if halo:
            I(f"s_cmp_lt_u32 s{t}, 5")
            I(f"s_cselect_b32 s{dst}, 70656, s{dst}")

    def qkv_after():
        x_base(c.vX0, c.vX1)
        I(f"s_lshr_b32 s{S_T2}, s{S_W}, 2")
        I(f"s_lshl_b32 s{S_ROT}, s{S_T2}, 13")
        I(f"s_add_u32 s{S_ROT}, s{S_ROT}, 2048")
        I(f"v_add_u32 v{vXm0}, s{S_ROT}, v{c.vX0}")
        I(f"v_add_u32 v{vXm1}, s{S_ROT}, v{c.vX1}")
        I("v_lshrrev_b32 v5, 2, v3")
        I("v_mul_u32_u24 v5, 30, v5")
        I("v_mul_u32_u24 v6, 248, v4")
        I("v_add_u32 v5, v5, v6")
        I("v_lshrrev_b32 v6, 1, v2")
        I("v_and_b32 v6, 1, v6")
        I("v_add_u32 v5, v5, v6")
        I("v_lshlrev_b32 v5, 4, v5")
        I("v_and_b32 v6, 1, v2")
        I("v_lshl_add_u32 v5, v6, 3, v5")
        I(f"s_and_b32 s{S_T3}, s{S_W}, 3")
        I(f"s_lshl_b32 s{S_T3}, s{S_T3}, 7")
        I(f"v_add_u32 v{vW}, s{S_T3}, v5")

    def qkv_late2():
        qkv_late()
        I(f"s_and_b32 s{S_T1}, s{S_W}, 3")
        I(f"s_lshl_b32 s{S_T1}, s{S_T1}, 2")
        for q in range(4):
            I(f"s_add_u32 s{S_T2}, s{S_T1}, {q}")
            tile_base(S_SLOT + q, S_T2, False)
        I(f"s_lshr_b32 s{S_T2}, s{S_W}, 2")
        I(f"s_lshl_b32 s{S_T2}, s{S_T2}, 1")
        I(f"s_add_u32 s{S_ET}, s{S_T1}, s{S_T2}")
        I(f"s_add_u32 s{S_ET+1}, s{S_ET}, 1")
        for q in range(2):
            tile_base(S_SLOT + 8 + q, S_ET + q, True)

    c.frag_setup = qkv_after
    c.late = qkv_late2
    c.xaddr = [(vXa, vXm0, vXm1), (vXa + 1, c.vX0, c.vX1)]
    c.xfrag = [(0, 2048 * i) for i in range(4)] + [(1, 0)]
    c.waddr = [(vWa, vW)]
    c.wfrag = [(0, q * 32) for q in range(4)]
    c.tiles = [(c.acc0 + (q * 4 + i) * 4, i, q) for q in range(4) for i in range(4)]

    def qkv_stats(fs):
        la, lj = f"qkv_cb_{len(out)}_{fs}", f"qkv_cj_{len(out)}_{fs}"
        xh = c.XF[fs] + 16

        def blk(q0):
            r_ = []
            for q in range(2):
                w = c.WF[fs] + 4 * (q0 + q)
                a_ = c.acc0 + (16 + q) * 4
                r_.append(f"v_mfma_f32_16x16x32_bf16 v[{a_}:{a_+3}], v[{w}:{w+3}], v[{xh}:{xh+3}], v[{a_}:{a_+3}]")
                r_.append(ones_mfma(vC + 4 * q, w))
            return r_
        return {15: [f"s_cbranch_vccz {la}"] + blk(0) + [f"s_branch {lj}", f"{la}:"] + blk(2) + [f"{lj}:"]}

    def qkv_mid():
        for ct in range(4):
            r = 208 + 4 * ct
            I(f"ds_read_b64_tr_b16 v[{r}:{r+1}], v{vRt+ct}")
            I(f"ds_read_b64_tr_b16 v[{r+2}:{r+3}], v{vRt+ct} offset:512")
        I("v_lshlrev_b32 v1, 4, v2")
        for ct in range(4):
            r = 208 + 4 * ct
            I(f"s_waitcnt lgkmcnt({2*(3-ct)})")
            I(f"buffer_store_dwordx4 v[{r}:{r+3}], v1, s[{SRD_A2}:{SRD_A2+3}], s{sD+ct} offen")

    c.mid = qkv_mid
    c.stats = qkv_stats
    k1_mainloop(c, "qkv")
    I("v_lshlrev_b32 v6, 4, v4")
    I(f"v_add_u32 v6, {ST_COL}, v6")
    I(f"s_lshl_b32 s{S_T2}, s{S_ET}, 6")
    I(f"v_add_u32 v9, s{S_T2}, v6")
    I(f"s_lshl_b32 s{S_T2}, s{S_ET+1}, 6")
    I(f"v_add_u32 v10, s{S_T2}, v6")
    I("s_mov_b32 exec_lo, 0x00010001")
    I("s_mov_b32 exec_hi, 0x00010001")
    I(f"ds_write_b128 v9, v[{vC}:{vC+3}]")
    I(f"ds_write_b128 v10, v[{vC+4}:{vC+7}]")
    I("s_mov_b64 exec, -1")
    gather_row_stats("qkv")
    I("v_lshlrev_b32 v5, 3, v3")
    I(f"v_add_u32 v5, {ST_ROW}, v5")
    I(f"s_lshr_b32 s{S_T2}, s{S_ROT}, 4")
    I(f"v_add_u32 v6, s{S_T2}, v5")
    for i in range(4):
        I(f"ds_read_b64 v[{16+2*i}:{17+2*i}], v6 offset:{128*i}")
    I(f"ds_read_b64 v[24:25], v5")
    I("v_lshlrev_b32 v6, 4, v4")
    I(f"v_add_u32 v6, {ST_COL}, v6")
    I(f"s_and_b32 s{S_T1}, s{S_W}, 3")
    I(f"s_lshl_b32 s{S_T2}, s{S_T1}, 8")
    I(f"v_add_u32 v7, s{S_T2}, v6")
    CSV = 32
    for q in range(4):
        I(f"ds_read_b128 v[{CSV+4*q}:{CSV+4*q+3}], v7 offset:{64*q}")
    I("v_mul_u32_u24 v5, 168, v3")
    I("v_lshl_add_u32 v5, v4, 3, v5")
    I(f"s_lshr_b32 s{S_T2}, s{S_ROT}, 11")
    I(f"s_mul_i32 s{S_T2}, s{S_T2}, {16*168}")
    I(f"v_add_u32 v26, s{S_T2}, v5")
    I("s_waitcnt lgkmcnt(0)")
    for i in range(5):
        I(f"v_xor_b32 v{16+2*i}, 0x80000000, v{16+2*i}")

    def stage(a, cs, K):
        for h_ in range(2):
            I(f"v_pk_fma_f32 v[{a+2*h_}:{a+2*h_+1}], v[{cs+2*h_}:{cs+2*h_+1}], v[{K}:{K+1}], v[{a+2*h_}:{a+2*h_+1}] op_sel_hi:[1,0,1]")
        for h_ in range(2):
            I(f"v_pk_mul_f32 v[{a+2*h_}:{a+2*h_+1}], v[{a+2*h_}:{a+2*h_+1}], v[{K}:{K+1}] op_sel:[0,1] op_sel_hi:[1,1]")
        I(f"v_cvt_pk_bf16_f32 v{a}, v{a}, v{a+1}")
        I(f"v_cvt_pk_bf16_f32 v{a+1}, v{a+2}, v{a+3}")

    for q in range(4):
        I(f"v_add_u32 v7, s{S_SLOT+q}, v26")
        for i in range(4):
            a = c.acc0 + (q * 4 + i) * 4
            stage(a, CSV + 4 * q, 16 + 2 * i)
            I(f"ds_write_b64 v7, v[{a}:{a+1}] offset:{i*16*168}")
    for q in range(2):
        a = c.acc0 + (16 + q) * 4
        stage(a, vC + 4 * q, 24)
        I(f"v_add_u32 v7, s{S_SLOT+8+q}, v5")
        I(f"ds_write_b64 v7, v[{a}:{a+1}]")
    I("s_waitcnt lgkmcnt(0)")
    I("s_barrier")
    KOFF, VOFF = 21504, 45696
    I(f"s_and_b32 s{S_T0}, s{S_W}, 1")
    I(f"s_lshl_b32 s{S_T0}, s{S_T0}, 6")
    I(f"v_add_u32 v5, s{S_T0}, v2")
    I(f"v_add_u32 v6, s{S_M0}, v5")
    I("v_mul_u32_u24 v5, 168, v5")
    I(f"s_lshr_b32 s{S_T1}, s{S_W}, 1")
    I(f"s_mul_i32 s{S_T2}, s{S_T1}, 40")
    I(f"v_add_u32 v5, s{S_T2}, v5")
    Q = 8
    KV = 20
    LG = 100
    O = 110
    for i in range(5):
        I(f"ds_read_b64 v[{Q+2*i}:{Q+2*i+1}], v5 offset:{8*i}")
    for wi in range(8):
        for i in range(5):
            off = KOFF + (16 - 2 * wi) * 168 + 8 * i
            I(f"ds_read_b64 v[{KV+10*wi+2*i}:{KV+10*wi+2*i+1}], v5 offset:{off}")
    I(f"s_mov_b32 s{S_SCALE}, 0x3e64f92e")
    I(f"s_mov_b32 s{S_L2E}, 0x3ea52b5c")
    I(f"s_mov_b32 s{S_SEL_LO}, 0x05040100")
    I(f"s_mov_b32 s{S_SEL_HI}, 0x07060302")
    I("s_waitcnt lgkmcnt(0)")
    for i in range(10):
        for wi in range(8):
            src = "0" if i == 0 else f"v{LG+wi}"
            I(f"v_dot2_f32_bf16 v{LG+wi}, v{Q+i}, v{KV+10*wi+i}, {src}")
    I("s_nop 3")
    for wi in range(8):
        for i in range(5):
            off = VOFF + (16 - 2 * wi) * 168 + 8 * i
            I(f"ds_read_b64 v[{KV+10*wi+2*i}:{KV+10*wi+2*i+1}], v5 offset:{off}")
    I(f"s_cmp_lg_u32 s{S_RB}, 0")
    I("s_cbranch_scc1 qkv_nomask")
    I("v_mov_b32 v7, 0xcf8547b1")
    for wi in range(1, 8):
        I(f"v_cmp_le_u32 vcc, {2*wi}, v6")
        I("s_nop 1")
        I(f"v_cndmask_b32 v{LG+wi}, v7, v{LG+wi}, vcc")
    L("qkv_nomask")
    I(f"v_max3_f32 v7, v{LG}, v{LG+1}, v{LG+2}")
    I(f"v_max3_f32 v7, v7, v{LG+3}, v{LG+4}")
    I(f"v_max3_f32 v7, v7, v{LG+5}, v{LG+6}")
    I(f"v_max_f32 v7, v7, v{LG+7}")
    for wi in range(8):
        I(f"v_sub_f32 v{LG+wi}, v{LG+wi}, v7")
        I(f"v_mul_f32 v{LG+wi}, s{S_L2E}, v{LG+wi}")
    for wi in range(8):
        I(f"v_exp_f32 v{LG+wi}, v{LG+wi}")
    I("s_nop 0")
    I(f"v_add_f32 v7, v{LG}, v{LG+1}")
    for wi in range(2, 8):
        I(f"v_add_f32 v7, v7, v{LG+wi}")
    I("v_rcp_f32 v7, v7")
    I("s_nop 0")
    for wi in range(8):
        I(f"v_mul_f32 v{LG+wi}, v{LG+wi}, v7")
    for p in range(4):
        I(f"v_cvt_pk_bf16_f32 v{LG+p}, v{LG+2*p}, v{LG+2*p+1}")
    I("s_waitcnt lgkmcnt(0)")
    T = 130
    for p in range(4):
        for i in range(10):
            A_ = KV + 10 * (2 * p) + i
            B_ = KV + 10 * (2 * p + 1) + i
            t0 = T + 2 * (i % 4)
            I(f"v_perm_b32 v{t0}, v{B_}, v{A_}, s{S_SEL_LO}")
            I(f"v_perm_b32 v{t0+1}, v{B_}, v{A_}, s{S_SEL_HI}")
            s0 = "0" if p == 0 else f"v{O+2*i}"
            s1 = "0" if p == 0 else f"v{O+2*i+1}"
            I(f"v_dot2_f32_bf16 v{O+2*i}, v{t0}, v{LG+p}, {s0}")
            I(f"v_dot2_f32_bf16 v{O+2*i+1}, v{t0+1}, v{LG+p}, {s1}")
    I("s_nop 3")
    for i in range(10):
        I(f"v_cvt_pk_bf16_f32 v{Q+i}, v{O+2*i}, v{O+2*i+1}")
    I("v_lshrrev_b32 v5, 4, v6")
    I("v_mul_u32_u24 v5, 69632, v5")
    I("v_and_b32 v7, 15, v6")
    I("v_lshl_add_u32 v5, v7, 4, v5")
    I(f"s_lshl_b32 s{S_T0}, s{S_CB}, 2")
    I(f"s_add_u32 s{S_T0}, s{S_T0}, s{S_T1}")
    I(f"s_mul_i32 s{S_T0}, s{S_T0}, 5")
    I(f"s_lshr_b32 s{S_T3}, s{S_T0}, 1")
    I(f"s_lshl_b32 s{S_T3}, s{S_T3}, 8")
    I(f"s_and_b32 s{S_T2}, s{S_T0}, 1")
    I(f"s_cmp_lg_u32 s{S_T2}, 0")
    I("s_cbranch_scc1 qkv_odd")
    I(f"buffer_store_dwordx4 v[{Q}:{Q+3}], v5, s[{SRD_A2}:{SRD_A2+3}], s{S_T3} offen")
    I(f"buffer_store_dwordx4 v[{Q+4}:{Q+7}], v5, s[{SRD_A2}:{SRD_A2+3}], s{S_T3} offen offset:256")
    I(f"buffer_store_dwordx2 v[{Q+8}:{Q+9}], v5, s[{SRD_A2}:{SRD_A2+3}], s{S_T3} offen offset:512")
    I("s_branch qkv_stored")
    L("qkv_odd")
    I(f"buffer_store_dwordx2 v[{Q}:{Q+1}], v5, s[{SRD_A2}:{SRD_A2+3}], s{S_T3} offen offset:8")
    I(f"buffer_store_dwordx4 v[{Q+2}:{Q+5}], v5, s[{SRD_A2}:{SRD_A2+3}], s{S_T3} offen offset:256")
    I(f"buffer_store_dwordx4 v[{Q+6}:{Q+9}], v5, s[{SRD_A2}:{SRD_A2+3}], s{S_T3} offen offset:512")
    L("qkv_stored")
    rt_flush(0x4000000)
    L("k1_done")
    I("s_endpgm")
    kd(name, 256, 98)


def gen_k2():
    name = "gemm2_kernel"
    kstart(name)
    I("s_cmp_ge_u32 s2, 256")
    I("s_cbranch_scc1 k2_done")
    global RT_ON
    RT_ON = 5
    rt_stamp(0)
    load_kernargs()
    S_RB_, S_CB_, S_M0_, S_N0B, S_W_ = 4, 5, 6, 7, 8
    S_AG_, S_BG_ = 12, 13
    SRD_A, SRD_B, SRD_XX, SRD_O = 40, 44, 48, 52
    T0, T1, T2 = 56, 57, 58
    I(f"s_and_b32 s{T0}, s2, 7")
    I(f"s_lshr_b32 s{T1}, s2, 3")
    I(f"s_lshr_b32 s{S_RB_}, s{T0}, 1")
    I(f"s_lshl_b32 s{S_RB_}, s{S_RB_}, 3")
    I(f"s_lshr_b32 s{T2}, s{T1}, 2")
    I(f"s_add_u32 s{S_RB_}, s{S_RB_}, s{T2}")
    I(f"s_and_b32 s{S_CB_}, s{T0}, 1")
    I(f"s_lshl_b32 s{S_CB_}, s{S_CB_}, 2")
    I(f"s_and_b32 s{T2}, s{T1}, 3")
    I(f"s_add_u32 s{S_CB_}, s{S_CB_}, s{T2}")
    I(f"s_lshl_b32 s{S_M0_}, s{S_RB_}, 6")
    I(f"s_mul_i32 s{S_N0B}, s{S_CB_}, 160")
    I("v_lshrrev_b32 v1, 6, v0")
    I("v_and_b32 v2, 63, v0")
    I(f"v_readfirstlane_b32 s{S_W_}, v1")
    I("v_and_b32 v3, 15, v2")
    I("v_lshrrev_b32 v4, 4, v2")
    DEP = OPT["k2d"]
    NST = 17
    FR = [8 + 36 * i for i in range(DEP)]
    vA = 228
    vB = 232
    XR = 236
    I("v_lshlrev_b32 v5, 4, v2")
    I(f"s_mul_i32 s{T0}, s{S_RB_}, {4*69632}")
    I(f"v_add_u32 v{vA}, s{T0}, v5")
    for rt in range(1, 4):
        I(f"v_add_u32 v{vA+rt}, {69632*rt}, v{vA}")
    I(f"s_mul_i32 s{T0}, s{S_CB_}, {68*5120}")
    I(f"v_add_u32 v{vB}, s{T0}, v5")
    I(f"v_add_u32 v{vB+1}, 4096, v{vB}")
    I(f"s_lshl_b32 s{S_AG_}, s{S_W_}, 10")
    I(f"s_mul_i32 s{S_BG_}, s{S_W_}, 5120")
    I("s_waitcnt lgkmcnt(0)")
    srd(SRD_A, P_WS, P_WS + 1, A2_BYTES)
    srd(SRD_B, P_WS, P_WS + 1, W2_BYTES, add=W2_OFF)

    def loads(fs):
        r_ = []
        for rt in range(4):
            r = FR[fs] + 4 * rt
            r_.append(f"buffer_load_dwordx4 v[{r}:{r+3}], v{vA+rt}, s[{SRD_A}:{SRD_A+3}], s{S_AG_} offen")
        for ct in range(5):
            r = FR[fs] + 16 + 4 * ct
            if ct < 4:
                r_.append(f"buffer_load_dwordx4 v[{r}:{r+3}], v{vB}, s[{SRD_B}:{SRD_B+3}], s{S_BG_} offen offset:{ct*1024}")
            else:
                r_.append(f"buffer_load_dwordx4 v[{r}:{r+3}], v{vB+1}, s[{SRD_B}:{SRD_B+3}], s{S_BG_} offen")
        return r_

    adv = [f"s_add_u32 s{S_AG_}, s{S_AG_}, 4096", f"s_add_u32 s{S_BG_}, s{S_BG_}, 20480"]
    for fs in range(DEP - 1):
        for x in loads(fs) + adv:
            I(x)
    srd(SRD_XX, P_X, P_X + 1, X_BYTES)
    srd(SRD_O, P_OUT, P_OUT + 1, X_BYTES)
    I(f"s_lshl_b32 s{T0}, s{S_W_}, 4")
    I(f"s_add_u32 s{T2}, s{T0}, s{S_M0_}")
    for i in range(3):
        I(f"v_add_u32 v5, {64*i}, v2")
        I("v_mul_u32_u24 v6, 205, v5")
        I("v_lshrrev_b32 v6, 11, v6")
        I("v_mul_u32_u24 v7, 10, v6")
        I("v_sub_u32 v7, v5, v7")
        I(f"v_add_u32 v1, s{T2}, v6")
        I("v_mul_u32_u24 v1, 1280, v1")
        I("v_lshl_add_u32 v1, v7, 4, v1")
        I(f"v_add_u32 v{XR+12+i}, s{S_N0B}, v1")
        I(f"v_add_u32 v1, s{T0}, v6")
        I("v_mul_u32_u24 v1, 336, v1")
        I(f"v_lshl_add_u32 v{XR+15+i}, v7, 5, v1")
    I("v_cmp_gt_u32 vcc, 32, v2")
    I("v_mov_b32 v1, 0x7f000000")
    I("s_nop 1")
    I(f"v_cndmask_b32 v{XR+14}, v1, v{XR+14}, vcc")
    I(f"v_cndmask_b32 v{XR+17}, 0, v{XR+17}, vcc")
    for i in range(3):
        I(f"buffer_load_dwordx4 v[{XR+4*i}:{XR+4*i+3}], v{XR+12+i}, s[{SRD_XX}:{SRD_XX+3}], 0 offen")
    for r in range(80):
        I(f"v_accvgpr_write_b32 a{r}, 0")
    for j in range(NST):
        younger = min(j + DEP - 2, NST - 1) - j
        extra = 3 if j < DEP - 1 else 0
        I(f"s_waitcnt vmcnt({9*younger + extra})")
        if j == 0:
            rt_stamp(1)
        ld = loads((j - 1) % DEP) if j + DEP - 1 < NST else []
        fs = j % DEP
        k = 0
        for ct in range(5):
            for rt in range(4):
                a_ = (rt * 5 + ct) * 4
                w = FR[fs] + 16 + 4 * ct
                x = FR[fs] + 4 * rt
                I(f"v_mfma_f32_16x16x32_bf16 a[{a_}:{a_+3}], v[{w}:{w+3}], v[{x}:{x+3}], a[{a_}:{a_+3}]")
                if k % 2 == 1 and ld:
                    I(ld.pop(0))
                k += 1
        if j + DEP - 1 < NST:
            for x in adv:
                I(x)
    rt_stamp(4)
    PS = 64 * 336
    I(f"s_mul_i32 s{T0}, s{S_W_}, {PS}")
    I("v_mul_u32_u24 v5, 336, v3")
    I("v_lshl_add_u32 v5, v4, 4, v5")
    I(f"v_add_u32 v5, s{T0}, v5")
    I("s_nop 7")
    for rt in range(4):
        for ct in range(5):
            a_ = (rt * 5 + ct) * 4
            I(f"ds_write_b128 v5, a[{a_}:{a_+3}] offset:{rt*16*336 + ct*64}")
    I("s_waitcnt lgkmcnt(0)")
    I("s_barrier")
    rt_stamp(2)
    for i in range(3):
        I(f"v_add_u32 v{5+i}, {2*PS}, v{XR+15+i}")
    for i in range(3):
        for p in range(4):
            r = 8 + (i * 4 + p) * 8
            areg = (XR + 15 + i) if p < 2 else (5 + i)
            I(f"ds_read_b128 v[{r}:{r+3}], v{areg} offset:{(p % 2) * PS}")
            I(f"ds_read_b128 v[{r+4}:{r+7}], v{areg} offset:{(p % 2) * PS + 16}")
    for i in range(3):
        b_ = 8 + i * 32
        xr = XR + 4 * i
        I(f"s_waitcnt lgkmcnt({min(15, 8*(2-i))})")
        for r in range(8):
            I(f"v_add_f32 v{b_+r}, v{b_+r}, v{b_+8+r}")
            I(f"v_add_f32 v{b_+16+r}, v{b_+16+r}, v{b_+24+r}")
        for j in range(4):
            I(f"v_lshlrev_b32 v{b_+8+2*j}, 16, v{xr+j}")
            I(f"v_and_b32 v{b_+9+2*j}, 0xffff0000, v{xr+j}")
        for r in range(8):
            I(f"v_add_f32 v{b_+r}, v{b_+r}, v{b_+16+r}")
        for r in range(8):
            I(f"v_add_f32 v{b_+r}, v{b_+r}, v{b_+8+r}")
        for j in range(4):
            I(f"v_cvt_pk_bf16_f32 v{xr+j}, v{b_+2*j}, v{b_+2*j+1}")
        I(f"buffer_store_dwordx4 v[{xr}:{xr+3}], v{XR+12+i}, s[{SRD_O}:{SRD_O+3}], 0 offen")
    rt_flush(0x4000000)
    L("k2_done")
    I("s_endpgm")
    sg = 102 if OPT["stamp"] else 64
    e('.section .rodata,"a"')
    e(".p2align 6")
    e(f".amdhsa_kernel {name}")
    e("  .amdhsa_next_free_vgpr 336")
    e(f"  .amdhsa_next_free_sgpr {sg}")
    e("  .amdhsa_accum_offset 256")
    e("  .amdhsa_group_segment_fixed_size 0")
    e("  .amdhsa_kernarg_size 80")
    e("  .amdhsa_user_sgpr_count 2")
    e("  .amdhsa_user_sgpr_kernarg_segment_ptr 1")
    e("  .amdhsa_system_sgpr_workgroup_id_x 1")
    e(".end_amdhsa_kernel")
    e(".text")


def header():
    ref = open(f"cdna_kernels/{NAME}.s.ref").read().splitlines()
    for line in ref:
        if line.startswith("; @launch"):
            break
        e(line)
    e(f"; @launch kernel=gemm1_kernel grid=(256,1,1) block=(512,1,1) lds={K1_LDS}")
    e("; @launch kernel=gemm2_kernel grid=(256,1,1) block=(256,1,1) lds=86016")
    e('.amdgcn_target "amdgcn-amd-amdhsa--gfx950"')
    e(".text")


def selfcheck():
    for p_ in range(1024):
        assert (p_ * 1058) >> 18 == p_ // 248
    for p_ in range(248):
        assert (p_ * 2185) >> 16 == p_ // 30
    for p_ in range(768):
        assert (p_ * 2731) >> 16 == p_ // 24
    for p_ in range(680):
        assert (p_ * 6554) >> 16 == p_ // 10
    for t in range(40):
        assert (t * 52) >> 8 == t // 5
    for t in range(30):
        assert (t * 26) >> 8 == t // 10
    for t in range(192):
        assert (t * 205) >> 11 == t // 10


selfcheck()
header()
gen_k1()
gen_k2()
path = f"cdna_kernels/{NAME}.s"
for a in sys.argv[1:]:
    if a.startswith("-o"):
        path = a[2:]
open(path, "w").write("\n".join(out) + "\n")
print("wrote", path, len(out), "lines")
```
